```python
import torch

def _softmax(x, axis=-1):
    return torch.softmax(x, dim=axis)
def _gelu(x):
    return torch.nn.functional.gelu(x, approximate="tanh")
def _silu(x):
    return torch.nn.functional.silu(x)
def _sigmoid(x):
    return torch.sigmoid(x)
def _layernorm(x, axis=-1, eps=1e-5):
    m = x.mean(dim=axis, keepdim=True)
    v = x.var(dim=axis, keepdim=True, unbiased=False)
    return (x - m) / torch.sqrt(v + eps)
def _scatter_add(tgt, idx, src, axis=0):
    return tgt.clone().index_add_(axis, idx, src)
def _segment_sum(src, seg, n):
    out = torch.zeros((n,) + src.shape[1:], dtype=src.dtype)
    return out.index_add_(0, seg, src)
def _pad(x, pw):
    flat = tuple(v for pair in reversed(pw) for v in pair)
    return torch.nn.functional.pad(x, flat)

kernel_name = 'recurrent_scan__grouped_kv_mqa__moe_arch_mod__prompt'

def setup_inputs():

    _w = (lambda a: (lambda t: t.to(torch.bfloat16) if t.is_floating_point() else t)(torch.as_tensor(a)))
    def _A_setup():
        B, S, D, H = 1, 2048, 512, 32
        Dh = D // H
        return {
            "x": _w((lambda *s: torch.randn(*s, dtype=torch.bfloat16) * 0.05)(B, S, D)),
            "wq": _w((lambda *s: torch.randn(*s, dtype=torch.bfloat16) * 0.05)(D, H * Dh)),
            "wk": _w((lambda *s: torch.randn(*s, dtype=torch.bfloat16) * 0.05)(D, Dh)),
            "wv": _w((lambda *s: torch.randn(*s, dtype=torch.bfloat16) * 0.05)(D, Dh)),
            "wo": _w((lambda *s: torch.randn(*s, dtype=torch.bfloat16) * 0.05)(H * Dh, D)),
        }
    _A_in = _A_setup()

    def _B_setup():
        B, S, D, F, C = 1, 2048, 512, 1792, 2
        return {
            "x": _w((lambda *s: torch.randn(*s, dtype=torch.bfloat16) * 0.05)(B, S, D)),
            "w_r": _w((lambda *s: torch.randn(*s, dtype=torch.bfloat16) * 1.6)(D)),
            "w_gate": _w((lambda *s: torch.randn(*s, dtype=torch.bfloat16) * 0.1)(D, F)),
            "w_up": _w((lambda *s: torch.randn(*s, dtype=torch.bfloat16) * 0.1)(D, F)),
            "w_down": _w((lambda *s: torch.randn(*s, dtype=torch.bfloat16) * 0.1)(F, D)),
        }
    _B_in = _B_setup()

    return {
        "A_x": _A_in["x"],
        "A_wq": _A_in["wq"],
        "A_wk": _A_in["wk"],
        "A_wv": _A_in["wv"],
        "A_wo": _A_in["wo"],
        "B_x": _B_in["x"],
        "B_w_r": _B_in["w_r"],
        "B_w_gate": _B_in["w_gate"],
        "B_w_up": _B_in["w_up"],
        "B_w_down": _B_in["w_down"],
    }

def reference(A_x, A_wq, A_wk, A_wv, A_wo, B_x, B_w_r, B_w_gate, B_w_up, B_w_down):
    def _A_ref(x, wq, wk, wv, wo):
        B, S, D = x.shape
        H = 32
        Dh = D // H
        q = (lambda x, *d: x.permute(*d))((x @ wq).reshape(B, S, H, Dh), 0, 2, 1, 3)
        k = x @ wk
        v = x @ wv
        scores = torch.einsum("bhqd,bkd->bhqk", q, k) * (Dh ** -0.5)
        p = _softmax(scores, axis=-1)
        o = torch.einsum("bhqk,bkd->bhqd", p, v)
        return (lambda x, *d: x.permute(*d))(o, 0, 2, 1, 3).reshape(B, S, H * Dh) @ wo

    def _B_ref(x, w_r, w_gate, w_up, w_down):
        B, S, D = x.shape
        C = 2
        r = x @ w_r
        idx = torch.argsort(-r, axis=-1)[:, :C]
        idx_e = (lambda x, n, axis: torch.repeat_interleave(x, n, dim=axis))(idx.reshape(B, C, 1), D, axis=2)
        x_sel = (lambda x, i, axis: torch.take_along_dim(x, i, dim=axis))(x, idx_e, axis=1)
        g = _silu(x_sel @ w_gate)
        u = x_sel @ w_up
        y = (g * u) @ w_down
        r_sel = _sigmoid((lambda x, i, axis: torch.take_along_dim(x, i, dim=axis))(r, idx, axis=1))
        y = y * r_sel.reshape(B, C, 1)
        b_off = (torch.arange(B) * S).reshape(B, 1)
        flat_idx = (idx + b_off).reshape(B * C)
        zero = (x * 0.0).reshape(B * S, D)
        upd = _scatter_add(zero, flat_idx, y.reshape(B * C, D), axis=0)
        return x + upd.reshape(B, S, D)

    x = A_x
    xn = _layernorm(x, axis=-1)
    s = _A_ref(xn, A_wq, A_wk, A_wv, A_wo)
    g = _silu(_B_ref(xn, B_w_r, B_w_gate, B_w_up, B_w_down))
    return x + s * g
```

```python
import sys

NAME = "recurrent_scan__grouped_kv_mqa__moe_arch_mod__prompt"

WS_QRAW = 0x0
WS_KMAT = 0x410000
WS_VFRAG = 0x420000
WS_STATS = 0x440000
WS_TOPC = 0x448000
WS_SEL = 0x449000
WS_YPART = 0x450000
WS_XN = 0x500000
WS_O = 0x700000

SCALE = 0.25 * 1.4426950408889634

import struct
def f2u(x):
    return struct.unpack("<I", struct.pack("<f", x))[0]


class Asm:
    def __init__(self):
        self.l = []
    def __call__(self, s):
        self.l.append("    " + s)
    def label(self, s):
        self.l.append(s + ":")
    def raw(self, s):
        self.l.append(s)
    def c(self, s):
        self.l.append("    ; " + s)
    def text(self):
        return "\n".join(self.l) + "\n"


def srd(a, d, base_lo, base_hi, off, size):
    if off:
        a(f"s_add_u32 s{d}, s{base_lo}, 0x{off:x}")
        a(f"s_addc_u32 s{d+1}, s{base_hi}, 0")
    else:
        a(f"s_mov_b32 s{d}, s{base_lo}")
        a(f"s_mov_b32 s{d+1}, s{base_hi}")
    a(f"s_mov_b32 s{d+2}, 0x{size:x}")
    a(f"s_mov_b32 s{d+3}, 0x00020000")


def vr(b, n):
    return f"v[{b}:{b+n-1}]"


XF = 16
AF = 80
ACC = 96
RES = 16


def gemm_issue(a, sX, sW, s_tok0, s_col0, s_w, ones=False, stmp=40):
    sx0, sx1, sw, swb = stmp, stmp + 1, stmp + 2, stmp + 3
    a.c("gemm address setup")
    a("v_and_b32 v2, 31, v1")
    a("v_lshrrev_b32 v3, 5, v1")
    a("v_lshlrev_b32 v2, 10, v2")
    a("v_lshl_add_u32 v2, v3, 4, v2")
    a(f"s_lshl_b32 s{sx0}, s{s_w}, 8")
    a(f"v_add_u32 v2, s{sx0}, v2")
    a(f"s_lshl_b32 s{sx0}, s{s_tok0}, 10")
    a(f"s_add_u32 s{sx1}, s{sx0}, 32768")
    a("v_lshrrev_b32 v4, 3, v1")
    a("v_lshlrev_b32 v4, 10, v4")
    a("v_and_b32 v5, 7, v1")
    a("v_lshrrev_b32 v6, 2, v1")
    a("v_and_b32 v6, 4, v6")
    a("v_xor_b32 v5, v5, v6")
    a("v_lshl_add_u32 v4, v5, 4, v4")
    a(f"s_lshl_b32 s{sw}, s{s_w}, 17")
    a(f"s_lshl_b32 s{swb}, s{s_col0}, 1")
    a(f"s_add_u32 s{sw}, s{sw}, s{swb}")
    a(f"s_lshl_b32 s{swb}, s{s_w}, 14")
    a("v_lshrrev_b32 v5, 2, v1")
    a("v_and_b32 v5, 3, v5")
    a("v_lshl_add_u32 v6, v3, 3, v5")
    a("v_lshlrev_b32 v6, 7, v6")
    a("v_lshrrev_b32 v7, 1, v5")
    a("v_lshl_add_u32 v6, v7, 6, v6")
    a("v_lshrrev_b32 v7, 4, v1")
    a("v_and_b32 v7, 1, v7")
    a("v_lshl_add_u32 v6, v7, 5, v6")
    a("v_and_b32 v7, 1, v1")
    a("v_lshl_add_u32 v6, v7, 4, v6")
    a("v_lshrrev_b32 v7, 1, v1")
    a("v_and_b32 v7, 1, v7")
    a("v_lshl_add_u32 v6, v7, 3, v6")
    a(f"v_add_u32 v6, s{swb}, v6")
    a("v_xor_b32 v7, 64, v6")
    a("v_lshlrev_b32 v8, 4, v1")
    a(f"s_lshl_b32 s{stmp+4}, s{s_w}, 12")
    a(f"v_add_u32 v9, s{stmp+4}, v8")
    a(f"v_add_u32 v8, s{swb}, v8")
    a.c("issue loads")
    for s in range(8):
        for q in (2 * s, 2 * s + 1):
            a(f"s_add_u32 m0, s{swb}, {q*1024}")
            a(f"s_add_u32 s{stmp+4}, s{sw}, {q*8192}")
            a(f"buffer_load_dwordx4 v4, s[{sW}:{sW+3}], s{stmp+4} offen lds")
        if not ones:
            a(f"buffer_load_dwordx4 {vr(XF+8*s,4)}, v2, s[{sX}:{sX+3}], s{sx0} offen offset:{32*s}")
            a(f"buffer_load_dwordx4 {vr(XF+8*s+4,4)}, v2, s[{sX}:{sX+3}], s{sx1} offen offset:{32*s}")
    if ones:
        for i in range(4):
            a(f"v_mov_b32 v{XF+i}, 0x3f803f80")


def gemm_compute(a, ones=False, extra_after=0):
    per = 2 if ones else 4
    for s in range(8):
        a(f"s_waitcnt vmcnt({per*(7-s)+extra_after})")
        ab = AF + 8 * (s & 1)
        a(f"ds_read_b64_tr_b16 {vr(ab,2)}, v6 offset:{s*2048}")
        a(f"ds_read_b64_tr_b16 {vr(ab+2,2)}, v6 offset:{s*2048+512}")
        a(f"ds_read_b64_tr_b16 {vr(ab+4,2)}, v7 offset:{s*2048}")
        a(f"ds_read_b64_tr_b16 {vr(ab+6,2)}, v7 offset:{s*2048+512}")
        for ct in range(2):
            a(f"s_waitcnt lgkmcnt({2*(1-ct)})")
            for tt in range(2):
                acc = ACC + 16 * (2 * tt + ct)
                b = XF if ones else XF + 8 * s + 4 * tt
                cc = "0" if s == 0 else vr(acc, 16)
                a(f"v_mfma_f32_32x32x16_bf16 {vr(acc,16)}, {vr(ab+4*ct,4)}, {vr(b,4)}, {cc}")
    a("s_nop 15")
    a("s_nop 3")
    a.c("cross-wave reduction via LDS")
    for qd in range(4):
        for ch in range(4):
            a(f"ds_write_b128 v8, {vr(ACC+16*qd+4*ch,4)} offset:{qd*4096+ch*1024}")
    a("s_waitcnt lgkmcnt(0)")
    a("s_barrier")
    for src in range(4):
        for ch in range(4):
            a(f"ds_read_b128 {vr(RES+16*src+4*ch,4)}, v9 offset:{src*16384+ch*1024}")
    for src in range(1, 4):
        a(f"s_waitcnt lgkmcnt({4*(3-src)})")
        for i in range(0, 16, 2):
            a(f"v_pk_add_f32 {vr(RES+i,2)}, {vr(RES+i,2)}, {vr(RES+16*src+i,2)}")


def wave_reduce_rows(a, regs, op="v_add_f32"):
    steps = ["quad_perm:[1,0,3,2] row_mask:0xf bank_mask:0xf",
             "quad_perm:[2,3,0,1] row_mask:0xf bank_mask:0xf",
             "row_half_mirror row_mask:0xf bank_mask:0xf",
             "row_mirror row_mask:0xf bank_mask:0xf",
             "row_bcast:15 row_mask:0xa bank_mask:0xf",
             "row_bcast:31 row_mask:0xc bank_mask:0xf"]
    for st in steps:
        if len(regs) < 3:
            a("s_nop 1")
        for r in regs:
            a(f"{op}_dpp v{r}, v{r}, v{r} {st}")


def k1(a):
    a.raw(".globl k1_kernel")
    a.raw(".p2align 8")
    a.raw(".type k1_kernel,@function")
    a.label("k1_kernel")
    a("s_cmp_ge_u32 s2, 392")
    a("s_cbranch_scc1 K1_END")
    a("s_load_dwordx4 s[4:7], s[0:1], 0")
    a("s_load_dwordx4 s[8:11], s[0:1], 16")
    a("s_load_dwordx2 s[12:13], s[0:1], 48")
    a("s_load_dwordx2 s[14:15], s[0:1], 96")
    a("v_and_b32 v1, 63, v0")
    a("v_lshrrev_b32 v2, 6, v0")
    a("s_nop 0")
    a("v_readfirstlane_b32 s16, v2")
    a("s_cmp_lt_u32 s2, 128")
    a("s_cbranch_scc1 K1_LN")
    a("s_sub_u32 s3, s2, 128")
    a("s_cmp_ge_u32 s3, 256")
    a("s_cbranch_scc1 K1_CS")
    a("s_and_b32 s17, s3, 7")
    a("s_lshr_b32 s18, s3, 3")
    a("s_and_b32 s19, s18, 3")
    a("s_lshl_b32 s17, s17, 2")
    a("s_add_u32 s17, s17, s19")
    a("s_lshl_b32 s17, s17, 6")
    a("s_lshr_b32 s18, s18, 2")
    a("s_lshl_b32 s18, s18, 6")
    a("s_waitcnt lgkmcnt(0)")
    srd(a, 20, 4, 5, 0, 2048 * 1024)
    srd(a, 24, 6, 7, 0, 512 * 1024)
    srd(a, 28, 14, 15, WS_QRAW, 2049 * 2048)
    gemm_issue(a, 20, 24, 17, 18, 16)
    gemm_compute(a)
    a.label("K1_GSTORE")
    a("s_lshr_b32 s40, s16, 1")
    a("s_lshl_b32 s40, s40, 5")
    a("s_add_u32 s40, s40, s17")
    a("s_lshl_b32 s40, s40, 11")
    a("s_and_b32 s41, s16, 1")
    a("s_lshl_b32 s41, s41, 5")
    a("s_add_u32 s41, s41, s18")
    a("s_lshl_b32 s41, s41, 2")
    a("s_add_u32 s40, s40, s41")
    a("v_and_b32 v2, 31, v1")
    a("v_lshrrev_b32 v3, 5, v1")
    a("v_lshlrev_b32 v2, 11, v2")
    a("v_lshl_add_u32 v2, v3, 5, v2")
    for i, off in enumerate((0, 16, 64, 80)):
        a(f"buffer_store_dwordx4 {vr(RES+4*i,4)}, v2, s[28:31], s40 offen offset:{off}")
    a("s_endpgm")
    a.label("K1_CS")
    a("s_sub_u32 s18, s3, 256")
    a("s_lshl_b32 s18, s18, 6")
    a("s_movk_i32 s17, 2048")
    a("s_waitcnt lgkmcnt(0)")
    srd(a, 20, 4, 5, 0, 2048 * 1024)
    srd(a, 24, 6, 7, 0, 512 * 1024)
    srd(a, 28, 14, 15, WS_QRAW, 2049 * 2048)
    gemm_issue(a, 20, 24, 17, 18, 16, ones=True)
    gemm_compute(a, ones=True)
    a("s_branch K1_GSTORE")

    a.label("K1_LN")
    L_WK, L_WV, L_XN, L_KEY = 0, 16384, 32768, 49408
    a("s_and_b32 s17, s2, 7")
    a("s_lshr_b32 s18, s2, 3")
    a("s_lshl_b32 s17, s17, 8")
    a("s_lshl_b32 s18, s18, 4")
    a("s_add_u32 s17, s17, s18")
    a("s_lshl_b32 s18, s16, 2")
    a("s_add_u32 s18, s18, s17")
    a("v_lshlrev_b32 v2, 4, v1")
    a("s_waitcnt lgkmcnt(0)")
    srd(a, 20, 4, 5, 0, 2048 * 1024)
    srd(a, 24, 8, 9, 0, 16384)
    srd(a, 28, 10, 11, 0, 16384)
    srd(a, 32, 12, 13, 0, 1024)
    srd(a, 36, 14, 15, WS_XN, 2048 * 1024)
    srd(a, 44, 14, 15, WS_KMAT, 0x40000)
    a("s_lshl_b32 s19, s18, 10")
    for i in range(4):
        a(f"buffer_load_dwordx4 {vr(8+4*i,4)}, v2, s[20:23], s19 offen offset:{0}" if i == 0 else
          f"buffer_load_dwordx4 {vr(8+4*i,4)}, v2, s[20:23], s19 offen offset:{1024*i}")
    a(f"buffer_load_dwordx4 {vr(24,4)}, v2, s[32:35], 0 offen")
    a("s_lshl_b32 s40, s16, 12")
    for q in range(4):
        a(f"s_add_u32 m0, s40, {L_WK + q*1024}")
        a(f"s_add_u32 s41, s40, {q*1024}")
        a("buffer_load_dwordx4 v2, s[24:27], s41 offen lds")
        a(f"s_add_u32 m0, s40, {L_WV + q*1024}")
        a("s_nop 0")
        a("buffer_load_dwordx4 v2, s[28:31], s41 offen lds")
    XU = 32
    a("s_mov_b32 s42, 0xffff0000")
    for i in range(4):
        a(f"s_waitcnt vmcnt({8 + 1 + 3 - i})")
        for j in range(4):
            a(f"v_lshlrev_b32 v{XU+8*i+2*j}, 16, v{8+4*i+j}")
            a(f"v_and_b32 v{XU+8*i+2*j+1}, s42, v{8+4*i+j}")
    for i in range(4):
        a(f"v_pk_add_f32 {vr(72+2*i,2)}, {vr(XU+8*i,2)}, {vr(XU+8*i+2,2)}")
    for i in range(4):
        a(f"v_pk_add_f32 {vr(80+2*i,2)}, {vr(XU+8*i+4,2)}, {vr(XU+8*i+6,2)}")
    for i in range(4):
        a(f"v_pk_add_f32 {vr(72+2*i,2)}, {vr(72+2*i,2)}, {vr(80+2*i,2)}")
    for i in range(4):
        a(f"v_add_f32 v{64+i}, v{72+2*i}, v{73+2*i}")
    wave_reduce_rows(a, [64, 65, 66, 67])
    a("s_nop 0")
    for i in range(4):
        a(f"v_readlane_b32 s{48+i}, v{64+i}, 63")
    a("s_nop 1")
    for i in range(4):
        a(f"v_mul_f32 v{72+2*i}, 0xbb000000, v{1}" if False else f"v_mov_b32 v{72+2*i}, s{48+i}")
    for i in range(4):
        a(f"v_mul_f32 v{72+2*i}, 0xbb000000, v{72+2*i}")
    for i in range(4):
        a(f"v_mov_b32 v{73+2*i}, v{72+2*i}")
    D = 96
    for i in range(4):
        for j in range(4):
            a(f"v_pk_add_f32 {vr(D+8*i+2*j,2)}, {vr(XU+8*i+2*j,2)}, {vr(72+2*i,2)}")
    for i in range(4):
        a(f"v_pk_mul_f32 {vr(80+2*i,2)}, {vr(D+8*i,2)}, {vr(D+8*i,2)}")
    for j in range(1, 4):
        for i in range(4):
            a(f"v_pk_fma_f32 {vr(80+2*i,2)}, {vr(D+8*i+2*j,2)}, {vr(D+8*i+2*j,2)}, {vr(80+2*i,2)}")
    for i in range(4):
        a(f"v_add_f32 v{64+i}, v{80+2*i}, v{81+2*i}")
    wave_reduce_rows(a, [64, 65, 66, 67])
    a("s_nop 0")
    for i in range(4):
        a(f"v_readlane_b32 s{52+i}, v{64+i}, 63")
    a("s_nop 1")
    for i in range(4):
        a(f"v_mov_b32 v{64+i}, s{52+i}")
    for i in range(4):
        a(f"v_mul_f32 v{64+i}, 0x3b000000, v{64+i}")
    for i in range(4):
        a(f"v_cvt_pk_bf16_f32 v{64+i}, v{64+i}, v{64+i}")
    for i in range(4):
        a(f"v_lshlrev_b32 v{64+i}, 16, v{64+i}")
    for i in range(4):
        a(f"v_add_f32 v{64+i}, 0x{f2u(1e-5):08x}, v{64+i}")
    for i in range(4):
        a(f"v_cvt_pk_bf16_f32 v{64+i}, v{64+i}, v{64+i}")
    for i in range(4):
        a(f"v_lshlrev_b32 v{64+i}, 16, v{64+i}")
    for i in range(4):
        a(f"v_sqrt_f32 v{64+i}, v{64+i}")
    for i in range(4):
        a(f"v_cvt_pk_bf16_f32 v{64+i}, v{64+i}, v{64+i}")
    for i in range(4):
        a(f"v_lshlrev_b32 v{64+i}, 16, v{64+i}")
    for i in range(4):
        a(f"v_rcp_f32 v{80+2*i}, v{64+i}")
    for i in range(4):
        a(f"v_cvt_pk_bf16_f32 v{72+2*i}, v{72+2*i}, v{72+2*i}")
    for i in range(4):
        a(f"v_lshlrev_b32 v{72+2*i}, 16, v{72+2*i}")
    for i in range(4):
        a(f"v_mov_b32 v{73+2*i}, v{72+2*i}")
        a(f"v_mov_b32 v{81+2*i}, v{80+2*i}")
    for i in range(4):
        for j in range(4):
            a(f"v_pk_add_f32 {vr(D+8*i+2*j,2)}, {vr(XU+8*i+2*j,2)}, {vr(72+2*i,2)}")
    for i in range(4):
        for j in range(4):
            a(f"v_cvt_pk_bf16_f32 v{8+4*i+j}, v{D+8*i+2*j}, v{D+8*i+2*j+1}")
    for i in range(4):
        for j in range(4):
            a(f"v_lshlrev_b32 v{D+8*i+2*j}, 16, v{8+4*i+j}")
            a(f"v_and_b32 v{D+8*i+2*j+1}, s42, v{8+4*i+j}")
    for i in range(4):
        for j in range(4):
            a(f"v_pk_mul_f32 {vr(D+8*i+2*j,2)}, {vr(D+8*i+2*j,2)}, {vr(80+2*i,2)}")
    for i in range(4):
        for j in range(4):
            a(f"v_cvt_pk_bf16_f32 v{8+4*i+j}, v{D+8*i+2*j}, v{D+8*i+2*j+1}")
    a("s_mul_i32 s40, s16, 4160")
    a(f"s_add_u32 s40, s40, {L_XN}")
    a("v_add_u32 v3, s40, v2")
    for i in range(4):
        a(f"buffer_store_dwordx4 {vr(8+4*i,4)}, v2, s[36:39], s19 offen offset:{1024*i}")
        a(f"ds_write_b128 v3, {vr(8+4*i,4)} offset:{1040*i}")
    a("s_waitcnt vmcnt(12)")
    for i in range(4):
        a(f"v_mov_b32 v{64+i}, 0")
    for j in range(4):
        for i in range(4):
            a(f"v_dot2c_f32_bf16 v{64+i}, v{8+4*i+j}, v{24+j}")
    a("s_nop 3")
    wave_reduce_rows(a, [64, 65, 66, 67])
    for i in range(4):
        a(f"v_sub_f32 v{D+4*i}, 0, v{72+2*i}")
        a(f"v_mov_b32 v{D+4*i+1}, v{80+2*i}")
        a(f"v_mul_f32 v{D+4*i+2}, 0x{f2u(SCALE):08x}, v{80+2*i}")
        a(f"v_mul_f32 v{D+4*i+3}, v{72+2*i}, v{D+4*i+2}")
    for i in range(4):
        a(f"v_cvt_pk_bf16_f32 v{64+i}, v{64+i}, v{64+i}")
    for i in range(4):
        a(f"v_lshlrev_b32 v{64+i}, 16, v{64+i}")
    for i in range(4):
        a(f"v_ashrrev_i32 v{68+i}, 31, v{64+i}")
    for i in range(4):
        a(f"v_or_b32 v{68+i}, 0x80000000, v{68+i}")
    for i in range(4):
        a(f"v_xor_b32 v{64+i}, v{64+i}, v{68+i}")
    for i in range(4):
        a(f"s_sub_u32 s{48+i}, {2047-i}, s18")
    for i in range(4):
        a(f"v_and_b32 v{64+i}, s42, v{64+i}")
    for i in range(4):
        a(f"v_or_b32 v{64+i}, s{48+i}, v{64+i}")
    a("v_cmp_eq_u32 vcc, 63, v1")
    a("s_and_saveexec_b64 s[56:57], vcc")
    a("s_lshl_b32 s40, s16, 4")
    a(f"s_add_u32 s40, s40, {L_KEY}")
    a("v_mov_b32 v3, s40")
    a(f"ds_write_b128 v3, {vr(64,4)}")
    a("s_lshl_b32 s40, s18, 4")
    a(f"s_add_u32 s40, s40, {WS_STATS - WS_KMAT}")
    a("v_mov_b32 v3, 0")
    for i in range(4):
        a(f"buffer_store_dwordx4 {vr(D+4*i,4)}, v3, s[44:47], s40 offen offset:{16*i}")
    a("s_mov_b64 exec, s[56:57]")
    a("s_waitcnt vmcnt(8) lgkmcnt(0)")
    a("s_barrier")
    a("s_cmp_eq_u32 s16, 2")
    a("s_cbranch_scc1 K1_LN_TOP")
    a("s_cmp_eq_u32 s16, 3")
    a("s_cbranch_scc1 K1_LN_CONST")
    a("v_and_b32 v3, 15, v1")
    a("v_lshrrev_b32 v4, 4, v1")
    a("v_mul_u32_u24 v5, 1040, v3")
    a("v_lshl_add_u32 v5, v4, 4, v5")
    a(f"v_add_u32 v5, {L_XN}, v5")
    a("v_lshlrev_b32 v6, 8, v4")
    a("v_lshl_add_u32 v6, v3, 3, v6")
    a("s_lshl_b32 s40, s16, 14")
    a("v_add_u32 v6, s40, v6")
    for s in range(16):
        a(f"ds_read_b128 {vr(32+4*s,4)}, v5 offset:{64*s}")
    a("s_cmp_eq_u32 s16, 1")
    a("s_cbranch_scc1 K1_LN_V")
    for part in ("K", "V"):
        if part == "V":
            a.label("K1_LN_V")
        for half in range(2):
            for s in range(8 * half, 8 * half + 8):
                a(f"ds_read_b64_tr_b16 {vr(96+4*(s&7),2)}, v6 offset:{1024*s}")
                a(f"ds_read_b64_tr_b16 {vr(96+4*(s&7)+2,2)}, v6 offset:{1024*s+128}")
            a("s_waitcnt lgkmcnt(0)")
            for s in range(8 * half, 8 * half + 8):
                cc = "0" if s == 0 else vr(8, 4)
                if part == "K":
                    a(f"v_mfma_f32_16x16x32_bf16 {vr(8,4)}, {vr(96+4*(s&7),4)}, {vr(32+4*s,4)}, {cc}")
                else:
                    a(f"v_mfma_f32_16x16x32_bf16 {vr(8,4)}, {vr(32+4*s,4)}, {vr(96+4*(s&7),4)}, {cc}")
            a("s_nop 7")
        a("s_nop 7")
        a("v_cvt_pk_bf16_f32 v12, v8, v9")
        a("v_cvt_pk_bf16_f32 v13, v10, v11")
        if part == "K":
            a("v_lshlrev_b32 v7, 5, v3")
            a("v_lshl_add_u32 v7, v4, 3, v7")
            a("s_lshl_b32 s40, s17, 5")
            a("buffer_store_dwordx2 v[12:13], v7, s[44:47], s40 offen")
        else:
            a("v_and_b32 v7, 3, v3")
            a("v_lshrrev_b32 v14, 2, v3")
            a("v_and_b32 v14, 1, v14")
            a("v_lshl_add_u32 v7, v14, 3, v7")
            a("v_lshrrev_b32 v14, 3, v3")
            a("v_lshl_add_u32 v7, v14, 2, v7")
            a("v_lshrrev_b32 v14, 1, v4")
            a("v_lshl_add_u32 v7, v14, 5, v7")
            a("v_lshlrev_b32 v7, 4, v7")
            a("v_and_b32 v14, 1, v4")
            a("v_lshl_add_u32 v7, v14, 3, v7")
            a("s_lshl_b32 s40, s17, 6")
            a(f"s_add_u32 s40, s40, {WS_VFRAG - WS_KMAT}")
            a("buffer_store_dwordx2 v[12:13], v7, s[44:47], s40 offen")
        a("s_endpgm")
    a.label("K1_LN_CONST")
    a("v_and_b32 v3, 15, v1")
    a("v_lshrrev_b32 v4, 4, v1")
    a("v_lshl_add_u32 v5, v4, 5, v3")
    a("v_add_u32 v5, 16, v5")
    a("v_lshlrev_b32 v5, 4, v5")
    a("v_and_b32 v6, 11, v3")
    a("v_mov_b32 v8, 0x3f803f80")
    a("v_cmp_eq_u32 vcc, 0, v6")
    a("s_nop 1")
    a("v_cndmask_b32 v8, 0, v8, vcc")
    a("v_mov_b32 v9, v8")
    a("v_mov_b32 v10, v8")
    a("v_mov_b32 v11, v8")
    a("s_lshl_b32 s40, s17, 6")
    a(f"s_add_u32 s40, s40, {WS_VFRAG - WS_KMAT}")
    a("v_cmp_gt_u32 vcc, 32, v1")
    a("s_and_saveexec_b64 s[56:57], vcc")
    a("buffer_store_dwordx4 v[8:11], v5, s[44:47], s40 offen")
    a("s_endpgm")
    a.label("K1_LN_TOP")
    a("v_and_b32 v3, 15, v1")
    a("v_lshlrev_b32 v3, 2, v3")
    a(f"ds_read_b32 v4, v3 offset:{L_KEY}")
    a("s_waitcnt lgkmcnt(0)")
    a("v_mov_b32 v5, v4")
    for st in ["quad_perm:[1,0,3,2]", "quad_perm:[2,3,0,1]", "row_half_mirror", "row_mirror"]:
        a("s_nop 1")
        a(f"v_max_u32_dpp v5, v5, v5 {st} row_mask:0xf bank_mask:0xf")
    a("v_cmp_eq_u32 vcc, v4, v5")
    a("s_nop 1")
    a("v_cndmask_b32 v6, v4, 0, vcc")
    for st in ["quad_perm:[1,0,3,2]", "quad_perm:[2,3,0,1]", "row_half_mirror", "row_mirror"]:
        a("s_nop 1")
        a(f"v_max_u32_dpp v6, v6, v6 {st} row_mask:0xf bank_mask:0xf")
    a("v_mov_b32 v4, v5")
    a("v_mov_b32 v5, v6")
    a("s_lshl_b32 s40, s2, 3")
    a(f"s_add_u32 s40, s40, {WS_TOPC - WS_KMAT}")
    a("v_mov_b32 v3, 0")
    a("v_cmp_eq_u32 vcc, 0, v1")
    a("s_and_saveexec_b64 s[56:57], vcc")
    a("buffer_store_dwordx2 v[4:5], v3, s[44:47], s40 offen")
    a.label("K1_END")
    a("s_endpgm")


Q0 = 16
O0 = 32
S0 = 96
KB = 128
VB = 136
IDX = 8
L2_RED = 0
L2_FG = 73728
L2_FU = L2_FG + 16384
L2_FD = L2_FU + 16384
K2_LDS = L2_FD + 16 * 1040


def k2(a):
    a.raw(".globl k2_kernel")
    a.raw(".p2align 8")
    a.raw(".type k2_kernel,@function")
    a.label("k2_kernel")
    a("s_cmp_ge_u32 s2, 256")
    a("s_cbranch_scc1 K2_END")
    a("s_load_dwordx2 s[14:15], s[0:1], 96")
    a("v_and_b32 v1, 63, v0")
    a("v_lshrrev_b32 v2, 6, v0")
    a("s_nop 0")
    a("v_readfirstlane_b32 s16, v2")
    a("s_cmp_eq_u32 s16, 8")
    a("s_cbranch_scc1 K2_FFN")
    a("s_lshr_b32 s17, s16, 2")
    a("s_and_b32 s18, s16, 3")
    a("s_lshl_b32 s19, s2, 3")
    a("s_lshl_b32 s20, s17, 2")
    a("s_add_u32 s19, s19, s20")
    a("v_and_b32 v2, 31, v1")
    a("v_lshrrev_b32 v3, 5, v1")
    a("v_lshlrev_b32 v4, 5, v2")
    a("v_lshl_add_u32 v4, v3, 4, v4")
    a("v_lshlrev_b32 v5, 4, v1")
    a("v_lshlrev_b32 v6, 6, v2")
    a("v_lshl_add_u32 v6, v3, 5, v6")
    a("s_waitcnt lgkmcnt(0)")
    srd(a, 24, 14, 15, WS_QRAW, 2049 * 2048)
    srd(a, 28, 14, 15, WS_KMAT, 0x10000)
    srd(a, 32, 14, 15, WS_VFRAG, 0x20000)
    srd(a, 36, 14, 15, WS_O, 2048 * 1024)
    a(f"s_add_u32 s40, s14, 0x{WS_STATS:x}")
    a("s_addc_u32 s41, s15, 0")
    a("s_lshl_b32 s20, s19, 4")
    a("s_add_u32 s40, s40, s20")
    a("s_addc_u32 s41, s41, 0")
    a("s_load_dwordx16 s[48:63], s[40:41], 0")
    a("s_lshl_b32 s21, s18, 14")
    a("s_lshl_b32 s22, s18, 15")
    a(f"buffer_load_dwordx4 {vr(KB,4)}, v4, s[28:31], s21 offen")
    a(f"buffer_load_dwordx4 {vr(VB,4)}, v5, s[32:35], s22 offen")
    a(f"buffer_load_dwordx4 {vr(VB+4,4)}, v5, s[32:35], s22 offen offset:1024")
    a("s_lshl_b32 s20, s19, 11")
    a("s_mov_b32 s23, 0x400000")
    a(f"buffer_load_dwordx4 {vr(S0,4)}, v6, s[24:27], s23 offen")
    a(f"buffer_load_dwordx4 {vr(S0+4,4)}, v6, s[24:27], s23 offen offset:16")
    for c in range(4):
        a(f"buffer_load_dwordx4 {vr(O0+8*c,4)}, v6, s[24:27], s20 offen offset:{2048*(c&1)}" if c < 2 else
          f"buffer_load_dwordx4 {vr(O0+8*c,4)}, v6, s[24:27], s42 offen offset:{2048*(c&1)}")
        a(f"buffer_load_dwordx4 {vr(O0+8*c+4,4)}, v6, s[24:27], s20 offen offset:{2048*(c&1)+16}" if c < 2 else
          f"buffer_load_dwordx4 {vr(O0+8*c+4,4)}, v6, s[24:27], s42 offen offset:{2048*(c&1)+16}")
        if c == 1:
            a("s_add_u32 s42, s20, 4096")
    a(f"v_mov_b32 v{IDX}, 0xdddddddd")
    for i in range(8):
        a(f"v_mov_b32 v{VB+8+i}, 0")
    for i in range(16):
        a(f"v_mov_b32 v{S0+16+i}, 0")
    a("s_waitcnt lgkmcnt(0)")
    for c in range(4):
        a(f"s_waitcnt vmcnt({6-2*c})")
        for i in range(8):
            a(f"v_mul_f32 v{S0+8+i}, s{48+4*c+3}, v{S0+i}")
        for i in range(8):
            a(f"v_fma_f32 v{S0+8+i}, v{O0+8*c+i}, s{48+4*c+2}, v{S0+8+i}")
        for i in range(4):
            a(f"v_cvt_pk_bf16_f32 v{Q0+4*c+i}, v{S0+8+2*i}, v{S0+9+2*i}")
    for i in range(64):
        a(f"v_mov_b32 v{O0+i}, 0")
    a("s_nop 1")
    a(f"v_mfma_f32_32x32x16_bf16 {vr(S0,16)}, {vr(KB,4)}, {vr(Q0,4)}, 0")
    a("s_mov_b32 s23, 0")
    a("s_nop 15")
    a.raw(".p2align 6")
    a.label("K2_LOOP")
    for X in range(8):
        t = X >> 2
        c = X & 3
        Sx = S0 + 16 * (X & 1)
        Sp = S0 + 16 * ((X + 1) & 1)
        cp = (c - 1) & 3
        tp = ((X - 1) >> 2) & 1
        cn = (c + 1) & 3
        tn = ((X + 1) >> 2) & 1
        for e in range(16):
            a(f"v_exp_f32 v{Sx+e}, v{Sx+e}")
            if e == 1:
                a(f"v_smfmac_f32_32x32x32_bf16 {vr(O0+16*cp,16)}, {vr(VB+8*tp+4,4)}, {vr(Sp+8,8)}, v{IDX}")
                if c == 0:
                    a("s_add_u32 s21, s21, 1024")
                    a("s_add_u32 s22, s22, 2048")
                    a(f"buffer_load_dwordx4 {vr(KB+4*(t^1),4)}, v4, s[28:31], s21 offen")
                    a(f"buffer_load_dwordx4 {vr(VB+8*(t^1),4)}, v5, s[32:35], s22 offen")
                    a(f"buffer_load_dwordx4 {vr(VB+8*(t^1)+4,4)}, v5, s[32:35], s22 offen offset:1024")
            if e == 4:
                if c == 3:
                    a("s_waitcnt vmcnt(2)")
                a(f"v_mfma_f32_32x32x16_bf16 {vr(Sp,16)}, {vr(KB+4*tn,4)}, {vr(Q0+4*cn,4)}, 0")
            if e == 10:
                if c == 0:
                    a("s_waitcnt vmcnt(3)")
                a(f"v_smfmac_f32_32x32x32_bf16 {vr(O0+16*c,16)}, {vr(VB+8*t,4)}, {vr(Sx,8)}, v{IDX}")
    a("s_add_u32 s23, s23, 1")
    a("s_cmp_lt_u32 s23, 8")
    a("s_cbranch_scc1 K2_LOOP")
    a("s_nop 1")
    a(f"v_smfmac_f32_32x32x32_bf16 {vr(O0+48,16)}, {vr(VB+8+4,4)}, {vr(S0+16+8,8)}, v{IDX}")
    a("s_mul_i32 s20, s17, 36864")
    a("s_mul_i32 s21, s18, 2304")
    a("s_add_u32 s21, s21, s20")
    a("v_add_u32 v6, s21, v5")
    a("v_lshlrev_b32 v7, 2, v1")
    a("v_add_u32 v7, s21, v7")
    a("s_mul_i32 s21, s18, 9216")
    a("s_add_u32 s21, s21, s20")
    a("v_add_u32 v9, s21, v5")
    a("v_lshlrev_b32 v10, 2, v1")
    a("v_add_u32 v10, s21, v10")
    a("s_nop 15")
    for c in range(4):
        a(f"ds_write_b128 v6, {vr(O0+16*c,4)} offset:{9216*c}")
        a(f"ds_write_b128 v6, {vr(O0+16*c+4,4)} offset:{9216*c+1024}")
        a(f"ds_write_b32 v7, v{O0+16*c+8} offset:{9216*c+2048}")
    a("s_waitcnt lgkmcnt(0)")
    a("s_barrier")
    R = O0
    for src in range(4):
        a(f"ds_read_b128 {vr(R+12*src,4)}, v9 offset:{2304*src}")
        a(f"ds_read_b128 {vr(R+12*src+4,4)}, v9 offset:{2304*src+1024}")
        a(f"ds_read_b32 v{R+12*src+8}, v10 offset:{2304*src+2048}")
    for src in range(1, 4):
        a(f"s_waitcnt lgkmcnt({3*(3-src)})")
        for i in range(0, 8, 2):
            a(f"v_pk_add_f32 {vr(R+i,2)}, {vr(R+i,2)}, {vr(R+12*src+i,2)}")
        a(f"v_add_f32 v{R+8}, v{R+8}, v{R+12*src+8}")
    a(f"v_max3_f32 v11, abs(v{R}), abs(v{R+1}), abs(v{R+2})")
    a(f"v_max3_f32 v11, abs(v{R+3}), abs(v{R+4}), v11")
    a(f"v_max3_f32 v11, abs(v{R+5}), abs(v{R+6}), v11")
    a(f"v_max_f32 v11, abs(v{R+7}), v11")
    a("s_mov_b32 s20, 0x7f000000")
    a("s_mov_b32 s21, 0x1f800000")
    a("s_mov_b32 s22, 0x5f800000")
    a("v_cmp_gt_f32 s[44:45], s20, v11")
    a(f"v_cmp_le_f32 s[46:47], s21, v{R+8}")
    a(f"v_cmp_ge_f32 vcc, s22, v{R+8}")
    a(f"v_add_f32 v12, v{R}, v{R+1}")
    a(f"v_add_f32 v13, v{R+2}, v{R+3}")
    a(f"v_add_f32 v12, v12, v{R+4}")
    a(f"v_add_f32 v13, v13, v{R+5}")
    a(f"v_add_f32 v12, v12, v{R+6}")
    a(f"v_add_f32 v13, v13, v{R+7}")
    a("s_and_b64 s[44:45], s[44:45], s[46:47]")
    a("s_and_b64 s[44:45], s[44:45], vcc")
    a("v_cmp_o_f32 vcc, v12, v13")
    a("s_nop 1")
    a("s_and_b64 s[44:45], s[44:45], vcc")
    a("s_cmp_eq_u64 s[44:45], -1")
    a("s_cbranch_scc0 K2_SLOW")
    a.label("K2_FIN")
    a(f"v_rcp_f32 v11, v{R+8}")
    a("s_nop 0")
    for i in range(8):
        a(f"v_mul_f32 v{R+i}, v{R+i}, v11")
    for i in range(4):
        a(f"v_cvt_pk_bf16_f32 v{R+12+i}, v{R+2*i}, v{R+2*i+1}")
    a("s_add_u32 s20, s19, s18")
    a("s_lshl_b32 s20, s20, 10")
    a(f"buffer_store_dwordx4 {vr(R+12,4)}, v4, s[36:39], s20 offen")
    a.label("K2_END")
    a("s_endpgm")

    a.label("K2_SLOW")
    for c in range(4):
        a(f"s_cmp_lg_u32 s18, {c}")
        a(f"s_cbranch_scc1 K2_SLOWQ{c}")
        for i in range(4):
            a(f"v_mov_b32 v{12+i}, v{Q0+4*c+i}")
        a.label(f"K2_SLOWQ{c}")
    a("v_mov_b32 v11, 0xff7fffff")
    a("s_mov_b32 s21, 0")
    a.label("K2_SLOW1")
    a(f"buffer_load_dwordx4 {vr(KB,4)}, v4, s[28:31], s21 offen")
    a("s_waitcnt vmcnt(0)")
    a(f"v_mfma_f32_32x32x16_bf16 {vr(S0,16)}, {vr(KB,4)}, v[12:15], 0")
    a("s_nop 15")
    a("s_nop 3")
    for i in range(0, 16, 2):
        a(f"v_max3_f32 v11, v{S0+i}, v{S0+i+1}, v11")
    a("s_add_u32 s21, s21, 1024")
    a("s_cmp_lt_u32 s21, 0x10000")
    a("s_cbranch_scc1 K2_SLOW1")
    a("v_mov_b32 v9, v11")
    a("s_nop 1")
    a("v_permlane32_swap_b32 v11, v9")
    a("s_nop 1")
    a("v_max_f32 v11, v11, v9")
    for i in range(16):
        a(f"v_sub_f32 v{S0+16+i}, 0, v11")
    for i in range(16):
        a(f"v_mov_b32 v{R+i}, 0")
    a("s_mov_b32 s21, 0")
    a("s_mov_b32 s22, 0")
    a.label("K2_SLOW2")
    a(f"buffer_load_dwordx4 {vr(KB,4)}, v4, s[28:31], s21 offen")
    a(f"buffer_load_dwordx4 {vr(VB,4)}, v5, s[32:35], s22 offen")
    a(f"buffer_load_dwordx4 {vr(VB+4,4)}, v5, s[32:35], s22 offen offset:1024")
    a("s_waitcnt vmcnt(0)")
    a(f"v_mfma_f32_32x32x16_bf16 {vr(S0,16)}, {vr(KB,4)}, v[12:15], {vr(S0+16,16)}")
    a("s_nop 15")
    a("s_nop 3")
    for e in range(16):
        a(f"v_exp_f32 v{S0+e}, v{S0+e}")
    a("s_nop 1")
    a(f"v_smfmac_f32_32x32x32_bf16 {vr(R,16)}, {vr(VB,4)}, {vr(S0,8)}, v{IDX}")
    a(f"v_smfmac_f32_32x32x32_bf16 {vr(R,16)}, {vr(VB+4,4)}, {vr(S0+8,8)}, v{IDX}")
    a("s_nop 15")
    a("s_nop 3")
    a("s_add_u32 s21, s21, 1024")
    a("s_add_u32 s22, s22, 2048")
    a("s_cmp_lt_u32 s21, 0x10000")
    a("s_cbranch_scc1 K2_SLOW2")
    a("s_branch K2_FIN")

    a.label("K2_FFN")
    a("s_cmp_ge_u32 s2, 112")
    a("s_cbranch_scc1 K2_END")
    a("s_load_dwordx4 s[4:7], s[0:1], 56")
    a("s_load_dwordx2 s[8:9], s[0:1], 72")
    a("v_lshlrev_b32 v2, 4, v1")
    a("v_lshrrev_b32 v3, 1, v1")
    a("v_mul_u32_u24 v3, 3584, v3")
    a("v_and_b32 v4, 1, v1")
    a("v_lshl_add_u32 v3, v4, 4, v3")
    a("s_waitcnt lgkmcnt(0)")
    srd(a, 20, 4, 5, 0, 512 * 3584)
    srd(a, 24, 6, 7, 0, 512 * 3584)
    srd(a, 28, 8, 9, 0, 1792 * 1024)
    srd(a, 32, 14, 15, WS_TOPC, 0x2000)
    srd(a, 36, 14, 15, WS_XN, 2048 * 1024)
    srd(a, 44, 14, 15, WS_YPART, 112 * 4096)
    a(f"buffer_load_dwordx4 v[8:11], v2, s[32:35], 0 offen")
    a("s_lshl_b32 s17, s2, 5")
    for q in range(16):
        a(f"s_mov_b32 m0, {L2_FG + q*1024}")
        a(f"s_add_u32 s18, s17, {q*32*3584}")
        a("buffer_load_dwordx4 v3, s[20:23], s18 offen lds")
        a(f"s_mov_b32 m0, {L2_FU + q*1024}")
        a("s_nop 0")
        a("buffer_load_dwordx4 v3, s[24:27], s18 offen lds")
    a("s_lshl_b32 s17, s2, 14")
    for q in range(16):
        a(f"s_mov_b32 m0, {L2_FD + q*1040}")
        a(f"s_add_u32 s18, s17, {q*1024}")
        a("buffer_load_dwordx4 v2, s[28:31], s18 offen lds")
    a("s_waitcnt vmcnt(48)")
    a("v_max3_u32 v12, v8, v9, v10")
    a("v_max_u32 v12, v12, v11")
    wave_reduce_rows(a, [12], op="v_max_u32")
    a("s_nop 0")
    a("v_readlane_b32 s48, v12, 63")
    a("s_nop 1")
    for i in range(4):
        a(f"v_cmp_eq_u32 vcc, s48, v{8+i}")
        a("s_nop 1")
        a(f"v_cndmask_b32 v{8+i}, v{8+i}, 0, vcc")
    a("v_max3_u32 v12, v8, v9, v10")
    a("v_max_u32 v12, v12, v11")
    wave_reduce_rows(a, [12], op="v_max_u32")
    a("s_nop 0")
    a("v_readlane_b32 s49, v12, 63")
    a("s_nop 3")
    a("s_cmp_lg_u32 s2, 0")
    a("s_cbranch_scc1 K2_FFN1")
    a("v_mov_b32 v8, s48")
    a("v_mov_b32 v9, s49")
    a("v_mov_b32 v10, 0")
    a(f"buffer_store_dwordx2 v[8:9], v10, s[32:35], 0 offen offset:{WS_SEL - WS_TOPC - 0}" if (WS_SEL - WS_TOPC) < 4096 else
      f"s_mov_b32 s18, {WS_SEL - WS_TOPC}")
    if (WS_SEL - WS_TOPC) >= 4096:
        a("buffer_store_dwordx2 v[8:9], v10, s[32:35], s18 offen")
    a.label("K2_FFN1")
    a("s_and_b32 s50, s48, 0xffff")
    a("s_sub_u32 s50, 2047, s50")
    a("s_and_b32 s51, s49, 0xffff")
    a("s_sub_u32 s51, 2047, s51")
    a("s_lshl_b32 s50, s50, 10")
    a("s_lshl_b32 s51, s51, 10")
    a("v_and_b32 v4, 15, v1")
    a("v_lshrrev_b32 v5, 4, v1")
    a("v_mov_b32 v6, 0x7f000000")
    a("v_mov_b32 v7, s50")
    a("v_cmp_eq_u32 vcc, 0, v4")
    a("s_nop 1")
    a("v_cndmask_b32 v6, v6, v7, vcc")
    a("v_mov_b32 v7, s51")
    a("v_cmp_eq_u32 vcc, 1, v4")
    a("s_nop 1")
    a("v_cndmask_b32 v6, v6, v7, vcc")
    a("v_lshl_add_u32 v6, v5, 4, v6")
    for s in range(16):
        a(f"buffer_load_dwordx4 {vr(32+4*s,4)}, v6, s[36:39], 0 offen offset:{64*s}")
    a("v_lshlrev_b32 v7, 8, v5")
    a("v_lshl_add_u32 v7, v4, 3, v7")
    a("s_waitcnt vmcnt(0)")
    for which, base, acc in (("g", L2_FG, 16), ("u", L2_FU, 20)):
        for half in range(2):
            for s in range(8 * half, 8 * half + 8):
                a(f"ds_read_b64_tr_b16 {vr(96+4*(s&7),2)}, v7 offset:{base - 65536 + 1024*s}" if False else
                  f"ds_read_b64_tr_b16 {vr(96+4*(s&7),2)}, v13 offset:{1024*s}" if False else "")
            a.l = [x for x in a.l if x.strip() != ""]
            if half == 0:
                a(f"v_add_u32 v13, {base}, v7")
            for s in range(8 * half, 8 * half + 8):
                a(f"ds_read_b64_tr_b16 {vr(96+4*(s&7),2)}, v13 offset:{1024*s}")
                a(f"ds_read_b64_tr_b16 {vr(96+4*(s&7)+2,2)}, v13 offset:{1024*s+128}")
            a("s_waitcnt lgkmcnt(0)")
            for s in range(8 * half, 8 * half + 8):
                cc = "0" if s == 0 else vr(acc, 4)
                a(f"v_mfma_f32_16x16x32_bf16 {vr(acc,4)}, {vr(96+4*(s&7),4)}, {vr(32+4*s,4)}, {cc}")
            a("s_nop 7")
    a("s_nop 7")
    a("s_mov_b32 s42, 0xffff0000")
    a("v_cvt_pk_bf16_f32 v24, v16, v17")
    a("v_cvt_pk_bf16_f32 v25, v18, v19")
    a("v_cvt_pk_bf16_f32 v26, v20, v21")
    a("v_cvt_pk_bf16_f32 v27, v22, v23")
    for i in range(4):
        a(f"v_lshlrev_b32 v{16+2*i}, 16, v{24+i}")
        a(f"v_and_b32 v{17+2*i}, s42, v{24+i}")
    for i in range(4):
        a(f"v_mul_f32 v{24+i}, 0x{f2u(-1.4426950408889634):08x}, v{16+i}")
    for i in range(4):
        a(f"v_exp_f32 v{24+i}, v{24+i}")
    a("s_nop 0")
    for i in range(4):
        a(f"v_add_f32 v{24+i}, 1.0, v{24+i}")
    for i in range(4):
        a(f"v_rcp_f32 v{24+i}, v{24+i}")
    a("s_nop 0")
    for i in range(4):
        a(f"v_mul_f32 v{16+i}, v{16+i}, v{24+i}")
    a("v_cvt_pk_bf16_f32 v24, v16, v17")
    a("v_cvt_pk_bf16_f32 v25, v18, v19")
    for i in range(2):
        a(f"v_lshlrev_b32 v{16+2*i}, 16, v{24+i}")
        a(f"v_and_b32 v{17+2*i}, s42, v{24+i}")
    for i in range(4):
        a(f"v_mul_f32 v{16+i}, v{16+i}, v{20+i}")
    a("v_cvt_pk_bf16_f32 v24, v16, v17")
    a("v_cvt_pk_bf16_f32 v25, v18, v19")
    a("v_lshrrev_b32 v13, 2, v4")
    a("v_lshl_add_u32 v13, v5, 2, v13")
    a("v_mul_u32_u24 v13, 1040, v13")
    a("v_and_b32 v14, 3, v4")
    a("v_lshl_add_u32 v13, v14, 3, v13")
    a(f"v_add_u32 v13, {L2_FD}, v13")
    a("v_lshlrev_b32 v14, 11, v4")
    a("v_lshl_add_u32 v14, v5, 4, v14")
    a("v_mov_b32 v15, 0x7f000000")
    a("v_cmp_gt_u32 vcc, 2, v4")
    a("s_nop 1")
    a("v_cndmask_b32 v14, v15, v14, vcc")
    a("s_lshl_b32 s17, s2, 12")
    for half in range(2):
        for tl in range(16):
            a(f"ds_read_b64_tr_b16 {vr(96+2*tl,2)}, v13 offset:{32*(16*half+tl)}")
        a("s_waitcnt lgkmcnt(0)")
        for tl in range(16):
            a(f"v_mfma_f32_16x16x16_bf16 {vr(32+4*tl,4)}, {vr(96+2*tl,2)}, v[24:25], 0")
        a("s_nop 7")
        for tl in range(16):
            a(f"buffer_store_dwordx4 {vr(32+4*tl,4)}, v14, s[44:47], s17 offen offset:{64*(16*half+tl)}")
        a("s_waitcnt vmcnt(0)")
    a("s_endpgm")


def k3(a):
    a.raw(".globl k3_kernel")
    a.raw(".p2align 8")
    a.raw(".type k3_kernel,@function")
    a.label("k3_kernel")
    a("s_cmp_ge_u32 s2, 256")
    a("s_cbranch_scc1 K3_END")
    a("s_load_dwordx2 s[4:5], s[0:1], 0")
    a("s_load_dwordx2 s[6:7], s[0:1], 32")
    a("s_load_dwordx2 s[8:9], s[0:1], 80")
    a("s_load_dwordx2 s[14:15], s[0:1], 96")
    a("v_and_b32 v1, 63, v0")
    a("v_lshrrev_b32 v2, 6, v0")
    a("s_nop 0")
    a("v_readfirstlane_b32 s16, v2")
    a("s_and_b32 s17, s2, 7")
    a("s_lshr_b32 s18, s2, 3")
    a("s_and_b32 s19, s18, 3")
    a("s_lshl_b32 s17, s17, 2")
    a("s_add_u32 s17, s17, s19")
    a("s_lshl_b32 s17, s17, 6")
    a("s_lshr_b32 s18, s18, 2")
    a("s_lshl_b32 s18, s18, 6")
    a("s_waitcnt lgkmcnt(0)")
    a(f"s_add_u32 s10, s14, 0x{WS_SEL:x}")
    a("s_addc_u32 s11, s15, 0")
    a("s_load_dwordx2 s[12:13], s[10:11], 0")
    srd(a, 20, 14, 15, WS_O, 2048 * 1024)
    srd(a, 24, 6, 7, 0, 512 * 1024)
    srd(a, 28, 4, 5, 0, 2048 * 1024)
    srd(a, 32, 14, 15, WS_XN, 2048 * 1024)
    srd(a, 36, 8, 9, 0, 2048 * 1024)
    srd(a, 48, 14, 15, WS_YPART, 112 * 4096)
    a("s_lshr_b32 s52, s16, 1")
    a("s_lshl_b32 s52, s52, 5")
    a("s_add_u32 s52, s52, s17")
    a("s_lshl_b32 s53, s52, 10")
    a("s_and_b32 s54, s16, 1")
    a("s_lshl_b32 s54, s54, 5")
    a("s_add_u32 s54, s54, s18")
    a("s_lshl_b32 s55, s54, 1")
    a("s_add_u32 s53, s53, s55")
    a("v_and_b32 v10, 31, v1")
    a("v_lshrrev_b32 v11, 5, v1")
    a("v_lshlrev_b32 v12, 10, v10")
    a("v_lshl_add_u32 v12, v11, 4, v12")
    EX, EG = 160, 168
    G = 176
    a(f"buffer_load_dwordx4 {vr(EG,4)}, v12, s[32:35], s53 offen")
    a(f"buffer_load_dwordx4 {vr(EG+4,4)}, v12, s[32:35], s53 offen offset:32")
    a(f"buffer_load_dwordx4 {vr(EX,4)}, v12, s[28:31], s53 offen")
    a(f"buffer_load_dwordx4 {vr(EX+4,4)}, v12, s[28:31], s53 offen offset:32")
    gemm_issue(a, 20, 24, 17, 18, 16)
    a("s_mov_b32 s58, 0xffff0000")
    a("s_waitcnt vmcnt(34) lgkmcnt(0)")
    for i in range(8):
        a(f"v_lshlrev_b32 v{G+2*i}, 16, v{EG+i}")
        a(f"v_and_b32 v{G+2*i+1}, s58, v{EG+i}")
    for t in range(2):
        a(f"s_and_b32 s56, s{12+t}, 0xffff")
        a("s_sub_u32 s56, 2047, s56")
        a("s_sub_u32 s57, s56, s52")
        a("s_cmp_ge_u32 s57, 32")
        a(f"s_cbranch_scc1 K3_NOUPD{t}")
        a("v_mul_u32_u24 v13, 0x38000, v11")
        a("v_lshl_add_u32 v13, v10, 2, v13")
        a("s_lshl_b32 s59, s54, 2")
        a(f"s_add_u32 s59, s59, {2048*t}")
        a("v_mov_b32 v14, 0")
        for grp in range(4):
            for p in range(14):
                a(f"buffer_load_dword v{192+p}, v13, s[48:51], s59 offen")
                a("s_add_u32 s59, s59, 4096")
            a("s_waitcnt vmcnt(0)")
            for p in range(14):
                a(f"v_add_f32 v14, v14, v{192+p}")
        a("v_mov_b32 v15, v14")
        a("s_nop 1")
        a("v_permlane32_swap_b32 v14, v15")
        a("s_nop 1")
        a("v_add_f32 v14, v14, v15")
        a("v_cvt_pk_bf16_f32 v14, v14, v14")
        a("v_lshlrev_b32 v14, 16, v14")
        a(f"s_and_b32 s59, s{12+t}, 0xffff0000")
        a("s_ashr_i32 s60, s59, 31")
        a("s_not_b32 s60, s60")
        a("s_or_b32 s60, s60, 0x80000000")
        a("s_xor_b32 s59, s59, s60")
        a("s_and_b32 s59, s59, 0xffff0000")
        a("v_mov_b32 v15, s59")
        a(f"v_mul_f32 v15, 0x{f2u(-1.4426950408889634):08x}, v15")
        a("v_exp_f32 v15, v15")
        a("s_nop 0")
        a("v_add_f32 v15, 1.0, v15")
        a("v_rcp_f32 v15, v15")
        a("s_nop 0")
        a("v_cvt_pk_bf16_f32 v15, v15, v15")
        a("v_lshlrev_b32 v15, 16, v15")
        a("v_mul_f32 v14, v14, v15")
        a("v_cvt_pk_bf16_f32 v14, v14, v14")
        a("v_lshlrev_b32 v14, 16, v14")
        a("v_cmp_eq_u32 s[60:61], s57, v10")
        for r in range(16):
            a(f"v_lshl_add_u32 v15, v11, 5, {4*(16*(r>>3) + (r&7))}" if 4*(16*(r>>3) + (r&7)) <= 64 else
              f"v_mov_b32 v15, {4*(16*(r>>3) + (r&7))}")
            if 4*(16*(r>>3) + (r&7)) > 64:
                a("v_lshl_add_u32 v15, v11, 5, v15")
            a("ds_bpermute_b32 v13, v15, v14")
            a("s_waitcnt lgkmcnt(0)")
            a(f"v_add_f32 v13, v13, v{G+r}")
            a("v_cvt_pk_bf16_f32 v13, v13, v13")
            a("v_lshlrev_b32 v13, 16, v13")
            a(f"v_cndmask_b32 v{G+r}, v{G+r}, v13, s[60:61]")
        a.label(f"K3_NOUPD{t}")
    T = 192
    for i in range(16):
        a(f"v_mul_f32 v{T+i}, 0x{f2u(-1.4426950408889634):08x}, v{G+i}")
    for i in range(16):
        a(f"v_exp_f32 v{T+i}, v{T+i}")
    for i in range(16):
        a(f"v_add_f32 v{T+i}, 1.0, v{T+i}")
    for i in range(16):
        a(f"v_rcp_f32 v{T+i}, v{T+i}")
    for i in range(16):
        a(f"v_mul_f32 v{G+i}, v{G+i}, v{T+i}")
    for i in range(8):
        a(f"v_cvt_pk_bf16_f32 v{T+i}, v{G+2*i}, v{G+2*i+1}")
    for i in range(8):
        a(f"v_lshlrev_b32 v{G+2*i}, 16, v{T+i}")
        a(f"v_and_b32 v{G+2*i+1}, s58, v{T+i}")
    gemm_compute(a)
    for i in range(8):
        a(f"v_cvt_pk_bf16_f32 v{T+i}, v{RES+2*i}, v{RES+2*i+1}")
    for i in range(8):
        a(f"v_lshlrev_b32 v{RES+2*i}, 16, v{T+i}")
        a(f"v_and_b32 v{RES+2*i+1}, s58, v{T+i}")
    for i in range(8):
        a(f"v_pk_mul_f32 {vr(RES+2*i,2)}, {vr(RES+2*i,2)}, {vr(G+2*i,2)}")
    for i in range(8):
        a(f"v_cvt_pk_bf16_f32 v{T+i}, v{RES+2*i}, v{RES+2*i+1}")
    for i in range(8):
        a(f"v_lshlrev_b32 v{RES+2*i}, 16, v{T+i}")
        a(f"v_and_b32 v{RES+2*i+1}, s58, v{T+i}")
    for i in range(8):
        a(f"v_lshlrev_b32 v{G+2*i}, 16, v{EX+i}")
        a(f"v_and_b32 v{G+2*i+1}, s58, v{EX+i}")
    for i in range(8):
        a(f"v_pk_add_f32 {vr(RES+2*i,2)}, {vr(RES+2*i,2)}, {vr(G+2*i,2)}")
    for i in range(8):
        a(f"v_cvt_pk_bf16_f32 v{T+i}, v{RES+2*i}, v{RES+2*i+1}")
    a(f"buffer_store_dwordx4 {vr(T,4)}, v12, s[36:39], s53 offen")
    a(f"buffer_store_dwordx4 {vr(T+4,4)}, v12, s[36:39], s53 offen offset:32")
    a.label("K3_END")
    a("s_endpgm")


def descriptor(name, vgpr, sgpr=80):
    return f""".amdhsa_kernel {name}
  .amdhsa_next_free_vgpr {vgpr}
  .amdhsa_next_free_sgpr {sgpr}
  .amdhsa_accum_offset {(vgpr+3)//4*4}
  .amdhsa_group_segment_fixed_size 0
  .amdhsa_kernarg_size 104
  .amdhsa_user_sgpr_count 2
  .amdhsa_user_sgpr_kernarg_segment_ptr 1
  .amdhsa_system_sgpr_workgroup_id_x 1
.end_amdhsa_kernel
"""


def main(out):
    a = Asm()
    hdr = f"""; {NAME}: LN + QKV (k1) | MQA attention + routed FFN slice (k2) | out-proj + gate (k3)
; @launch kernel=k1_kernel grid=(392,1,1) block=(256,1,1) lds=65536
; @launch kernel=k2_kernel grid=(256,1,1) block=(576,1,1) lds={K2_LDS}
; @launch kernel=k3_kernel grid=(256,1,1) block=(256,1,1) lds=65536
.amdgcn_target "amdgcn-amd-amdhsa--gfx950"
.text
"""
    k1(a)
    k2(a)
    k3(a)
    txt = hdr + a.text() + '.section .rodata,"a"\n.p2align 6\n' + descriptor("k1_kernel", 160) + \
        ".p2align 6\n" + descriptor("k2_kernel", 152) + ".p2align 6\n" + descriptor("k3_kernel", 208)
    open(out, "w").write(txt)


if __name__ == "__main__":
    main(sys.argv[1] if len(sys.argv) > 1 else f"cdna_kernels/{NAME}.s")
```

```python
import sys, os, struct

NAME = "recurrent_scan__grouped_kv_mqa__moe_arch_mod__prompt"

WS_KMAT = 0x0
WS_VFRAG = 0x10000
WS_STATS = 0x30000
WS_TOPC = 0x38000
WS_SELG = 0x39000
WS_FLAG1 = 0x40000
WS_FLAG2 = 0x48000
WS_FLAGF = 0x50000
WS_SMALL = 0x58000
WS_YPART = 0x60000
WS_O = 0x100000
WS_PROF = 0xA00000

SCALE = 0.25 * 1.4426950408889634
NLOG2E = -1.4426950408889634
PROF = False
SPIN_MAX = 1 << 22

L_X = 0
L_W = 65536
L_KV = 131072
L_XN = 8192
L_KEY = 16640
L_RED = 0
L_Q = 55296
L_MISC = 63488
L_UPD = 63552
L_FX = L_Q


def f2u(x):
    return struct.unpack("<I", struct.pack("<f", x))[0]


class Asm:
    def __init__(self):
        self.l = []
    def __call__(self, s):
        self.l.append("    " + s)
    def label(self, s):
        self.l.append(s + ":")
    def raw(self, s):
        self.l.append(s)
    def c(self, s):
        self.l.append("    ; " + s)
    def text(self):
        return "\n".join(self.l) + "\n"


def srd(a, d, base_lo, base_hi, off, size):
    if off:
        a(f"s_add_u32 s{d}, s{base_lo}, 0x{off:x}")
        a(f"s_addc_u32 s{d+1}, s{base_hi}, 0")
    else:
        a(f"s_mov_b32 s{d}, s{base_lo}")
        a(f"s_mov_b32 s{d+1}, s{base_hi}")
    a(f"s_mov_b32 s{d+2}, 0x{size:x}")
    a(f"s_mov_b32 s{d+3}, 0x00020000")


def stamp(a, i):
    if PROF:
        a("s_memtime s[96:97]")
        a("s_waitcnt lgkmcnt(0)")
        a(f"s_mov_b32 s{80+i}, s96")


def stamp_flush(a):
    if PROF:
        a("s_waitcnt vmcnt(0)")
        stamp(a, 13)
        a("s_memrealtime s[96:97]")
        a("s_waitcnt lgkmcnt(0)")
        a("s_mov_b32 s95, s96")
        a(f"s_add_u32 s96, s14, 0x{WS_PROF:x}")
        a("s_addc_u32 s97, s15, 0")
        a("s_mov_b32 s98, 0x100000")
        a("s_mov_b32 s99, 0x00020000")
        a("s_lshl_b32 s79, s2, 4")
        a("s_add_u32 s79, s79, s78")
        a("s_lshl_b32 s79, s79, 6")
        a("s_mov_b64 exec, 1")
        a("v_mov_b32 v0, 0")
        for q in range(4):
            for i in range(4):
                a(f"v_mov_b32 v{4+i}, s{80+4*q+i}")
            a(f"buffer_store_dwordx4 v[4:7], v0, s[96:99], s79 offen offset:{16*q}")
            a("s_waitcnt vmcnt(0)")


def vr(b, n):
    return f"v[{b}:{b+n-1}]"


DPP_STEPS = ["quad_perm:[1,0,3,2] row_mask:0xf bank_mask:0xf",
             "quad_perm:[2,3,0,1] row_mask:0xf bank_mask:0xf",
             "row_half_mirror row_mask:0xf bank_mask:0xf",
             "row_mirror row_mask:0xf bank_mask:0xf",
             "row_bcast:15 row_mask:0xa bank_mask:0xf",
             "row_bcast:31 row_mask:0xc bank_mask:0xf"]


def wave_reduce_rows(a, regs, op="v_add_f32", nsteps=6):
    for st in DPP_STEPS[:nsteps]:
        if len(regs) == 1:
            a("s_nop 1")
        elif len(regs) == 2:
            a("s_nop 0")
        for r in regs:
            a(f"{op}_dpp v{r}, v{r}, v{r} {st}")


FR = 16
ACC = 48
ACC2 = 64
ONES = 80
Q0, O0, S0, KB, VB, IDX = 16, 32, 96, 128, 136, 8


def gemm_addr(a):
    a("v_lshrrev_b32 v3, 5, v1")
    a("v_lshrrev_b32 v5, 2, v1")
    a("v_and_b32 v5, 3, v5")
    a("v_lshl_add_u32 v6, v3, 3, v5")
    a("v_lshlrev_b32 v6, 7, v6")
    a("v_lshrrev_b32 v7, 1, v5")
    a("s_and_b32 s40, s16, 1")
    a("v_xor_b32 v7, s40, v7")
    a("v_lshl_add_u32 v6, v7, 6, v6")
    a("v_and_b32 v7, 16, v1")
    a("v_lshl_add_u32 v6, v7, 1, v6")
    a("v_and_b32 v7, 1, v1")
    a("v_lshl_add_u32 v6, v7, 4, v6")
    a("v_and_b32 v7, 2, v1")
    a("v_lshl_add_u32 v6, v7, 2, v6")
    a(f"v_add_u32 v6, 0x{L_W:x}, v6")
    a("v_and_b32 v2, 31, v1")
    a("v_lshrrev_b32 v5, 1, v2")
    a("v_and_b32 v5, 7, v5")
    a("v_xor_b32 v5, v5, v3")
    a("v_lshlrev_b32 v2, 7, v2")
    a("v_lshl_add_u32 v2, v5, 4, v2")
    a("s_lshr_b32 s40, s16, 1")
    a("s_lshl_b32 s40, s40, 12")
    a("v_add_u32 v10, s40, v2")
    a("v_xor_b32 v11, 32, v10")
    a("v_xor_b32 v12, 64, v10")
    a("v_xor_b32 v13, 96, v10")


def gemm_loop(a, tag, colsum):
    for i in range(0, 16, 2):
        a(f"v_mov_b64 {vr(ACC+i,2)}, 0")
    if colsum:
        for i in range(0, 16, 2):
            a(f"v_mov_b64 {vr(ACC2+i,2)}, 0")
        for i in range(4):
            a(f"v_mov_b32 v{ONES+i}, 0x3f803f80")
    a("s_mov_b32 s41, 0")
    a.label(f"GL_{tag}")
    a("s_barrier")
    for s in range(4):
        a(f"ds_read_b64_tr_b16 {vr(FR+8*s,2)}, v6 offset:{s*2048}")
        a(f"ds_read_b64_tr_b16 {vr(FR+8*s+2,2)}, v6 offset:{s*2048+512}")
        a(f"ds_read_b128 {vr(FR+8*s+4,4)}, v{10+s}")
    a("v_add_u32 v6, 0x2000, v6")
    for i in range(4):
        a(f"v_add_u32 v{10+i}, 0x2000, v{10+i}")
    a("s_add_u32 s41, s41, 1")
    for s in range(4):
        a(f"s_waitcnt lgkmcnt({3*(3-s)})")
        a(f"v_mfma_f32_32x32x16_bf16 {vr(ACC,16)}, {vr(FR+8*s,4)}, {vr(FR+8*s+4,4)}, {vr(ACC,16)}")
        if colsum:
            a(f"v_mfma_f32_32x32x16_bf16 {vr(ACC2,16)}, {vr(FR+8*s,4)}, {vr(ONES,4)}, {vr(ACC2,16)}")
    a("s_cmp_lt_u32 s41, 8")
    a(f"s_cbranch_scc1 GL_{tag}")


def poll(a, tag, voff, soffs, wide=False, sleep=2):
    a("s_mov_b32 s61, 0")
    a.label(f"POLL_{tag}")
    if wide:
        a(f"buffer_load_dwordx4 v[20:23], v{voff}, s[24:27], s{soffs[0]} offen sc1")
        regs = [20, 23]
    else:
        for i, so in enumerate(soffs):
            a(f"buffer_load_dword v{20+i}, v{voff}, s[24:27], s{so} offen sc1")
        regs = [20 + i for i in range(len(soffs))]
    a("s_add_u32 s61, s61, 1")
    a("s_waitcnt vmcnt(0)")
    for i, r in enumerate(regs):
        if i == 0:
            a(f"v_cmp_ne_u32 vcc, s60, v{r}")
        else:
            a(f"v_cmp_ne_u32 s[62:63], s60, v{r}")
            a("s_or_b64 vcc, vcc, s[62:63]")
    a(f"s_cmp_ge_u32 s61, {SPIN_MAX}")
    a(f"s_cbranch_scc1 POLLX_{tag}")
    a("s_cmp_eq_u64 vcc, 0")
    a(f"s_cbranch_scc1 POLLX_{tag}")
    a(f"s_sleep {sleep}")
    a(f"s_branch POLL_{tag}")
    a.label(f"POLLX_{tag}")


def ln_normalize(a, rows_packed, XU, D, negm_pairs, rinv_pairs, mask_s):
    R = range(len(rows_packed))
    for i in R:
        for j in range(4):
            a(f"v_pk_add_f32 {vr(D+8*i+2*j,2)}, {vr(XU+8*i+2*j,2)}, {vr(negm_pairs[i],2)}")
    for i in R:
        for j in range(4):
            a(f"v_cvt_pk_bf16_f32 v{rows_packed[i]+j}, v{D+8*i+2*j}, v{D+8*i+2*j+1}")
    for i in R:
        for j in range(4):
            a(f"v_lshlrev_b32 v{D+8*i+2*j}, 16, v{rows_packed[i]+j}")
            a(f"v_and_b32 v{D+8*i+2*j+1}, s{mask_s}, v{rows_packed[i]+j}")
    for i in R:
        for j in range(4):
            a(f"v_pk_mul_f32 {vr(D+8*i+2*j,2)}, {vr(D+8*i+2*j,2)}, {vr(rinv_pairs[i],2)}")
    for i in R:
        for j in range(4):
            a(f"v_cvt_pk_bf16_f32 v{rows_packed[i]+j}, v{D+8*i+2*j}, v{D+8*i+2*j+1}")


PG, PXF = 96, 112
PV = 144


def p3_pre(a, update):
    EX, T, ST, PR = 48, 56, 72, 76
    G, XF = PG, PXF
    a(f"v_lshrrev_b32 v{PV}, 2, v1")
    a(f"v_and_b32 v{PV+1}, 3, v1")
    a(f"v_lshlrev_b32 v{PV+2}, 10, v{PV}")
    a(f"v_lshl_add_u32 v{PV+2}, v{PV+1}, 4, v{PV+2}")
    a(f"buffer_load_dwordx4 {vr(EX,4)}, v{PV+2}, s[20:23], s65 offen")
    a(f"buffer_load_dwordx4 {vr(EX+4,4)}, v{PV+2}, s[20:23], s66 offen")
    a(f"v_lshlrev_b32 v{T}, 4, v{PV}")
    a("s_lshl_b32 s40, s64, 4")
    a(f"s_add_u32 s40, s40, {WS_STATS}")
    a(f"buffer_load_dwordx2 {vr(ST,2)}, v{T}, s[24:27], s40 offen sc1")
    a(f"buffer_load_dwordx2 {vr(ST+2,2)}, v{T}, s[24:27], s40 offen offset:256 sc1")
    a("s_waitcnt vmcnt(0)")
    for i in range(8):
        a(f"v_lshlrev_b32 v{XF+2*i}, 16, v{EX+i}")
        a(f"v_and_b32 v{XF+2*i+1}, s42, v{EX+i}")
    for j in range(2):
        a(f"v_sub_f32 v{PR+4*j}, 0, v{ST+2*j}")
        a(f"v_sub_f32 v{PR+1+4*j}, 0, v{ST+2*j}")
        a(f"v_mov_b32 v{PR+2+4*j}, v{ST+1+2*j}")
        a(f"v_mov_b32 v{PR+3+4*j}, v{ST+1+2*j}")
    ln_normalize(a, [EX, EX + 4], XF, G, [PR, PR + 4], [PR + 2, PR + 6], 42)
    for i in range(8):
        a(f"v_lshlrev_b32 v{G+2*i}, 16, v{EX+i}")
        a(f"v_and_b32 v{G+2*i+1}, s42, v{EX+i}")
    if update:
        a("s_and_b32 s59, s16, 1")
        a("s_lshl_b32 s59, s59, 7")
        a(f"v_lshlrev_b32 v{ST}, 5, v{PV+1}")
        a(f"v_add_u32 v{ST}, s59, v{ST}")
        for t in range(2):
            a(f"s_and_b32 s58, s{56+t}, 0xffff")
            a("s_sub_u32 s58, 2047, s58")
            a("s_sub_u32 s58, s58, s64")
            a("s_cmp_ge_u32 s58, 32")
            a(f"s_cbranch_scc1 P3_NOUPD{t}")
            a(f"ds_read_b128 {vr(T,4)}, v{ST} offset:{L_UPD+256*t}")
            a(f"ds_read_b128 {vr(T+4,4)}, v{ST} offset:{L_UPD+256*t+16}")
            a("s_waitcnt lgkmcnt(0)")
            for j in range(2):
                a(f"v_add_u32 v{ST+1}, {16*j}, v{PV}")
                a(f"v_cmp_eq_u32 vcc, s58, v{ST+1}")
                for i in range(8):
                    a(f"v_add_f32 v{T+8+i}, v{T+i}, v{G+8*j+i}")
                for i in range(4):
                    a(f"v_cvt_pk_bf16_f32 v{T+8+i}, v{T+8+2*i}, v{T+9+2*i}")
                for i in range(3, -1, -1):
                    a(f"v_and_b32 v{T+9+2*i}, s42, v{T+8+i}")
                    a(f"v_lshlrev_b32 v{T+8+2*i}, 16, v{T+8+i}")
                for i in range(8):
                    a(f"v_cndmask_b32 v{G+8*j+i}, v{G+8*j+i}, v{T+8+i}, vcc")
            a.label(f"P3_NOUPD{t}")
    for i in range(16):
        a(f"v_mul_f32 v{T+i}, 0x{f2u(NLOG2E):08x}, v{G+i}")
    for i in range(16):
        a(f"v_exp_f32 v{T+i}, v{T+i}")
    for i in range(16):
        a(f"v_add_f32 v{T+i}, 1.0, v{T+i}")
    for i in range(16):
        a(f"v_rcp_f32 v{T+i}, v{T+i}")
    for i in range(0, 16, 2):
        a(f"v_pk_mul_f32 {vr(G+i,2)}, {vr(G+i,2)}, {vr(T+i,2)}")
    for i in range(8):
        a(f"v_cvt_pk_bf16_f32 v{T+i}, v{G+2*i}, v{G+2*i+1}")
    for i in range(8):
        a(f"v_lshlrev_b32 v{G+2*i}, 16, v{T+i}")
        a(f"v_and_b32 v{G+2*i+1}, s42, v{T+i}")


def kernel(a):
    K = NAME + "_kernel"
    a.raw(f".globl {K}")
    a.raw(".p2align 8")
    a.raw(f".type {K},@function")
    a.label(K)
    a("s_cmp_ge_u32 s2, 256")
    a("s_cbranch_scc1 L_END")
    if PROF:
        a("s_memrealtime s[96:97]")
        a("s_waitcnt lgkmcnt(0)")
        a("s_mov_b32 s94, s96")
    stamp(a, 0)
    a("s_load_dwordx8 s[4:11], s[0:1], 0")
    a("s_load_dwordx2 s[12:13], s[0:1], 32")
    a("s_load_dwordx2 s[14:15], s[0:1], 96")
    a("s_load_dwordx2 s[28:29], s[0:1], 48")
    a("v_and_b32 v1, 63, v0")
    a("v_lshrrev_b32 v2, 6, v0")
    a("s_nop 0")
    a("v_readfirstlane_b32 s78, v2")
    a("s_and_b32 s17, s2, 7")
    a("s_lshr_b32 s18, s2, 3")
    a("s_and_b32 s19, s18, 3")
    a("s_lshl_b32 s17, s17, 2")
    a("s_add_u32 s17, s17, s19")
    a("s_lshl_b32 s17, s17, 6")
    a("s_lshr_b32 s19, s18, 2")
    a("s_lshl_b32 s18, s19, 6")
    a("s_and_b32 s16, s78, 3")
    a("s_mov_b32 s42, 0xffff0000")
    a("v_lshlrev_b32 v5, 4, v1")
    a("s_waitcnt lgkmcnt(0)")
    srd(a, 20, 4, 5, 0, 2048 * 1024)
    srd(a, 24, 14, 15, 0, WS_SMALL)
    a("s_cmp_ge_u32 s78, 8")
    a("s_cbranch_scc1 R_AUX")
    a("s_cmp_ge_u32 s78, 4")
    a("s_cbranch_scc1 R_GEMM")

    a("s_lshl_b32 s43, s19, 3")
    a("s_add_u32 s43, s43, s17")
    a("s_lshl_b32 s44, s16, 1")
    a("s_add_u32 s44, s44, s43")
    a("s_lshl_b32 s45, s44, 10")
    NR = 2
    R = range(NR)
    for i in R:
        a(f"buffer_load_dwordx4 {vr(8+4*i,4)}, v5, s[20:23], s45 offen offset:{1024*i}")
    srd(a, 32, 28, 29, 0, 1024)
    a(f"buffer_load_dwordx4 {vr(24,4)}, v5, s[32:35], 0 offen")
    XU, D = 32, 48
    stamp(a, 1)
    for i in R:
        a(f"s_waitcnt vmcnt({NR - i})")
        for j in range(4):
            a(f"v_lshlrev_b32 v{XU+8*i+2*j}, 16, v{8+4*i+j}")
            a(f"v_and_b32 v{XU+8*i+2*j+1}, s42, v{8+4*i+j}")
    for i in R:
        a(f"v_pk_add_f32 {vr(72+2*i,2)}, {vr(XU+8*i,2)}, {vr(XU+8*i+2,2)}")
        a(f"v_pk_add_f32 {vr(80+2*i,2)}, {vr(XU+8*i+4,2)}, {vr(XU+8*i+6,2)}")
    for i in R:
        a(f"v_pk_add_f32 {vr(72+2*i,2)}, {vr(72+2*i,2)}, {vr(80+2*i,2)}")
    for i in R:
        a(f"v_add_f32 v{64+i}, v{72+2*i}, v{73+2*i}")
    wave_reduce_rows(a, [64 + i for i in R])
    a("s_nop 0")
    for i in R:
        a(f"v_readlane_b32 s{48+i}, v{64+i}, 63")
    a("v_mov_b32 v68, 0xbb000000")
    a("s_barrier")
    for i in R:
        a(f"v_mul_f32 v{72+2*i}, s{48+i}, v68")
        a(f"v_mul_f32 v{73+2*i}, s{48+i}, v68")
    for i in R:
        for j in range(4):
            a(f"v_pk_add_f32 {vr(D+8*i+2*j,2)}, {vr(XU+8*i+2*j,2)}, {vr(72+2*i,2)}")
    for i in R:
        a(f"v_pk_mul_f32 {vr(80+2*i,2)}, {vr(D+8*i,2)}, {vr(D+8*i,2)}")
    for j in range(1, 4):
        for i in R:
            a(f"v_pk_fma_f32 {vr(80+2*i,2)}, {vr(D+8*i+2*j,2)}, {vr(D+8*i+2*j,2)}, {vr(80+2*i,2)}")
    for i in R:
        a(f"v_add_f32 v{64+i}, v{80+2*i}, v{81+2*i}")
    wave_reduce_rows(a, [64 + i for i in R])
    a("s_nop 0")
    for i in R:
        a(f"v_readlane_b32 s{52+i}, v{64+i}, 63")
    a("s_barrier")
    for i in R:
        a(f"v_cvt_pk_bf16_f32 v{72+2*i}, v{72+2*i}, v{72+2*i}")
    for i in R:
        a(f"v_and_b32 v{73+2*i}, s42, v{72+2*i}")
        a(f"v_lshlrev_b32 v{72+2*i}, 16, v{72+2*i}")
    for i in R:
        a(f"v_mul_f32 v{64+i}, s{52+i}, -v68")
    for op in ("add", "sqrt", "rcp"):
        a("v_cvt_pk_bf16_f32 v66, v64, v65")
        a("v_lshlrev_b32 v64, 16, v66")
        a("v_and_b32 v65, s42, v66")
        for i in R:
            if op == "add":
                a(f"v_add_f32 v{64+i}, 0x{f2u(1e-5):08x}, v{64+i}")
            elif op == "sqrt":
                a(f"v_sqrt_f32 v{64+i}, v{64+i}")
            else:
                a(f"v_rcp_f32 v{80+2*i}, v{64+i}")
        if op == "sqrt":
            a("s_nop 0")
    a("s_barrier")
    for i in R:
        a(f"v_mov_b32 v{81+2*i}, v{80+2*i}")
    ln_normalize(a, [8, 12], XU, D, [72, 74], [80, 82], 42)
    a("s_barrier")
    a(f"s_mul_i32 s40, s16, {NR*1040}")
    a(f"s_add_u32 s40, s40, {L_XN}")
    a("v_add_u32 v3, s40, v5")
    for i in R:
        a(f"ds_write_b128 v3, {vr(8+4*i,4)} offset:{1040*i}")
    a("s_waitcnt vmcnt(0)")
    for i in R:
        a(f"v_mov_b32 v{64+i}, 0")
    for j in range(4):
        for i in R:
            a(f"v_dot2c_f32_bf16 v{64+i}, v{8+4*i+j}, v{24+j}")
    for i in R:
        a(f"v_sub_f32 v{D+4*i}, 0, v{72+2*i}")
        a(f"v_mov_b32 v{D+4*i+1}, v{80+2*i}")
        a(f"v_mul_f32 v{D+4*i+2}, 0x{f2u(SCALE):08x}, v{80+2*i}")
        a(f"v_mul_f32 v{D+4*i+3}, v{72+2*i}, v{D+4*i+2}")
    wave_reduce_rows(a, [64 + i for i in R])
    a("v_cvt_pk_bf16_f32 v66, v64, v65")
    a("v_lshlrev_b32 v64, 16, v66")
    a("v_and_b32 v65, s42, v66")
    for i in R:
        a(f"v_ashrrev_i32 v{68+i}, 31, v{64+i}")
    for i in R:
        a(f"v_or_b32 v{68+i}, 0x80000000, v{68+i}")
    for i in R:
        a(f"v_xor_b32 v{64+i}, v{64+i}, v{68+i}")
        a(f"s_sub_u32 s{48+i}, {2047-i}, s44")
    for i in R:
        a(f"v_and_b32 v{64+i}, s42, v{64+i}")
    for i in R:
        a(f"v_or_b32 v{64+i}, s{48+i}, v{64+i}")
    a("s_lshl_b32 s40, s16, 3")
    a(f"s_add_u32 s40, s40, {L_KEY}")
    a("v_mov_b32 v4, s40")
    a("v_cmp_eq_u32 vcc, 63, v1")
    a("s_and_saveexec_b64 s[56:57], vcc")
    a("s_lshl_b32 s40, s44, 4")
    a(f"s_add_u32 s40, s40, {WS_STATS}")
    a("v_mov_b32 v3, 0")
    for i in R:
        a(f"buffer_store_dwordx4 {vr(D+4*i,4)}, v3, s[24:27], s40 offen offset:{16*i} sc1")
    a("ds_write_b64 v4, v[64:65]")
    a("s_mov_b64 exec, s[56:57]")
    a("v_and_b32 v3, 15, v1")
    a("v_lshrrev_b32 v4, 4, v1")
    a("s_waitcnt lgkmcnt(0)")
    stamp(a, 2)
    a("s_barrier")
    a("s_cmp_ge_u32 s16, 2")
    a("s_cbranch_scc1 LN_MISC")
    a("v_and_b32 v6, 7, v1")
    a("v_mul_u32_u24 v6, 1040, v6")
    a("v_lshl_add_u32 v6, v4, 4, v6")
    a(f"v_add_u32 v6, {L_XN}, v6")
    a("v_lshlrev_b32 v7, 8, v4")
    a("v_lshl_add_u32 v7, v3, 3, v7")
    a("s_lshl_b32 s40, s16, 14")
    a(f"s_add_u32 s40, s40, {L_KV}")
    a("v_add_u32 v7, s40, v7")
    a("s_cmp_eq_u32 s16, 1")
    a("s_cbranch_scc1 LN_V")
    for part in ("K", "V"):
        if part == "V":
            a.label("LN_V")
        for half in range(2):
            for s in range(8 * half, 8 * half + 8):
                a(f"ds_read_b128 {vr(32+4*(s&7),4)}, v6 offset:{64*s}")
                a(f"ds_read_b64_tr_b16 {vr(64+4*(s&7),2)}, v7 offset:{1024*s}")
                a(f"ds_read_b64_tr_b16 {vr(64+4*(s&7)+2,2)}, v7 offset:{1024*s+128}")
            a("s_barrier")
            for s in range(8 * half, 8 * half + 8):
                k = s & 7
                if k in (0, 4):
                    a(f"s_waitcnt lgkmcnt({12 if k == 0 else 0})")
                cc = "0" if s == 0 else vr(8, 4)
                if part == "K":
                    a(f"v_mfma_f32_16x16x32_bf16 {vr(8,4)}, {vr(64+4*k,4)}, {vr(32+4*k,4)}, {cc}")
                else:
                    a(f"v_mfma_f32_16x16x32_bf16 {vr(8,4)}, {vr(32+4*k,4)}, {vr(64+4*k,4)}, {cc}")
            a("s_nop 7")
        if part == "K":
            a("v_lshrrev_b32 v7, 1, v4")
            a("v_lshl_add_u32 v7, v7, 5, v3")
            a("v_lshlrev_b32 v7, 4, v7")
            a("v_and_b32 v14, 1, v4")
            a("v_lshl_add_u32 v7, v14, 3, v7")
            a("s_lshr_b32 s40, s43, 5")
            a("s_lshl_b32 s40, s40, 10")
            a("s_and_b32 s41, s43, 31")
            a("s_lshl_b32 s41, s41, 4")
            a("s_add_u32 s40, s40, s41")
            a("v_cmp_gt_u32 vcc, 8, v3")
        else:
            a("v_and_b32 v7, 3, v3")
            a("v_and_b32 v14, 4, v3")
            a("v_lshl_add_u32 v7, v14, 1, v7")
            a("v_lshrrev_b32 v14, 3, v3")
            a("v_lshl_add_u32 v7, v14, 2, v7")
            a("v_lshlrev_b32 v7, 4, v7")
            a("v_lshl_add_u32 v7, v4, 3, v7")
            a("s_lshr_b32 s40, s43, 4")
            a("s_lshl_b32 s40, s40, 10")
            a("s_and_b32 s41, s43, 8")
            a("s_lshl_b32 s41, s41, 6")
            a("s_add_u32 s40, s40, s41")
            a(f"s_add_u32 s40, s40, {WS_VFRAG}")
            a("v_cmp_gt_u32 vcc, 32, v1")
        a("v_cvt_pk_bf16_f32 v12, v8, v9")
        a("v_cvt_pk_bf16_f32 v13, v10, v11")
        a("s_and_saveexec_b64 s[56:57], vcc")
        a("buffer_store_dwordx2 v[12:13], v7, s[24:27], s40 offen sc1")
        a("s_mov_b64 exec, s[56:57]")
        a("s_branch LN_DONE")
    a.label("LN_MISC")
    a("s_cmp_eq_u32 s16, 2")
    a("s_cbranch_scc1 LN_TOP")
    a("v_add_u32 v6, 16, v1")
    a("v_lshlrev_b32 v6, 4, v6")
    a("v_and_b32 v7, 11, v1")
    a("v_mov_b32 v8, 0x3f803f80")
    a("v_cmp_eq_u32 vcc, 0, v7")
    a("s_lshr_b32 s40, s43, 4")
    a("s_lshl_b32 s40, s40, 10")
    a("v_cndmask_b32 v8, 0, v8, vcc")
    a("v_mov_b32 v9, v8")
    a("v_mov_b32 v10, v8")
    a("v_mov_b32 v11, v8")
    a("s_and_b32 s41, s43, 8")
    a("s_lshl_b32 s41, s41, 6")
    a("s_add_u32 s40, s40, s41")
    a(f"s_add_u32 s40, s40, {WS_VFRAG}")
    a("v_cmp_gt_u32 vcc, 16, v1")
    a("s_and_saveexec_b64 s[56:57], vcc")
    a("buffer_store_dwordx4 v[8:11], v6, s[24:27], s40 offen sc1")
    a("s_mov_b64 exec, s[56:57]")
    a("s_branch LN_MISC2")
    a.label("LN_TOP")
    a("v_and_b32 v3, 7, v1")
    a("v_lshlrev_b32 v3, 2, v3")
    a(f"ds_read_b32 v8, v3 offset:{L_KEY}")
    a("s_waitcnt lgkmcnt(0)")
    a("v_mov_b32 v10, v8")
    wave_reduce_rows(a, [10], op="v_max_u32", nsteps=3)
    a("v_cmp_eq_u32 vcc, v8, v10")
    a("s_nop 1")
    a("v_cndmask_b32 v11, v8, 0, vcc")
    wave_reduce_rows(a, [11], op="v_max_u32", nsteps=3)
    a("s_lshl_b32 s40, s2, 3")
    a(f"s_add_u32 s40, s40, {WS_TOPC}")
    a("v_mov_b32 v3, 0")
    a("v_cmp_eq_u32 vcc, 0, v1")
    a("s_and_saveexec_b64 s[56:57], vcc")
    a("buffer_store_dwordx2 v[10:11], v3, s[24:27], s40 offen sc1")
    a("s_mov_b64 exec, s[56:57]")
    a.label("LN_MISC2")
    a("s_barrier")
    a("s_barrier")
    a.label("LN_DONE")
    a("s_barrier")
    a("s_waitcnt vmcnt(0)")
    stamp(a, 3)
    a("s_barrier")
    a("s_barrier")
    stamp(a, 4)
    a("s_mov_b32 s46, 0")
    a("s_branch ATT")

    a.label("R_GEMM")
    gemm_addr(a)
    stamp(a, 1)
    gemm_loop(a, "P1", True)
    stamp(a, 3)
    a("s_barrier")
    a("s_lshr_b32 s40, s16, 1")
    a("s_lshl_b32 s40, s40, 5")
    a("s_add_u32 s40, s40, s17")
    a("s_lshl_b32 s40, s40, 4")
    a(f"s_add_u32 s40, s40, {WS_STATS + 8}")
    a("v_and_b32 v2, 31, v1")
    a("v_lshlrev_b32 v2, 4, v2")
    a("s_lshl_b32 s41, s16, 11")
    a(f"s_add_u32 s41, s41, {L_Q}")
    a("v_lshlrev_b32 v5, 4, v1")
    a("v_add_u32 v3, s41, v5")
    a("s_barrier")
    stamp(a, 4)
    a("buffer_load_dwordx2 v[6:7], v2, s[24:27], s40 offen sc1")
    a("s_waitcnt vmcnt(0)")
    for i in range(16):
        a(f"v_mul_f32 v{ACC+i}, v{ACC+i}, v6")
    for i in range(16):
        a(f"v_fmac_f32 v{ACC+i}, v{ACC2+i}, v7")
    for i in range(8):
        a(f"v_cvt_pk_bf16_f32 v{FR+i}, v{ACC+2*i}, v{ACC+2*i+1}")
    a(f"ds_write_b128 v3, {vr(FR,4)}")
    a(f"ds_write_b128 v3, {vr(FR+4,4)} offset:1024")
    a("s_mov_b32 s46, 1")

    a.label("ATT")
    a("s_lshl_b32 s44, s16, 14")
    a("s_lshl_b32 s45, s16, 15")
    a(f"s_add_u32 s45, s45, {WS_VFRAG}")
    a(f"buffer_load_dwordx4 {vr(KB,4)}, v5, s[24:27], s44 offen")
    a(f"buffer_load_dwordx4 {vr(VB,4)}, v5, s[24:27], s45 offen")
    a(f"buffer_load_dwordx4 {vr(VB+4,4)}, v5, s[24:27], s45 offen offset:1024")
    a(f"v_mov_b32 v{IDX}, 0xdddddddd")
    for i in range(0, 64, 2):
        a(f"v_mov_b64 {vr(O0+i,2)}, 0")
    for i in range(0, 8, 2):
        a(f"v_mov_b64 {vr(VB+8+i,2)}, 0")
    for i in range(0, 8, 2):
        a(f"v_mov_b64 {vr(S0+24+i,2)}, 0")
    a("s_lshl_b32 s40, s46, 12")
    a(f"s_add_u32 s40, s40, {L_Q}")
    for i in range(4):
        a(f"s_add_u32 s41, s16, {i}")
        a("s_and_b32 s41, s41, 3")
        a("s_lshl_b32 s41, s41, 10")
        a("s_add_u32 s41, s41, s40")
        a(f"v_add_u32 v{10+i}, s41, v5")
    a("s_waitcnt lgkmcnt(0)")
    a("s_barrier")
    for i in range(4):
        a(f"ds_read_b128 {vr(Q0+4*i,4)}, v{10+i}")
    a("s_waitcnt vmcnt(2) lgkmcnt(0)")
    a("s_barrier")
    a(f"v_mfma_f32_32x32x16_bf16 {vr(S0,16)}, {vr(KB,4)}, {vr(Q0,4)}, 0")
    a("s_mov_b32 s47, 0")
    stamp(a, 5)
    a("s_nop 15")
    a.raw(".p2align 6")
    a.label("ATT_LOOP")
    for X in range(8):
        t = X >> 2
        c = X & 3
        Sx = S0 + 16 * (X & 1)
        Sp = S0 + 16 * ((X + 1) & 1)
        cp = (c - 1) & 3
        tp = ((X - 1) >> 2) & 1
        cn = (c + 1) & 3
        tn = ((X + 1) >> 2) & 1
        for e in range(16):
            a(f"v_exp_f32 v{Sx+e}, v{Sx+e}")
            if e == 1:
                a(f"v_smfmac_f32_32x32x32_bf16 {vr(O0+16*cp,16)}, {vr(VB+8*tp+4,4)}, {vr(Sp+8,8)}, v{IDX}")
                if c == 0:
                    a("s_add_u32 s44, s44, 1024")
                    a("s_add_u32 s45, s45, 2048")
                    a(f"buffer_load_dwordx4 {vr(KB+4*(t^1),4)}, v5, s[24:27], s44 offen")
                    a(f"buffer_load_dwordx4 {vr(VB+8*(t^1),4)}, v5, s[24:27], s45 offen")
                    a(f"buffer_load_dwordx4 {vr(VB+8*(t^1)+4,4)}, v5, s[24:27], s45 offen offset:1024")
            if e == 4:
                if c == 3:
                    a("s_waitcnt vmcnt(2)")
                a(f"v_mfma_f32_32x32x16_bf16 {vr(Sp,16)}, {vr(KB+4*tn,4)}, {vr(Q0+4*cn,4)}, 0")
            if e == 14:
                if c == 0:
                    a("s_waitcnt vmcnt(3)")
                a(f"v_smfmac_f32_32x32x32_bf16 {vr(O0+16*c,16)}, {vr(VB+8*t,4)}, {vr(Sx,8)}, v{IDX}")
    a("s_add_u32 s47, s47, 1")
    a("s_cmp_lt_u32 s47, 8")
    a("s_cbranch_scc1 ATT_LOOP")
    stamp(a, 6)
    a("s_nop 1")
    a(f"v_smfmac_f32_32x32x32_bf16 {vr(O0+48,16)}, {vr(VB+8+4,4)}, {vr(S0+16+8,8)}, v{IDX}")
    a("s_mul_i32 s40, s46, 27648")
    a("v_lshlrev_b32 v9, 2, v1")
    for i in range(1, 4):
        a(f"s_add_u32 s41, s16, {i}")
        a("s_and_b32 s41, s41, 3")
        a("s_mul_i32 s41, s41, 6912")
        a("s_add_u32 s41, s41, s40")
        a(f"v_add_u32 v{9+i}, s41, v5")
        a(f"v_add_u32 v{12+i}, s41, v9")
    a("s_mul_i32 s41, s16, 6912")
    a("s_add_u32 s41, s41, s40")
    a("v_add_u32 v6, s41, v5")
    a("v_add_u32 v7, s41, v9")
    for i in range(1, 4):
        a(f"ds_write_b128 v{9+i}, {vr(O0+16*i,4)} offset:{2304*(i-1)}")
        a(f"ds_write_b128 v{9+i}, {vr(O0+16*i+4,4)} offset:{2304*(i-1)+1024}")
        a(f"ds_write_b32 v{12+i}, v{O0+16*i+8} offset:{2304*(i-1)+2048}")
    srd(a, 32, 14, 15, WS_O, 2048 * 1024)
    a("s_mov_b32 s67, 0")
    a("s_waitcnt lgkmcnt(0)")
    a("s_cmp_eq_u32 s46, 1")
    a("s_cbranch_scc1 ATT_BR")
    a("s_load_dwordx2 s[68:69], s[0:1], 80")
    a("s_lshr_b32 s64, s16, 1")
    a("s_lshl_b32 s64, s64, 5")
    a("s_add_u32 s64, s64, s17")
    a("s_and_b32 s40, s16, 1")
    a("s_lshl_b32 s40, s40, 5")
    a("s_add_u32 s40, s40, s18")
    a("s_lshl_b32 s65, s64, 10")
    a("s_lshl_b32 s40, s40, 1")
    a("s_add_u32 s65, s65, s40")
    a("s_add_u32 s66, s65, 16384")
    p3_pre(a, False)
    a("s_waitcnt lgkmcnt(0)")
    a.label("ATT_BR")
    a("s_barrier")
    stamp(a, 7)
    Rr = O0
    for i in range(1, 4):
        a(f"ds_read_b128 {vr(Rr+16*i,4)}, v6 offset:{2304*(i-1)}")
        a(f"ds_read_b128 {vr(Rr+16*i+4,4)}, v6 offset:{2304*(i-1)+1024}")
        a(f"ds_read_b32 v{Rr+16*i+8}, v7 offset:{2304*(i-1)+2048}")
    a("s_mov_b32 s48, 0x7f000000")
    a("s_mov_b32 s49, 0x1f800000")
    a("s_mov_b32 s50, 0x5f800000")
    a("v_and_b32 v2, 31, v1")
    a("v_lshrrev_b32 v3, 5, v1")
    a("v_mul_u32_u24 v4, 144, v2")
    a("v_lshl_add_u32 v4, v3, 4, v4")
    a("s_mul_i32 s40, s46, 4608")
    a("s_lshl_b32 s41, s16, 5")
    a("s_add_u32 s40, s40, s41")
    a(f"s_add_u32 s40, s40, {L_KV}")
    a("v_add_u32 v4, s40, v4")
    a("v_lshrrev_b32 v2, 3, v1")
    a("v_and_b32 v3, 7, v1")
    a("v_mul_u32_u24 v15, 144, v2")
    a("v_lshl_add_u32 v15, v3, 4, v15")
    a("s_mul_i32 s40, s78, 1152")
    a(f"s_add_u32 s40, s40, {L_KV}")
    a("v_add_u32 v15, s40, v15")
    a("v_lshlrev_b32 v2, 10, v2")
    a("v_lshl_add_u32 v2, v3, 4, v2")
    a("s_lshl_b32 s40, s78, 3")
    a("s_add_u32 s40, s40, s17")
    a("s_lshl_b32 s40, s40, 10")
    a("s_lshl_b32 s41, s18, 1")
    a("s_add_u32 s51, s40, s41")
    for i in range(1, 4):
        a(f"s_waitcnt lgkmcnt({3*(3-i)})")
        for j in range(0, 8, 2):
            a(f"v_pk_add_f32 {vr(Rr+j,2)}, {vr(Rr+j,2)}, {vr(Rr+16*i+j,2)}")
        a(f"v_add_f32 v{Rr+8}, v{Rr+8}, v{Rr+16*i+8}")
    a(f"v_add_f32 v11, abs(v{Rr}), abs(v{Rr+1})")
    a(f"v_add_f32 v12, abs(v{Rr+2}), abs(v{Rr+3})")
    a(f"v_add_f32 v13, abs(v{Rr+4}), abs(v{Rr+5})")
    a(f"v_add_f32 v14, abs(v{Rr+6}), abs(v{Rr+7})")
    a("v_add_f32 v11, v11, v12")
    a("v_add_f32 v13, v13, v14")
    a("v_add_f32 v11, v11, v13")
    a("v_cmp_gt_f32 s[52:53], s48, v11")
    a(f"v_cmp_le_f32 s[54:55], s49, v{Rr+8}")
    a(f"v_cmp_ge_f32 vcc, s50, v{Rr+8}")
    a("s_and_b64 s[52:53], s[52:53], s[54:55]")
    a("s_and_b64 s[52:53], s[52:53], vcc")
    a("s_cmp_eq_u64 s[52:53], -1")
    a("s_cbranch_scc0 ATT_SLOW")
    a.label("ATT_FIN")
    a(f"v_rcp_f32 v11, v{Rr+8}")
    a("s_nop 0")
    for i in range(8):
        a(f"v_mul_f32 v{Rr+i}, v{Rr+i}, v11")
    for i in range(4):
        a(f"v_cvt_pk_bf16_f32 v{Rr+12+i}, v{Rr+2*i}, v{Rr+2*i+1}")
    a(f"ds_write_b128 v4, {vr(Rr+12,4)}")
    a("s_waitcnt lgkmcnt(0)")
    a("s_barrier")
    a(f"ds_read_b128 {vr(Rr+12,4)}, v15")
    a("s_waitcnt lgkmcnt(0)")
    a(f"buffer_store_dwordx4 {vr(Rr+12,4)}, v2, s[32:35], s51 offen sc1")
    a("s_waitcnt vmcnt(0)")
    stamp(a, 8)
    a("s_barrier")
    a("s_cmp_eq_u32 s46, 0")
    a("s_cbranch_scc1 P3")
    stamp_flush(a)
    a.label("L_END")
    a("s_endpgm")

    a.label("ATT_SLOW")
    a("s_mov_b32 s67, 1")
    a("v_mov_b32 v11, 0xff7fffff")
    a("s_mov_b32 s44, 0")
    a.label("ATT_SLOW1")
    a(f"buffer_load_dwordx4 {vr(KB,4)}, v5, s[24:27], s44 offen")
    a("s_waitcnt vmcnt(0)")
    a(f"v_mfma_f32_32x32x16_bf16 {vr(S0,16)}, {vr(KB,4)}, {vr(Q0,4)}, 0")
    a("s_nop 15")
    a("s_nop 3")
    for i in range(0, 16, 2):
        a(f"v_max3_f32 v11, v{S0+i}, v{S0+i+1}, v11")
    a("s_add_u32 s44, s44, 1024")
    a("s_cmp_lt_u32 s44, 0x10000")
    a("s_cbranch_scc1 ATT_SLOW1")
    a("v_mov_b32 v9, v11")
    a("s_nop 1")
    a("v_permlane32_swap_b32 v11, v9")
    a("s_nop 1")
    a("v_max_f32 v11, v11, v9")
    for i in range(16):
        a(f"v_sub_f32 v{S0+16+i}, 0, v11")
    for i in range(0, 16, 2):
        a(f"v_mov_b64 {vr(Rr+i,2)}, 0")
    a("s_mov_b32 s44, 0")
    a(f"s_mov_b32 s45, {WS_VFRAG}")
    a.label("ATT_SLOW2")
    a(f"buffer_load_dwordx4 {vr(KB,4)}, v5, s[24:27], s44 offen")
    a(f"buffer_load_dwordx4 {vr(VB,4)}, v5, s[24:27], s45 offen")
    a(f"buffer_load_dwordx4 {vr(VB+4,4)}, v5, s[24:27], s45 offen offset:1024")
    a("s_waitcnt vmcnt(0)")
    a(f"v_mfma_f32_32x32x16_bf16 {vr(S0,16)}, {vr(KB,4)}, {vr(Q0,4)}, {vr(S0+16,16)}")
    a("s_nop 15")
    a("s_nop 3")
    for e in range(16):
        a(f"v_exp_f32 v{S0+e}, v{S0+e}")
    a("s_nop 1")
    a(f"v_smfmac_f32_32x32x32_bf16 {vr(Rr,16)}, {vr(VB,4)}, {vr(S0,8)}, v{IDX}")
    a(f"v_smfmac_f32_32x32x32_bf16 {vr(Rr,16)}, {vr(VB+4,4)}, {vr(S0+8,8)}, v{IDX}")
    a("s_nop 15")
    a("s_nop 3")
    a("s_add_u32 s44, s44, 1024")
    a("s_add_u32 s45, s45, 2048")
    a("s_cmp_lt_u32 s44, 0x10000")
    a("s_cbranch_scc1 ATT_SLOW2")
    a("s_branch ATT_FIN")

    a.label("P3")
    a("v_mov_b32 v2, 0")
    a(f"ds_read_b64 v[2:3], v2 offset:{L_MISC+8}")
    a("s_mov_b32 s70, 0x200000")
    a("s_mov_b32 s71, 0x00020000")
    a("s_waitcnt lgkmcnt(0)")
    a("v_readfirstlane_b32 s56, v2")
    a("v_readfirstlane_b32 s57, v3")
    for t in range(2):
        a(f"s_and_b32 s58, s{56+t}, 0xffff")
        a("s_sub_u32 s58, 2047, s58")
        a("s_sub_u32 s58, s58, s64")
        a("s_cmp_lt_u32 s58, 32")
        a("s_cselect_b32 s67, 1, s67")
    a("s_cmp_lg_u32 s67, 0")
    a("s_cbranch_scc1 P3_REDO")
    a.label("P3_GO")
    gemm_addr(a)
    a("s_mul_i32 s40, s16, 4352")
    a("v_lshlrev_b32 v14, 4, v1")
    a("v_add_u32 v14, s40, v14")
    a(f"v_lshrrev_b32 v15, 1, v{PV+1}")
    a("v_mul_u32_u24 v15, 2176, v15")
    a(f"v_and_b32 v2, 1, v{PV+1}")
    a("v_lshl_add_u32 v15, v2, 9, v15")
    a(f"v_lshl_add_u32 v15, v{PV}, 4, v15")
    a("v_add_u32 v15, s40, v15")
    for i in range(0, 16, 2):
        a(f"v_mov_b64 {vr(ACC+i,2)}, 0")
    a("s_mov_b32 s41, 0")
    stamp(a, 9)
    a("s_barrier")
    stamp(a, 10)
    FB = [16, 64]

    def rd(c, buf):
        for sx in range(4):
            a(f"ds_read_b64_tr_b16 {vr(FB[buf]+8*sx,2)}, v6 offset:{c*8192+sx*2048}")
            a(f"ds_read_b64_tr_b16 {vr(FB[buf]+8*sx+2,2)}, v6 offset:{c*8192+sx*2048+512}")
            a(f"ds_read_b128 {vr(FB[buf]+8*sx+4,4)}, v{10+sx} offset:{c*8192}")

    def mm(buf):
        for sx in range(4):
            a(f"v_mfma_f32_32x32x16_bf16 {vr(ACC,16)}, {vr(FB[buf]+8*sx,4)}, {vr(FB[buf]+8*sx+4,4)}, {vr(ACC,16)}")

    a.label("P3_LOOP")
    a("s_barrier")
    rd(0, 0)
    rd(1, 1)
    a("s_waitcnt lgkmcnt(12)")
    mm(0)
    rd(2, 0)
    a("s_waitcnt lgkmcnt(12)")
    mm(1)
    rd(3, 1)
    a("v_add_u32 v6, 0x8000, v6")
    for i in range(4):
        a(f"v_add_u32 v{10+i}, 0x8000, v{10+i}")
    a("s_add_u32 s41, s41, 1")
    a("s_waitcnt lgkmcnt(12)")
    mm(0)
    a("s_waitcnt lgkmcnt(0)")
    mm(1)
    a("s_cmp_lt_u32 s41, 2")
    a("s_cbranch_scc1 P3_LOOP")
    a("s_nop 15")
    stamp(a, 12)
    for ch in range(4):
        a(f"ds_write_b128 v14, {vr(ACC+4*ch,4)} offset:{1088*ch}")
    a("s_waitcnt lgkmcnt(0)")
    for j in range(2):
        for e in range(2):
            a(f"ds_read_b128 {vr(FR+8*j+4*e,4)}, v15 offset:{j*256+e*1088}")
    a("s_waitcnt lgkmcnt(0)")
    for i in range(8):
        a(f"v_pk_fma_f32 {vr(FR+2*i,2)}, {vr(FR+2*i,2)}, {vr(PG+2*i,2)}, {vr(PXF+2*i,2)}")
    for i in range(8):
        a(f"v_cvt_pk_bf16_f32 v{64+i}, v{FR+2*i}, v{FR+2*i+1}")
    a(f"buffer_store_dwordx4 {vr(64,4)}, v{PV+2}, s[68:71], s65 offen")
    a(f"buffer_store_dwordx4 {vr(68,4)}, v{PV+2}, s[68:71], s66 offen")
    stamp_flush(a)
    a("s_endpgm")
    a.label("P3_REDO")
    p3_pre(a, True)
    a("s_branch P3_GO")

    a.label("R_AUX")
    a("s_cmp_ge_u32 s16, 2")
    a("s_cbranch_scc1 R_AUX2")
    srd(a, 28, 6, 7, 0, 512 * 1024)
    a("v_lshrrev_b32 v2, 3, v1")
    a("v_lshlrev_b32 v2, 10, v2")
    a("v_lshrrev_b32 v3, 4, v1")
    a("v_xor_b32 v6, v3, v1")
    a("v_and_b32 v6, 7, v6")
    a("v_lshl_add_u32 v8, v6, 4, v2")
    a("v_xor_b32 v9, 64, v8")
    a("v_and_b32 v6, 1, v3")
    a("v_lshlrev_b32 v6, 2, v6")
    a("v_xor_b32 v6, v6, v1")
    a("v_and_b32 v6, 7, v6")
    a("v_lshl_add_u32 v4, v6, 4, v2")
    a("s_lshl_b32 s43, s16, 15")
    a("s_lshl_b32 s44, s17, 10")
    a("s_add_u32 s44, s44, s43")
    a("s_lshl_b32 s45, s18, 1")
    a("s_add_u32 s45, s45, s43")
    a("s_lshl_b32 s46, s16, 12")

    def dma_chunk(c, sX, sW, sc=""):
        if sW is not None:
            for j in range(4):
                a(f"s_add_u32 m0, s46, {L_W + c*8192 + j*1024}")
                a(f"s_add_u32 s40, s45, {c*65536 + j*8192}")
                a(f"buffer_load_dwordx4 v4, s[{sW}:{sW+3}], s40 offen lds")
        if sX is not None:
            for j in range(4):
                a(f"s_add_u32 m0, s46, {L_X + c*8192 + j*1024}")
                a(f"s_add_u32 s40, s44, {c*128 + j*8192}")
                a(f"buffer_load_dwordx4 v{8+(j&1)}, s[{sX}:{sX+3}], s40 offen{sc} lds")

    for c in range(3):
        dma_chunk(c, 20, 28)
    for c in range(8):
        a(f"s_waitcnt vmcnt({8*(min(c+3,8)-c-1)})")
        a("s_barrier")
        if c + 3 < 8:
            dma_chunk(c + 3, 20, 28)
    a("s_barrier")
    a("s_barrier")
    a("s_barrier")
    a("s_barrier")
    srd(a, 28, 12, 13, 0, 512 * 1024)
    a(f"s_add_u32 s47, s46, {L_W}")
    a("s_mov_b32 s48, s45")
    a("s_mov_b32 s49, 0")
    a.label("LD_WO")
    for j in range(4):
        a(f"s_add_u32 m0, s47, {j*1024}")
        a(f"s_add_u32 s40, s48, {j*8192}")
        a("buffer_load_dwordx4 v4, s[28:31], s40 offen lds")
        if j & 1:
            a("s_waitcnt vmcnt(0)")
    a("s_add_u32 s47, s47, 8192")
    a("s_add_u32 s48, s48, 65536")
    a("s_add_u32 s49, s49, 1")
    a("s_cmp_lt_u32 s49, 8")
    a("s_cbranch_scc1 LD_WO")
    srd(a, 32, 14, 15, WS_O, 2048 * 1024)
    a("s_barrier")
    a("s_barrier")
    a("s_barrier")
    a("s_barrier")
    for c in range(8):
        dma_chunk(c, 32, None, "")
        if c == 5:
            a("s_waitcnt vmcnt(8)")
            a("s_barrier")
    a("s_waitcnt vmcnt(0)")
    a("s_barrier")
    a("s_endpgm")

    a.label("R_AUX2")
    a("s_and_b32 s16, s16, 1")
    a("s_cmp_eq_u32 s16, 0")
    a("s_cselect_b32 s28, s8, s10")
    a("s_cselect_b32 s29, s9, s11")
    a("s_mov_b32 s30, 16384")
    a("s_mov_b32 s31, 0x00020000")
    a("s_load_dwordx2 s[32:33], s[0:1], 88")
    a("s_memrealtime s[48:49]")
    a("s_waitcnt lgkmcnt(0)")
    a("s_mov_b32 s34, 256")
    a("s_mov_b32 s35, 0x00020000")
    a("v_mov_b32 v2, 0")
    a("s_cmp_eq_u32 s16, 0")
    a("s_cbranch_scc1 AUX_NOTAG")
    a("s_cmp_lg_u32 s2, 0")
    a("s_cbranch_scc1 AUX_NOTAG")
    a("s_or_b32 s48, s48, 1")
    a("v_mov_b32 v3, s48")
    a("s_mov_b64 exec, 1")
    a("buffer_store_dword v3, v2, s[32:35], 0 offen sc1")
    a("s_mov_b64 exec, -1")
    a.label("AUX_NOTAG")
    a("s_barrier")
    a("s_lshl_b32 s40, s16, 14")
    a(f"s_add_u32 s40, s40, {L_KV}")
    a("s_mov_b32 s41, 0")
    a.label("AUX_KV")
    a("s_mov_b32 m0, s40")
    a("s_add_u32 s40, s40, 1024")
    a("buffer_load_dwordx4 v5, s[28:31], s41 offen lds")
    a("s_add_u32 s41, s41, 1024")
    a("s_cmp_lt_u32 s41, 16384")
    a("s_cbranch_scc1 AUX_KV")
    a("s_barrier")
    a("s_barrier")
    a("s_barrier")
    a("s_waitcnt vmcnt(0)")
    a("s_barrier")
    a("s_cmp_eq_u32 s16, 0")
    a("s_cbranch_scc1 AUX_FFN0")
    a("s_mov_b32 s61, 0")
    a.label("TAGPOLL")
    a("buffer_load_dword v3, v2, s[32:35], 0 offen sc1")
    a("s_add_u32 s61, s61, 1")
    a("s_waitcnt vmcnt(0)")
    a("v_readfirstlane_b32 s60, v3")
    a(f"s_cmp_ge_u32 s61, {SPIN_MAX}")
    a("s_cbranch_scc1 TAGOK")
    a("s_cmp_eq_u32 s60, 0")
    a("s_cbranch_scc1 TAGPOLL")
    a.label("TAGOK")
    a("s_barrier")
    a("s_barrier")
    a("s_barrier")
    a("v_mov_b32 v3, s60")
    a("s_lshl_b32 s40, s2, 7")
    a(f"s_add_u32 s40, s40, {WS_FLAG1}")
    for i in range(4):
        a(f"s_mov_b32 s{44+i}, {WS_FLAG1 + i*8192}")
    a("v_lshlrev_b32 v7, 7, v1")
    a("s_barrier")
    stamp(a, 3)
    a("s_mov_b64 exec, 1")
    a("buffer_store_dword v3, v2, s[24:27], s40 offen sc1")
    a(f"ds_write_b32 v2, v3 offset:{L_MISC}")
    a("s_mov_b64 exec, -1")
    poll(a, "S1", 7, [44, 45, 46, 47])
    a("s_waitcnt lgkmcnt(0)")
    stamp(a, 4)
    a("s_barrier")
    a("s_barrier")
    a("s_barrier")
    a("s_setprio 3")
    a("s_lshl_b32 s40, s17, 4")
    a(f"s_add_u32 s41, s40, {WS_FLAG2}")
    a("s_lshl_b32 s40, s19, 7")
    a("s_add_u32 s40, s40, s41")
    a("v_and_b32 v6, 7, v1")
    a("v_lshlrev_b32 v6, 7, v6")
    a(f"s_mov_b32 s44, {WS_SELG}")
    poll(a, "SEL", 2, [44], wide=True, sleep=32)
    a("v_readfirstlane_b32 s56, v21")
    a("v_readfirstlane_b32 s57, v22")
    a("s_mov_b64 exec, 1")
    a(f"ds_write_b32 v2, v21 offset:{L_MISC+8}")
    a(f"ds_write_b32 v2, v22 offset:{L_MISC+12}")
    a("s_mov_b64 exec, -1")
    for t in range(2):
        a(f"s_and_b32 s58, s{56+t}, 0xffff")
        a("s_sub_u32 s58, 2047, s58")
        a("s_sub_u32 s58, s58, s17")
        a("s_cmp_lt_u32 s58, 64")
        a("s_cbranch_scc1 SYNC_FF")
    a("s_branch SYNC_NOFF")
    a.label("SYNC_FF")
    a("v_min_u32 v7, 55, v1")
    a("v_lshlrev_b32 v7, 7, v7")
    a(f"s_mov_b32 s44, {WS_FLAGF}")
    a(f"s_mov_b32 s45, {WS_FLAGF + 56*128}")
    poll(a, "FF", 7, [44, 45], sleep=32)
    srd(a, 48, 14, 15, WS_YPART, 112 * 4096)
    a("v_lshrrev_b32 v8, 4, v1")
    a("v_mul_u32_u24 v8, 0x1c000, v8")
    a("v_and_b32 v9, 15, v1")
    a("v_lshl_add_u32 v8, v9, 4, v8")
    a("v_lshlrev_b32 v9, 4, v9")
    a("s_mov_b32 s47, 0")
    a.label("SYNC_Y")
    a("s_lshl_b32 s59, s18, 2")
    a("s_add_u32 s59, s59, s47")
    for i in range(0, 4, 2):
        a(f"v_mov_b64 {vr(12+i,2)}, 0")
    for rnd in range(2):
        for p in range(14):
            a(f"buffer_load_dwordx4 {vr(32+4*p,4)}, v8, s[48:51], s59 offen sc1")
            a("s_add_u32 s59, s59, 4096")
        a("s_waitcnt vmcnt(0)")
        for p in range(14):
            a(f"v_pk_add_f32 v[12:13], v[12:13], {vr(32+4*p,2)}")
            a(f"v_pk_add_f32 v[14:15], v[14:15], {vr(34+4*p,2)}")
    for swap in ("v_permlane16_swap_b32", "v_permlane32_swap_b32"):
        for i in range(4):
            a(f"v_mov_b32 v{16+i}, v{12+i}")
        a("s_nop 1")
        for i in range(4):
            a(f"{swap} v{12+i}, v{16+i}")
        a("s_nop 1")
        for i in range(4):
            a(f"v_add_f32 v{12+i}, v{12+i}, v{16+i}")
    a("s_and_b32 s59, s56, 0xffff0000")
    a("s_ashr_i32 s58, s59, 31")
    a("s_not_b32 s58, s58")
    a("s_or_b32 s58, s58, 0x80000000")
    a("s_xor_b32 s59, s59, s58")
    a("s_and_b32 s59, s59, 0xffff0000")
    a("v_mov_b32 v10, s59")
    a(f"v_mul_f32 v10, 0x{f2u(NLOG2E):08x}, v10")
    a("v_exp_f32 v10, v10")
    a("s_nop 0")
    a("v_add_f32 v10, 1.0, v10")
    a("v_rcp_f32 v10, v10")
    a("s_nop 0")
    a("v_cvt_pk_bf16_f32 v10, v10, v10")
    a("v_lshlrev_b32 v10, 16, v10")
    for rp in range(2):
        a("v_cvt_pk_bf16_f32 v16, v12, v13")
        a("v_cvt_pk_bf16_f32 v17, v14, v15")
        for i in range(2):
            a(f"v_lshlrev_b32 v{12+2*i}, 16, v{16+i}")
            a(f"v_and_b32 v{13+2*i}, s42, v{16+i}")
        if rp == 0:
            for i in range(4):
                a(f"v_mul_f32 v{12+i}, v{12+i}, v10")
    a(f"ds_write_b128 v9, v[12:15] offset:{L_UPD}")
    a("v_add_u32 v9, 256, v9")
    a("s_mov_b32 s56, s57")
    a("s_add_u32 s47, s47, 2048")
    a("s_cmp_lt_u32 s47, 4096")
    a("s_cbranch_scc1 SYNC_Y")
    a.label("SYNC_NOFF")
    a("s_waitcnt lgkmcnt(0)")
    a("s_barrier")
    a("s_barrier")
    a("s_barrier")
    stamp(a, 8)
    a("s_mov_b64 exec, 1")
    a("buffer_store_dword v3, v2, s[24:27], s40 offen sc1")
    a("s_mov_b64 exec, -1")
    poll(a, "S2", 6, [41])
    a("s_waitcnt lgkmcnt(0)")
    stamp(a, 10)
    a("s_barrier")
    stamp_flush(a)
    a("s_endpgm")

    a.label("AUX_FFN0")
    a("s_barrier")
    a("s_barrier")
    a("s_load_dwordx4 s[4:7], s[0:1], 56")
    a("s_load_dwordx2 s[8:9], s[0:1], 72")
    a("s_barrier")
    a("s_cmp_ge_u32 s2, 112")
    a("s_cbranch_scc1 L_END")
    a("v_lshrrev_b32 v3, 1, v1")
    a("v_mul_u32_u24 v3, 3584, v3")
    a("v_and_b32 v7, 1, v1")
    a("v_lshl_add_u32 v3, v7, 4, v3")
    a("s_lshl_b32 s52, s2, 5")
    a(f"s_mov_b32 s53, {L_KV}")
    a("s_mov_b32 s41, 0")
    a("s_waitcnt lgkmcnt(0)")
    srd(a, 28, 4, 5, 0, 512 * 3584)
    srd(a, 32, 6, 7, 0, 512 * 3584)
    srd(a, 36, 8, 9, 0, 1792 * 1024)
    srd(a, 44, 14, 15, WS_YPART, 112 * 4096)
    a("v_mov_b32 v28, v3")
    a("s_mov_b32 s54, s52")
    a("s_barrier")
    a("s_barrier")
    a(f"s_mov_b32 s40, {WS_TOPC}")
    a("buffer_load_dwordx4 v[8:11], v5, s[24:27], s40 offen sc1")
    a("buffer_load_dwordx4 v[12:15], v5, s[24:27], s40 offen offset:1024 sc1")
    a("v_mov_b32 v2, 0")
    a(f"ds_read_b32 v3, v2 offset:{L_MISC}")
    a("s_barrier")
    a("s_barrier")
    a("s_setprio 3")
    a("s_waitcnt vmcnt(0) lgkmcnt(0)")
    a("v_readfirstlane_b32 s60, v3")
    for rnd in range(2):
        a("v_max3_u32 v16, v8, v9, v10")
        a("v_max3_u32 v17, v11, v12, v13")
        a("v_max3_u32 v16, v14, v15, v16")
        a("v_max_u32 v16, v16, v17")
        wave_reduce_rows(a, [16], op="v_max_u32")
        a("s_nop 0")
        a(f"v_readlane_b32 s{48+rnd}, v16, 63")
        a("s_nop 1")
        if rnd == 0:
            for i in range(8):
                a(f"v_cmp_eq_u32 vcc, s48, v{8+i}")
                a("s_nop 1")
                a(f"v_cndmask_b32 v{8+i}, v{8+i}, 0, vcc")
    a("s_cmp_lg_u32 s2, 0")
    a("s_cbranch_scc1 FFN1")
    a("v_mov_b32 v8, s60")
    a("v_mov_b32 v9, s48")
    a("v_mov_b32 v10, s49")
    a("v_mov_b32 v11, s60")
    a(f"s_mov_b32 s40, {WS_SELG}")
    a("s_mov_b64 exec, 1")
    a("buffer_store_dwordx4 v[8:11], v2, s[24:27], s40 offen sc1")
    a("s_mov_b64 exec, -1")
    a.label("FFN1")
    for t in range(2):
        a(f"s_and_b32 s{50+t}, s{48+t}, 0xffff")
        a(f"s_sub_u32 s{50+t}, 2047, s{50+t}")
        a(f"s_lshl_b32 s52, s{50+t}, 10")
        a(f"buffer_load_dwordx4 {vr(8+4*t,4)}, v5, s[20:23], s52 offen")
        a(f"s_lshl_b32 s52, s{50+t}, 4")
        a(f"s_add_u32 s52, s52, {WS_STATS}")
        a(f"buffer_load_dwordx2 {vr(16+2*t,2)}, v2, s[24:27], s52 offen sc1")
    a("v_and_b32 v4, 15, v1")
    a("v_lshrrev_b32 v6, 4, v1")
    a.label("FFN_DMA0")
    a("s_mov_b32 m0, s53")
    a("s_add_u32 s53, s53, 1024")
    a("buffer_load_dwordx4 v28, s[28:31], s54 offen lds")
    a("s_add_u32 m0, m0, 16384")
    a("s_add_u32 s41, s41, 1")
    a("buffer_load_dwordx4 v28, s[32:35], s54 offen lds")
    a(f"s_add_u32 s54, s54, {32*3584}")
    a("s_cmp_lt_u32 s41, 3")
    a("s_cbranch_scc1 FFN_DMA0")
    a("s_waitcnt vmcnt(6)")
    for t in range(2):
        for j in range(4):
            a(f"v_lshlrev_b32 v{32+8*t+2*j}, 16, v{8+4*t+j}")
            a(f"v_and_b32 v{33+8*t+2*j}, s42, v{8+4*t+j}")
        a(f"v_sub_f32 v{20+4*t}, 0, v{16+2*t}")
        a(f"v_sub_f32 v{21+4*t}, 0, v{16+2*t}")
        a(f"v_mov_b32 v{22+4*t}, v{17+2*t}")
        a(f"v_mov_b32 v{23+4*t}, v{17+2*t}")
    ln_normalize(a, [8, 12], 32, 48, [20, 24], [22, 26], 42)
    a(f"v_add_u32 v7, 0x{L_FX:x}, v5")
    a("ds_write_b128 v7, v[8:11]")
    a("ds_write_b128 v7, v[12:15] offset:1040")
    a("v_and_b32 v7, 1, v1")
    a("v_mul_u32_u24 v7, 1040, v7")
    a("v_lshl_add_u32 v7, v6, 4, v7")
    a(f"v_add_u32 v7, 0x{L_FX:x}, v7")
    a("s_waitcnt lgkmcnt(0)")
    for s in range(16):
        a(f"ds_read_b128 {vr(32+4*s,4)}, v7 offset:{64*s}")
    a.label("FFN_DMA")
    a("s_mov_b32 m0, s53")
    a("s_add_u32 s53, s53, 1024")
    a("buffer_load_dwordx4 v28, s[28:31], s54 offen lds")
    a("s_add_u32 m0, m0, 16384")
    a("s_add_u32 s41, s41, 1")
    a("buffer_load_dwordx4 v28, s[32:35], s54 offen lds")
    a(f"s_add_u32 s54, s54, {32*3584}")
    a("s_waitcnt vmcnt(6)")
    a("s_cmp_lt_u32 s41, 16")
    a("s_cbranch_scc1 FFN_DMA")
    a("v_lshlrev_b32 v7, 8, v6")
    a("v_lshl_add_u32 v7, v4, 3, v7")
    a(f"v_add_u32 v13, 0x{L_KV:x}, v7")
    a("s_waitcnt vmcnt(0)")
    for which, base, acc in (("g", 0, 16), ("u", 16384, 20)):
        for half in range(2):
            for s in range(8 * half, 8 * half + 8):
                a(f"ds_read_b64_tr_b16 {vr(96+4*(s&7),2)}, v13 offset:{base+1024*s}")
                a(f"ds_read_b64_tr_b16 {vr(96+4*(s&7)+2,2)}, v13 offset:{base+1024*s+128}")
            a("s_waitcnt lgkmcnt(0)")
            for s in range(8 * half, 8 * half + 8):
                cc = "0" if s == 0 else vr(acc, 4)
                a(f"v_mfma_f32_16x16x32_bf16 {vr(acc,4)}, {vr(96+4*(s&7),4)}, {vr(32+4*s,4)}, {cc}")
            a("s_nop 7")
    a("s_lshl_b32 s52, s2, 14")
    a(f"s_mov_b32 s53, {L_KV}")
    a("s_mov_b32 s41, 0")
    a.label("FFN_DMA2")
    a("s_mov_b32 m0, s53")
    a("s_add_u32 s53, s53, 1040")
    a("buffer_load_dwordx4 v5, s[36:39], s52 offen lds")
    a("s_add_u32 s52, s52, 1024")
    a("s_add_u32 s41, s41, 1")
    a("s_waitcnt vmcnt(7)")
    a("s_cmp_lt_u32 s41, 16")
    a("s_cbranch_scc1 FFN_DMA2")
    a("v_cvt_pk_bf16_f32 v24, v16, v17")
    a("v_cvt_pk_bf16_f32 v25, v18, v19")
    a("v_cvt_pk_bf16_f32 v26, v20, v21")
    a("v_cvt_pk_bf16_f32 v27, v22, v23")
    for i in range(4):
        a(f"v_lshlrev_b32 v{16+2*i}, 16, v{24+i}")
        a(f"v_and_b32 v{17+2*i}, s42, v{24+i}")
    for i in range(4):
        a(f"v_mul_f32 v{24+i}, 0x{f2u(NLOG2E):08x}, v{16+i}")
    for i in range(4):
        a(f"v_exp_f32 v{24+i}, v{24+i}")
    a("s_nop 0")
    for i in range(4):
        a(f"v_add_f32 v{24+i}, 1.0, v{24+i}")
    for i in range(4):
        a(f"v_rcp_f32 v{24+i}, v{24+i}")
    a("s_nop 0")
    for i in range(4):
        a(f"v_mul_f32 v{16+i}, v{16+i}, v{24+i}")
    a("v_cvt_pk_bf16_f32 v24, v16, v17")
    a("v_cvt_pk_bf16_f32 v25, v18, v19")
    for i in range(2):
        a(f"v_lshlrev_b32 v{16+2*i}, 16, v{24+i}")
        a(f"v_and_b32 v{17+2*i}, s42, v{24+i}")
    for i in range(4):
        a(f"v_mul_f32 v{16+i}, v{16+i}, v{20+i}")
    a("v_cvt_pk_bf16_f32 v24, v16, v17")
    a("v_cvt_pk_bf16_f32 v25, v18, v19")
    a("v_lshrrev_b32 v13, 2, v4")
    a("v_lshl_add_u32 v13, v6, 2, v13")
    a("v_mul_u32_u24 v13, 1040, v13")
    a("v_and_b32 v14, 3, v4")
    a("v_lshl_add_u32 v13, v14, 3, v13")
    a(f"v_add_u32 v13, 0x{L_KV:x}, v13")
    a("v_lshlrev_b32 v14, 11, v4")
    a("v_lshl_add_u32 v14, v6, 4, v14")
    a("v_mov_b32 v15, 0x7f000000")
    a("v_cmp_gt_u32 vcc, 2, v4")
    a("s_lshl_b32 s52, s2, 12")
    a("s_mov_b32 s41, 0")
    a("v_cndmask_b32 v14, v15, v14, vcc")
    a("s_waitcnt vmcnt(0)")
    a.label("FFN_DOWN")
    for tl in range(8):
        a(f"ds_read_b64_tr_b16 {vr(96+2*tl,2)}, v13 offset:{32*tl}")
    a("s_waitcnt lgkmcnt(0)")
    for tl in range(8):
        a(f"v_mfma_f32_16x16x16_bf16 {vr(32+4*tl,4)}, {vr(96+2*tl,2)}, v[24:25], 0")
    a("v_add_u32 v13, 256, v13")
    a("s_add_u32 s41, s41, 1")
    a("s_nop 5")
    for tl in range(8):
        a(f"buffer_store_dwordx4 {vr(32+4*tl,4)}, v14, s[44:47], s52 offen offset:{64*tl} sc1")
    a("s_add_u32 s52, s52, 512")
    a("s_waitcnt vmcnt(0)")
    a("s_cmp_lt_u32 s41, 4")
    a("s_cbranch_scc1 FFN_DOWN")
    a("v_mov_b32 v3, s60")
    a("s_lshl_b32 s40, s2, 7")
    a(f"s_add_u32 s40, s40, {WS_FLAGF}")
    a("s_mov_b64 exec, 1")
    a("buffer_store_dword v3, v2, s[24:27], s40 offen sc1")
    stamp_flush(a)
    a("s_endpgm")


def main(out):
    a = Asm()
    hdr = f"""; {NAME}: fused LN+QKV | MQA attention + routed FFN | out-proj + gate   (generated by gen/gen2.py)
; @launch grid=(256,1,1) block=(768,1,1) lds=163840
.amdgcn_target "amdgcn-amd-amdhsa--gfx950"
.text
"""
    kernel(a)
    vg = 152
    txt = hdr + a.text() + f""".section .rodata,"a"
.p2align 6
.amdhsa_kernel {NAME}_kernel
  .amdhsa_next_free_vgpr {vg}
  .amdhsa_next_free_sgpr {102 if PROF else 80}
  .amdhsa_accum_offset {vg}
  .amdhsa_group_segment_fixed_size 0
  .amdhsa_kernarg_size 104
  .amdhsa_user_sgpr_count 2
  .amdhsa_user_sgpr_kernarg_segment_ptr 1
  .amdhsa_system_sgpr_workgroup_id_x 1
.end_amdhsa_kernel
"""
    open(out, "w").write(txt)


if __name__ == "__main__":
    PROF = os.environ.get("PROF", "0") == "1"
    main(sys.argv[1] if len(sys.argv) > 1 else f"fused.s")
```

```python
import sys, os, struct

NAME = "recurrent_scan__grouped_kv_mqa__moe_arch_mod__prompt"

WS_KMAT = 0x0
WS_VFRAG = 0x10000
WS_STATS = 0x30000
WS_TOPC = 0x38000
WS_SELG = 0x39000
WS_XSEL = 0x39400
WS_FLAG1 = 0x40000
WS_FLAG2 = 0x48000
WS_FLAGF = 0x50000
WS_SMALL = 0x58000
WS_YPART = 0x60000
WS_O = 0x100000
WS_PROF = 0xA00000

SCALE = 0.25 * 1.4426950408889634
NLOG2E = -1.4426950408889634
PROF = False
SPIN_MAX = 1 << 22
EXP = os.environ.get('EXP', '')
FFN_THR = int(os.environ.get('FFN_THR', '4'))

L_X = 0
L_W = 65536
L_KV = 131072
P1_X = 0
P1_W = 57344
P1_KV = 114688
L_XN = 147456
P1_WR = 155776
L_KEY = 156800
P1_FL = 156928
L_RED = 0
L_Q = 55296
L_MISC = L_KV + 12288
L_UPD = L_MISC + 64
L_FX = L_Q


def f2u(x):
    return struct.unpack("<I", struct.pack("<f", x))[0]


class Asm:
    def __init__(self):
        self.l = []
    def __call__(self, s):
        self.l.append("    " + s)
    def label(self, s):
        self.l.append(s + ":")
    def raw(self, s):
        self.l.append(s)
    def c(self, s):
        self.l.append("    ; " + s)
    def text(self):
        return "\n".join(self.l) + "\n"


def srd(a, d, base_lo, base_hi, off, size):
    if off:
        a(f"s_add_u32 s{d}, s{base_lo}, 0x{off:x}")
        a(f"s_addc_u32 s{d+1}, s{base_hi}, 0")
    else:
        a(f"s_mov_b32 s{d}, s{base_lo}")
        a(f"s_mov_b32 s{d+1}, s{base_hi}")
    a(f"s_mov_b32 s{d+2}, 0x{size:x}")
    a(f"s_mov_b32 s{d+3}, 0x00020000")


def stamp(a, i):
    if PROF:
        a("s_memtime s[96:97]")
        a("s_waitcnt lgkmcnt(0)")
        a(f"s_mov_b32 s{80+i}, s96")


def stamp_flush(a):
    if PROF:
        a("s_waitcnt vmcnt(0)")
        stamp(a, 13)
        a("s_memrealtime s[96:97]")
        a("s_waitcnt lgkmcnt(0)")
        a("s_mov_b32 s95, s96")
        a(f"s_add_u32 s96, s14, 0x{WS_PROF:x}")
        a("s_addc_u32 s97, s15, 0")
        a("s_mov_b32 s98, 0x100000")
        a("s_mov_b32 s99, 0x00020000")
        a("s_lshl_b32 s79, s2, 4")
        a("s_add_u32 s79, s79, s78")
        a("s_lshl_b32 s79, s79, 6")
        a("s_mov_b64 exec, 1")
        a("v_mov_b32 v0, 0")
        for q in range(4):
            for i in range(4):
                a(f"v_mov_b32 v{4+i}, s{80+4*q+i}")
            a(f"buffer_store_dwordx4 v[4:7], v0, s[96:99], s79 offen offset:{16*q}")
            a("s_waitcnt vmcnt(0)")


def vr(b, n):
    return f"v[{b}:{b+n-1}]"


DPP_STEPS = ["quad_perm:[1,0,3,2] row_mask:0xf bank_mask:0xf",
             "quad_perm:[2,3,0,1] row_mask:0xf bank_mask:0xf",
             "row_half_mirror row_mask:0xf bank_mask:0xf",
             "row_mirror row_mask:0xf bank_mask:0xf",
             "row_bcast:15 row_mask:0xa bank_mask:0xf",
             "row_bcast:31 row_mask:0xc bank_mask:0xf"]


def wave_reduce_rows(a, regs, op="v_add_f32", nsteps=6):
    for st in DPP_STEPS[:nsteps]:
        if len(regs) == 1:
            a("s_nop 1")
        elif len(regs) == 2:
            a("s_nop 0")
        for r in regs:
            a(f"{op}_dpp v{r}, v{r}, v{r} {st}")


FR = 16
ACC = 48
ACC2 = 64
ONES = 80
Q0, O0, S0, KB, VB, IDX = 16, 32, 96, 128, 136, 8


def lds_wait(a, name, need_s=None, need_imm=None, off=0, two=True, vt=14):
    a(f"v_mov_b32 v{vt+2}, 0x{P1_FL:x}")
    a.label(f"LW_{name}")
    if two:
        a(f"ds_read_b64 {vr(vt,2)}, v{vt+2} offset:{off}")
        a("s_waitcnt lgkmcnt(0)")
        a(f"v_min_u32 v{vt}, v{vt}, v{vt+1}")
        a("s_nop 0")
    else:
        a(f"ds_read_b32 v{vt}, v{vt+2} offset:{off}")
        a("s_waitcnt lgkmcnt(0)")
    a(f"v_readfirstlane_b32 s62, v{vt}")
    a(f"s_cmp_lt_u32 s62, " + (f"s{need_s}" if need_s is not None else str(need_imm)))
    a(f"s_cbranch_scc1 LW_{name}")


def lds_add(a, vaddr, vone, off):
    a("s_mov_b64 exec, 1")
    a(f"ds_add_u32 v{vaddr}, v{vone} offset:{off}")
    a("s_mov_b64 exec, -1")


def gemm_addr(a, wbase):
    a("v_lshrrev_b32 v3, 5, v1")
    a("v_lshrrev_b32 v5, 2, v1")
    a("v_and_b32 v5, 3, v5")
    a("v_lshl_add_u32 v6, v3, 3, v5")
    a("v_lshlrev_b32 v6, 7, v6")
    a("v_lshrrev_b32 v7, 1, v5")
    a("s_and_b32 s40, s16, 1")
    a("v_xor_b32 v7, s40, v7")
    a("v_lshl_add_u32 v6, v7, 6, v6")
    a("v_and_b32 v7, 16, v1")
    a("v_lshl_add_u32 v6, v7, 1, v6")
    a("v_and_b32 v7, 1, v1")
    a("v_lshl_add_u32 v6, v7, 4, v6")
    a("v_and_b32 v7, 2, v1")
    a("v_lshl_add_u32 v6, v7, 2, v6")
    a(f"v_add_u32 v6, 0x{wbase:x}, v6")
    a("v_and_b32 v2, 31, v1")
    a("v_lshrrev_b32 v5, 1, v2")
    a("v_and_b32 v5, 7, v5")
    a("v_xor_b32 v5, v5, v3")
    a("v_lshlrev_b32 v2, 7, v2")
    a("v_lshl_add_u32 v2, v5, 4, v2")
    a("s_lshr_b32 s40, s16, 1")
    a("s_lshl_b32 s40, s40, 12")
    a("v_add_u32 v10, s40, v2")
    a("v_xor_b32 v11, 32, v10")
    a("v_xor_b32 v12, 64, v10")
    a("v_xor_b32 v13, 96, v10")


def gemm_loop_p1(a):
    for i in range(0, 32, 2):
        a(f"v_mov_b64 {vr(ACC+i,2)}, 0")
    for i in range(4):
        a(f"v_mov_b32 v{ONES+i}, 0x3f803f80")
    a("v_mov_b32 v7, 1")
    a("s_mov_b32 s41, 3")
    a("s_barrier")
    FB = [FR, 88]

    def rd(buf):
        for sx in range(4):
            a(f"ds_read_b64_tr_b16 {vr(FB[buf]+8*sx,2)}, v6 offset:{sx*2048}")
            a(f"ds_read_b64_tr_b16 {vr(FB[buf]+8*sx+2,2)}, v6 offset:{sx*2048+512}")
            a(f"ds_read_b128 {vr(FB[buf]+8*sx+4,4)}, v{10+sx}")
        a("s_movk_i32 s40, 0x2000")
        a("s_cmp_eq_u32 s41, 9")
        a(f"s_cselect_b32 s40, {(-6*8192) & 0xffffffff}, s40")
        a("v_add_u32 v6, s40, v6")
        for i in range(4):
            a(f"v_add_u32 v{10+i}, s40, v{10+i}")
        a("s_add_u32 s41, s41, 1")

    def mm(buf):
        for sx in range(4):
            a(f"v_mfma_f32_32x32x16_bf16 {vr(ACC,16)}, {vr(FB[buf]+8*sx,4)}, {vr(FB[buf]+8*sx+4,4)}, {vr(ACC,16)}")
            a(f"v_mfma_f32_32x32x16_bf16 {vr(ACC2,16)}, {vr(FB[buf]+8*sx,4)}, {vr(ONES,4)}, {vr(ACC2,16)}")

    lds_wait(a, "G0", need_s=41, vt=84)
    a("v_mov_b32 v120, 0")
    a("buffer_load_dword v121, v120, s[72:75], 0 offen sc1")
    rd(0)
    a.label("GL_P1")
    a("s_cmp_ge_u32 s62, s41")
    a("s_cbranch_scc1 GL_S1")
    lds_wait(a, "G1", need_s=41, vt=84)
    a.label("GL_S1")
    rd(1)
    a("s_waitcnt lgkmcnt(12)")
    a("s_cmp_lg_u32 s41, 5")
    a("s_cbranch_scc1 GL_NOSIG")
    lds_add(a, 86, 7, 8)
    a.label("GL_NOSIG")
    mm(0)
    a("s_cmp_eq_u32 s41, 11")
    a("s_cbranch_scc1 GL_END")
    a("s_cmp_ge_u32 s62, s41")
    a("s_cbranch_scc1 GL_S2")
    lds_wait(a, "G2", need_s=41, vt=84)
    a.label("GL_S2")
    rd(0)
    a("s_waitcnt lgkmcnt(12)")
    mm(1)
    a("s_branch GL_P1")
    a.label("GL_END")
    a("s_waitcnt lgkmcnt(0)")
    mm(1)


def poll(a, tag, voff, soffs, wide=False, sleep=2, cmpw=(20, 23)):
    a("s_mov_b32 s61, 0")
    a.label(f"POLL_{tag}")
    if wide:
        a(f"buffer_load_dwordx4 v[20:23], v{voff}, s[24:27], s{soffs[0]} offen sc1")
        regs = list(cmpw)
    else:
        for i, so in enumerate(soffs):
            a(f"buffer_load_dword v{20+i}, v{voff}, s[24:27], s{so} offen sc1")
        regs = [20 + i for i in range(len(soffs))]
    a("s_add_u32 s61, s61, 1")
    a("s_waitcnt vmcnt(0)")
    for i, r in enumerate(regs):
        if i == 0:
            a(f"v_cmp_ne_u32 vcc, s60, v{r}")
        else:
            a(f"v_cmp_ne_u32 s[62:63], s60, v{r}")
            a("s_or_b64 vcc, vcc, s[62:63]")
    a(f"s_cmp_ge_u32 s61, {SPIN_MAX}")
    a(f"s_cbranch_scc1 POLLX_{tag}")
    a("s_cmp_eq_u64 vcc, 0")
    a(f"s_cbranch_scc1 POLLX_{tag}")
    a(f"s_sleep {sleep}")
    a(f"s_branch POLL_{tag}")
    a.label(f"POLLX_{tag}")


def get_tag(a, name, vt):
    a("s_mov_b32 s61, 0")
    a(f"v_mov_b32 v{vt}, 0")
    a.label(f"TAG_{name}")
    a(f"buffer_load_dword v{vt+1}, v{vt}, s[72:75], 0 offen sc1")
    a("s_add_u32 s61, s61, 1")
    a("s_waitcnt vmcnt(0)")
    a(f"v_readfirstlane_b32 s60, v{vt+1}")
    a(f"s_cmp_ge_u32 s61, {SPIN_MAX}")
    a(f"s_cbranch_scc1 TAGX_{name}")
    a("s_cmp_eq_u32 s60, 0")
    a(f"s_cbranch_scc1 TAG_{name}")
    a.label(f"TAGX_{name}")


def ln_normalize(a, rows_packed, XU, D, negm_pairs, rinv_pairs, mask_s):
    R = range(len(rows_packed))
    for i in R:
        for j in range(4):
            a(f"v_pk_add_f32 {vr(D+8*i+2*j,2)}, {vr(XU+8*i+2*j,2)}, {vr(negm_pairs[i],2)}")
    for i in R:
        for j in range(4):
            a(f"v_cvt_pk_bf16_f32 v{rows_packed[i]+j}, v{D+8*i+2*j}, v{D+8*i+2*j+1}")
    for i in R:
        for j in range(4):
            a(f"v_lshlrev_b32 v{D+8*i+2*j}, 16, v{rows_packed[i]+j}")
            a(f"v_and_b32 v{D+8*i+2*j+1}, s{mask_s}, v{rows_packed[i]+j}")
    for i in R:
        for j in range(4):
            a(f"v_pk_mul_f32 {vr(D+8*i+2*j,2)}, {vr(D+8*i+2*j,2)}, {vr(rinv_pairs[i],2)}")
    for i in R:
        for j in range(4):
            a(f"v_cvt_pk_bf16_f32 v{rows_packed[i]+j}, v{D+8*i+2*j}, v{D+8*i+2*j+1}")


PG, PXF = 96, 112
PV = 144


def p3_pre(a, update):
    EX, T, ST, PR = (16, 24, 64, 68) if update else (48, 56, 72, 76)
    G, XF = PG, PXF
    SV = PV + 4
    if update:
        a("s_bitcmp0_b32 s67, 0")
        a("s_cbranch_scc1 P3_NORELOAD")
    a(f"v_lshrrev_b32 v{PV}, 2, v1")
    a(f"v_and_b32 v{PV+1}, 3, v1")
    a(f"v_lshlrev_b32 v{PV+2}, 10, v{PV}")
    a(f"v_lshl_add_u32 v{PV+2}, v{PV+1}, 4, v{PV+2}")
    a(f"buffer_load_dwordx4 {vr(EX,4)}, v{PV+2}, s[20:23], s65 offen")
    a(f"buffer_load_dwordx4 {vr(EX+4,4)}, v{PV+2}, s[20:23], s66 offen")
    a(f"v_lshlrev_b32 v{T}, 4, v{PV}")
    a("s_lshl_b32 s40, s64, 4")
    a(f"s_add_u32 s40, s40, {WS_STATS}")
    a(f"buffer_load_dwordx2 {vr(SV,2)}, v{T}, s[24:27], s40 offen sc1")
    a(f"buffer_load_dwordx2 {vr(SV+2,2)}, v{T}, s[24:27], s40 offen offset:256 sc1")
    a("s_waitcnt vmcnt(0)")
    for i in range(8):
        a(f"v_lshlrev_b32 v{XF+2*i}, 16, v{EX+i}")
        a(f"v_and_b32 v{XF+2*i+1}, s42, v{EX+i}")
    if update:
        a.label("P3_NORELOAD")
    for j in range(2):
        a(f"v_sub_f32 v{PR+4*j}, 0, v{SV+2*j}")
        a(f"v_sub_f32 v{PR+1+4*j}, 0, v{SV+2*j}")
        a(f"v_mov_b32 v{PR+2+4*j}, v{SV+1+2*j}")
        a(f"v_mov_b32 v{PR+3+4*j}, v{SV+1+2*j}")
    ln_normalize(a, [EX, EX + 4], XF, G, [PR, PR + 4], [PR + 2, PR + 6], 42)
    for i in range(8):
        a(f"v_lshlrev_b32 v{G+2*i}, 16, v{EX+i}")
        a(f"v_and_b32 v{G+2*i+1}, s42, v{EX+i}")
    if update:
        a("s_and_b32 s59, s16, 1")
        a("s_lshl_b32 s59, s59, 7")
        a(f"v_lshlrev_b32 v{ST}, 5, v{PV+1}")
        a(f"s_add_u32 s59, s59, {L_UPD}")
        a(f"v_add_u32 v{ST}, s59, v{ST}")
        for t in range(2):
            a(f"s_and_b32 s58, s{56+t}, 0xffff")
            a("s_sub_u32 s58, 2047, s58")
            a("s_sub_u32 s58, s58, s64")
            a("s_cmp_ge_u32 s58, 32")
            a(f"s_cbranch_scc1 P3_NOUPD{t}")
            a.label(f"P3_UW{t}")
            a(f"ds_read_b32 v{T}, v4 offset:24")
            a("s_waitcnt lgkmcnt(0)")
            a(f"v_readfirstlane_b32 s59, v{T}")
            a("s_cmp_eq_u32 s59, 0")
            a(f"s_cbranch_scc1 P3_UW{t}")
            a(f"ds_read_b128 {vr(T,4)}, v{ST} offset:{256*t}")
            a(f"ds_read_b128 {vr(T+4,4)}, v{ST} offset:{256*t+16}")
            a("s_waitcnt lgkmcnt(0)")
            for j in range(2):
                a(f"v_add_u32 v{ST+1}, {16*j}, v{PV}")
                a(f"v_cmp_eq_u32 vcc, s58, v{ST+1}")
                for i in range(8):
                    a(f"v_add_f32 v{T+8+i}, v{T+i}, v{G+8*j+i}")
                for i in range(4):
                    a(f"v_cvt_pk_bf16_f32 v{T+8+i}, v{T+8+2*i}, v{T+9+2*i}")
                for i in range(3, -1, -1):
                    a(f"v_and_b32 v{T+9+2*i}, s42, v{T+8+i}")
                    a(f"v_lshlrev_b32 v{T+8+2*i}, 16, v{T+8+i}")
                for i in range(8):
                    a(f"v_cndmask_b32 v{G+8*j+i}, v{G+8*j+i}, v{T+8+i}, vcc")
            a.label(f"P3_NOUPD{t}")
    for i in range(16):
        a(f"v_mul_f32 v{T+i}, 0x{f2u(NLOG2E):08x}, v{G+i}")
    for i in range(16):
        a(f"v_exp_f32 v{T+i}, v{T+i}")
    for i in range(16):
        a(f"v_add_f32 v{T+i}, 1.0, v{T+i}")
    for i in range(16):
        a(f"v_rcp_f32 v{T+i}, v{T+i}")
    for i in range(0, 16, 2):
        a(f"v_pk_mul_f32 {vr(G+i,2)}, {vr(G+i,2)}, {vr(T+i,2)}")
    for i in range(8):
        a(f"v_cvt_pk_bf16_f32 v{T+i}, v{G+2*i}, v{G+2*i+1}")
    for i in range(8):
        a(f"v_lshlrev_b32 v{G+2*i}, 16, v{T+i}")
        a(f"v_and_b32 v{G+2*i+1}, s42, v{T+i}")


def kernel(a):
    K = NAME + "_kernel"
    a.raw(f".globl {K}")
    a.raw(".p2align 8")
    a.raw(f".type {K},@function")
    a.label(K)
    a("s_cmp_ge_u32 s2, 256")
    a("s_cbranch_scc1 L_END")
    if PROF:
        a("s_memrealtime s[96:97]")
        a("s_waitcnt lgkmcnt(0)")
        a("s_mov_b32 s94, s96")
    stamp(a, 0)
    a("s_load_dwordx8 s[4:11], s[0:1], 0")
    a("s_load_dwordx2 s[12:13], s[0:1], 32")
    a("s_load_dwordx2 s[14:15], s[0:1], 96")
    a("s_load_dwordx2 s[28:29], s[0:1], 48")
    a("s_load_dwordx2 s[72:73], s[0:1], 88")
    a("v_and_b32 v1, 63, v0")
    a("v_lshrrev_b32 v2, 6, v0")
    a("s_nop 0")
    a("v_readfirstlane_b32 s78, v2")
    a("s_and_b32 s17, s2, 7")
    a("s_lshr_b32 s18, s2, 3")
    a("s_and_b32 s19, s18, 3")
    a("s_lshl_b32 s17, s17, 2")
    a("s_add_u32 s17, s17, s19")
    a("s_lshl_b32 s17, s17, 6")
    a("s_lshr_b32 s19, s18, 2")
    a("s_lshl_b32 s18, s19, 6")
    a("s_and_b32 s16, s78, 3")
    a("s_mov_b32 s42, 0xffff0000")
    a("v_lshlrev_b32 v5, 4, v1")
    a("s_waitcnt lgkmcnt(0)")
    srd(a, 20, 4, 5, 0, 2048 * 1024)
    srd(a, 24, 14, 15, 0, WS_SMALL)
    a("s_mov_b32 s74, 256")
    a("s_mov_b32 s75, 0x00020000")
    a("s_cmp_ge_u32 s78, 8")
    a("s_cbranch_scc1 R_GEMM")
    a("s_cmp_ge_u32 s78, 4")
    a("s_cbranch_scc1 R_LN")
    a.label("R_AUX")
    a("s_cmp_ge_u32 s16, 2")
    a("s_cbranch_scc1 R_AUX2")
    srd(a, 52, 28, 29, 0, 1024)
    srd(a, 28, 6, 7, 0, 512 * 1024)
    a("v_lshrrev_b32 v2, 3, v1")
    a("v_lshlrev_b32 v2, 10, v2")
    a("v_lshrrev_b32 v3, 4, v1")
    a("v_xor_b32 v6, v3, v1")
    a("v_and_b32 v6, 7, v6")
    a("v_lshl_add_u32 v8, v6, 4, v2")
    a("v_xor_b32 v9, 64, v8")
    a("v_and_b32 v6, 1, v3")
    a("v_lshlrev_b32 v6, 2, v6")
    a("v_xor_b32 v6, v6, v1")
    a("v_and_b32 v6, 7, v6")
    a("v_lshl_add_u32 v4, v6, 4, v2")
    a("s_lshl_b32 s43, s16, 15")
    a("s_lshl_b32 s44, s17, 10")
    a("s_add_u32 s44, s44, s43")
    a("s_lshl_b32 s45, s18, 1")
    a("s_add_u32 s45, s45, s43")
    a("s_lshl_b32 s46, s16, 12")

    a("s_lshl_b32 s47, s19, 3")
    a("s_add_u32 s47, s47, s17")
    a("s_lshl_b32 s48, s16, 2")
    a("s_add_u32 s47, s47, s48")
    a("s_lshl_b32 s47, s47, 10")
    a("s_mul_i32 s48, s16, 4160")
    for j in range(4):
        a(f"s_add_u32 m0, s48, {L_XN + j*1040}")
        a(f"s_add_u32 s40, s47, {j*1024}")
        a("buffer_load_dwordx4 v5, s[20:23], s40 offen lds")
    a(f"s_mov_b32 m0, {P1_WR}")
    a("s_lshl_b32 s47, s16, 13")
    a("buffer_load_dwordx4 v5, s[52:55], 0 offen lds")
    srd(a, 32, 8, 9, 0, 16384)
    srd(a, 36, 10, 11, 0, 16384)
    a("s_lshl_b32 s40, s16, 2")
    a(f"s_add_u32 s40, s40, {P1_FL}")
    a("v_mov_b32 v10, s40")
    a("v_mov_b32 v11, 1")
    for which in range(2):
        for j in range(8):
            a(f"s_add_u32 m0, s47, {P1_KV + which*16384 + j*1024}")
            a(f"s_add_u32 s40, s47, {j*1024}")
            a(f"buffer_load_dwordx4 v5, s[{32+4*which}:{35+4*which}], s40 offen lds")
        if which == 0:
            a("s_barrier")
            a("s_waitcnt vmcnt(8)")
            lds_add(a, 10, 11, 0)
            stamp(a, 1)
    a("s_mov_b32 s47, s46")
    a("s_mov_b32 s48, s45")
    a("s_mov_b32 s49, s44")
    a("s_mov_b32 s50, 0")
    a.label("LD_P1")
    a("s_cmp_lg_u32 s50, 7")
    a("s_cbranch_scc1 LD_NOWRAP")
    a("s_mov_b32 s47, s46")
    lds_wait(a, "L", need_imm=4, off=8, two=False)
    a.label("LD_NOWRAP")
    for j in range(4):
        a(f"s_add_u32 m0, s47, {P1_W + j*1024}")
        a(f"s_add_u32 s40, s48, {j*8192}")
        a("buffer_load_dwordx4 v4, s[28:31], s40 offen lds")
    for j in range(4):
        a(f"s_add_u32 m0, s47, {P1_X + j*1024}")
        a(f"s_add_u32 s40, s49, {j*8192}")
        a(f"buffer_load_dwordx4 v{8+(j&1)}, s[20:23], s40 offen lds")
    a("s_add_u32 s47, s47, 8192")
    a("s_add_u32 s48, s48, 65536")
    a("s_add_u32 s49, s49, 128")
    a("s_add_u32 s50, s50, 1")
    a("s_cmp_lt_u32 s50, 2")
    a("s_cbranch_scc1 LD_P1")
    a("s_waitcnt vmcnt(16)")
    lds_add(a, 10, 11, 0)
    a("s_cmp_lt_u32 s50, 8")
    a("s_cbranch_scc1 LD_P1")
    a("s_waitcnt vmcnt(8)")
    lds_add(a, 10, 11, 0)
    a("s_waitcnt vmcnt(0)")
    lds_add(a, 10, 11, 0)
    stamp(a, 2)
    a("s_barrier")
    a("s_barrier")
    a("s_barrier")
    srd(a, 28, 12, 13, 0, 512 * 1024)
    a(f"s_add_u32 s47, s46, {L_W}")
    a("s_mov_b32 s48, s45")
    a("s_mov_b32 s49, 0")
    a.label("LD_WO")
    for j in range(4):
        a(f"s_add_u32 m0, s47, {j*1024}")
        a(f"s_add_u32 s40, s48, {j*8192}")
        a("buffer_load_dwordx4 v4, s[28:31], s40 offen lds")
        if j & 1:
            a("s_waitcnt vmcnt(0)")
    a("s_add_u32 s47, s47, 8192")
    a("s_add_u32 s48, s48, 65536")
    a("s_add_u32 s49, s49, 1")
    a("s_cmp_lt_u32 s49, 8")
    a("s_cbranch_scc1 LD_WO")
    srd(a, 32, 14, 15, WS_O, 2048 * 1024)
    get_tag(a, "LD", 12)
    a("s_lshl_b32 s41, s17, 4")
    a(f"s_add_u32 s41, s41, {WS_FLAG2}")
    a("v_and_b32 v6, 7, v1")
    a("v_lshlrev_b32 v6, 7, v6")
    a("s_lshl_b32 s40, s16, 2")
    a(f"s_add_u32 s40, s40, {L_MISC + 16}")
    a("v_mov_b32 v10, s40")
    a("s_barrier")
    a("s_barrier")
    a("s_barrier")
    stamp(a, 10)
    a("s_mov_b32 s50, 0")
    a("s_mov_b32 s61, 0")
    a.label("LD_P3")
    a("buffer_load_dword v12, v6, s[24:27], s41 offen sc1")
    a("s_add_u32 s61, s61, 1")
    a("s_waitcnt vmcnt(0)")
    a("v_mov_b32 v11, s50")
    a("ds_write_b32 v10, v11")
    a("v_cmp_eq_u32 vcc, s60, v12")
    a(f"s_cmp_ge_u32 s61, {SPIN_MAX}")
    a("s_cselect_b32 s51, 0xff, vcc_lo")
    a("s_and_b32 s51, s51, 0xff")
    a("s_andn2_b32 s51, s51, s50")
    a("s_cbranch_scc0 LD_P3W")
    a.label("LD_P3I")
    a("s_ff1_i32_b32 s52, s51")
    a("s_bitset1_b32 s50, s52")
    a("s_bitset0_b32 s51, s52")
    a("s_lshl_b32 s47, s52, 13")
    a("s_add_u32 s47, s47, s46")
    a("s_lshl_b32 s49, s52, 7")
    a("s_add_u32 s49, s49, s44")
    for j in range(4):
        a(f"s_add_u32 m0, s47, {L_X + j*1024}")
        a(f"s_add_u32 s40, s49, {j*8192}")
        a(f"buffer_load_dwordx4 v{8+(j&1)}, s[32:35], s40 offen lds")
    a("s_cmp_lg_u32 s51, 0")
    a("s_cbranch_scc1 LD_P3I")
    a.label("LD_P3W")
    a("s_cmp_lg_u32 s50, 0xff")
    a("s_cbranch_scc1 LD_P3")
    a("s_waitcnt vmcnt(0)")
    a("v_mov_b32 v11, s50")
    a("ds_write_b32 v10, v11")
    a("s_waitcnt lgkmcnt(0)")
    stamp(a, 12)
    stamp_flush(a)
    a("s_endpgm")

    a.label("R_AUX2")
    a("s_and_b32 s16, s16, 1")
    a("v_mov_b32 v2, 0")
    a("s_cmp_eq_u32 s16, 0")
    a("s_cbranch_scc1 AUX_NOTAG")
    a("s_cmp_lg_u32 s2, 0")
    a("s_cbranch_scc1 AUX_NOTAG")
    a("s_memrealtime s[48:49]")
    a("s_waitcnt lgkmcnt(0)")
    a("s_or_b32 s48, s48, 1")
    a("v_mov_b32 v3, s48")
    a("s_mov_b64 exec, 1")
    a("buffer_store_dword v3, v2, s[72:75], 0 offen sc1")
    a("s_mov_b64 exec, -1")
    a.label("AUX_NOTAG")
    a(f"v_mov_b32 v6, 0x{P1_FL:x}")
    a("v_mov_b64 v[8:9], 0")
    a("v_mov_b64 v[10:11], 0")
    a("ds_write_b128 v6, v[8:11]")
    a("s_waitcnt lgkmcnt(0)")
    a("s_barrier")
    get_tag(a, "AUX", 2)
    a("s_cmp_eq_u32 s16, 0")
    a("s_cbranch_scc1 AUX_FFN0")
    a("v_mov_b32 v3, s60")
    a("s_lshl_b32 s40, s2, 7")
    a(f"s_add_u32 s40, s40, {WS_FLAG1}")
    for i in range(4):
        a(f"s_mov_b32 s{44+i}, {WS_FLAG1 + i*8192}")
    a("v_lshlrev_b32 v7, 7, v1")
    a("s_barrier")
    stamp(a, 3)
    a("s_mov_b64 exec, 1")
    a("buffer_store_dword v3, v2, s[24:27], s40 offen sc1")
    a("s_mov_b64 exec, -1")
    poll(a, "S1", 7, [44, 45, 46, 47])
    a("s_waitcnt lgkmcnt(0)")
    stamp(a, 4)
    a("s_barrier")
    a("s_barrier")
    a("s_setprio 3")
    a("s_lshl_b32 s40, s17, 4")
    a(f"s_add_u32 s41, s40, {WS_FLAG2}")
    a("s_lshl_b32 s40, s19, 7")
    a("s_add_u32 s40, s40, s41")
    a("v_and_b32 v6, 7, v1")
    a("v_lshlrev_b32 v6, 7, v6")
    a(f"s_mov_b32 s44, {WS_SELG}")
    poll(a, "SEL", 2, [44], wide=True, sleep=32)
    a("v_readfirstlane_b32 s56, v21")
    a("v_readfirstlane_b32 s57, v22")
    a("v_mov_b32 v100, v21")
    a("v_mov_b32 v101, v22")
    a("v_and_b32 v9, 15, v1")
    a("v_lshlrev_b32 v9, 4, v9")
    a(f"v_add_u32 v9, 0x{L_UPD:x}, v9")
    a("s_barrier")
    a(f"v_mov_b32 v11, 0x{L_MISC:x}")
    a("ds_write_b64 v11, v[100:101] offset:8")
    a("v_mov_b64 v[102:103], 0")
    a("ds_write_b64 v11, v[102:103] offset:16")
    a("ds_write_b32 v11, v102 offset:24")
    a("s_waitcnt lgkmcnt(0)")
    a("s_barrier")
    a("s_barrier")
    stamp(a, 8)
    a("s_mov_b64 exec, 1")
    a("buffer_store_dword v3, v2, s[24:27], s40 offen sc1")
    a("s_mov_b64 exec, -1")
    srd(a, 48, 14, 15, WS_YPART, 112 * 4096)
    a("v_lshrrev_b32 v8, 4, v1")
    a("v_mul_u32_u24 v8, 0x1c000, v8")
    a("v_and_b32 v10, 15, v1")
    a("v_lshl_add_u32 v8, v10, 4, v8")
    a("v_min_u32 v7, 55, v1")
    a("v_lshlrev_b32 v7, 7, v7")
    a(f"s_mov_b32 s44, {WS_FLAGF}")
    a(f"s_mov_b32 s45, {WS_FLAGF + 56*128}")
    a("s_mov_b32 s47, 0")
    a.label("SYNC_Y")
    a("s_and_b32 s58, s56, 0xffff")
    a("s_sub_u32 s58, 2047, s58")
    a("s_sub_u32 s58, s58, s17")
    a("s_cmp_ge_u32 s58, 64")
    a("s_cbranch_scc1 SYNC_YN")
    poll(a, "FF", 7, [44, 45], sleep=4)
    a("s_lshl_b32 s59, s18, 2")
    a("s_add_u32 s59, s59, s47")
    for p in range(28):
        a(f"buffer_load_dwordx4 {vr(32+4*p,4)}, v8, s[48:51], s59 offen sc1")
        a("s_add_u32 s59, s59, 4096")
    a("s_and_b32 s59, s56, 0xffff0000")
    a("s_ashr_i32 s58, s59, 31")
    a("s_not_b32 s58, s58")
    a("s_or_b32 s58, s58, 0x80000000")
    a("s_xor_b32 s59, s59, s58")
    a("s_and_b32 s59, s59, 0xffff0000")
    a("v_mov_b32 v10, s59")
    a(f"v_mul_f32 v10, 0x{f2u(NLOG2E):08x}, v10")
    a("v_exp_f32 v10, v10")
    a("s_nop 0")
    a("v_add_f32 v10, 1.0, v10")
    a("v_rcp_f32 v10, v10")
    a("s_nop 0")
    a("v_cvt_pk_bf16_f32 v10, v10, v10")
    a("v_lshlrev_b32 v10, 16, v10")
    a("s_waitcnt vmcnt(26)")
    a("v_pk_add_f32 v[12:13], v[32:33], v[36:37]")
    a("v_pk_add_f32 v[14:15], v[34:35], v[38:39]")
    for p in range(2, 28):
        a(f"s_waitcnt vmcnt({27-p})")
        a(f"v_pk_add_f32 v[12:13], v[12:13], {vr(32+4*p,2)}")
        a(f"v_pk_add_f32 v[14:15], v[14:15], {vr(34+4*p,2)}")
    for swap in ("v_permlane16_swap_b32", "v_permlane32_swap_b32"):
        for i in range(4):
            a(f"v_mov_b32 v{16+i}, v{12+i}")
        a("s_nop 1")
        for i in range(4):
            a(f"{swap} v{12+i}, v{16+i}")
        a("s_nop 1")
        for i in range(4):
            a(f"v_add_f32 v{12+i}, v{12+i}, v{16+i}")
    for rp in range(2):
        a("v_cvt_pk_bf16_f32 v16, v12, v13")
        a("v_cvt_pk_bf16_f32 v17, v14, v15")
        for i in range(2):
            a(f"v_lshlrev_b32 v{12+2*i}, 16, v{16+i}")
            a(f"v_and_b32 v{13+2*i}, s42, v{16+i}")
        if rp == 0:
            for i in range(4):
                a(f"v_mul_f32 v{12+i}, v{12+i}, v10")
    a("ds_write_b128 v9, v[12:15]")
    a.label("SYNC_YN")
    a("v_add_u32 v9, 256, v9")
    a("s_mov_b32 s56, s57")
    a("s_add_u32 s47, s47, 2048")
    a("s_cmp_lt_u32 s47, 4096")
    a("s_cbranch_scc1 SYNC_Y")
    a("v_mov_b32 v12, 1")
    a("s_waitcnt lgkmcnt(0)")
    a("ds_write_b32 v11, v12 offset:24")
    a("s_waitcnt lgkmcnt(0)")
    stamp_flush(a)
    a("s_endpgm")

    a.label("AUX_FFN0")
    a("s_cmp_eq_u32 s2, 255")
    a("s_cbranch_scc1 SELECT")
    a("s_cmp_ge_u32 s2, 112")
    a("s_cbranch_scc1 L_END")
    a("s_load_dwordx4 s[4:7], s[0:1], 56")
    a("s_load_dwordx2 s[8:9], s[0:1], 72")
    a("v_lshrrev_b32 v28, 1, v1")
    a("v_mul_u32_u24 v28, 3584, v28")
    a("v_and_b32 v7, 1, v1")
    a("v_lshl_add_u32 v28, v7, 4, v28")
    a("s_and_b32 s55, s2, 7")
    a("s_mul_i32 s55, s55, 14")
    a("s_lshr_b32 s52, s2, 3")
    a("s_add_u32 s55, s55, s52")
    a("s_lshl_b32 s54, s55, 5")
    a(f"s_mov_b32 s53, {L_KV}")
    a("s_mov_b32 s41, 0")
    a("v_and_b32 v4, 15, v1")
    a("v_lshrrev_b32 v6, 4, v1")
    a("v_and_b32 v7, 4, v1")
    a("v_lshlrev_b32 v7, 8, v7")
    a("v_lshl_add_u32 v7, v6, 4, v7")
    a("v_lshlrev_b32 v13, 8, v6")
    a("v_lshl_add_u32 v13, v4, 3, v13")
    a(f"v_add_u32 v13, 0x{L_KV:x}, v13")
    a("s_waitcnt lgkmcnt(0)")
    srd(a, 28, 4, 5, 0, 512 * 3584)
    srd(a, 32, 6, 7, 0, 512 * 3584)
    srd(a, 36, 8, 9, 0, 1792 * 1024)
    srd(a, 44, 14, 15, WS_YPART, 112 * 4096)
    a("s_barrier")
    a("s_barrier")
    a("s_barrier")
    if "noprio" not in EXP: a("s_setprio 3")
    if "skipall" in EXP: a("s_branch FFN_FLAG")
    a.label("FFN_DMA")
    a("s_mov_b32 m0, s53")
    a("s_add_u32 s53, s53, 1024")
    a("buffer_load_dwordx4 v28, s[28:31], s54 offen lds")
    a("s_add_u32 m0, m0, 16384")
    a("s_add_u32 s41, s41, 1")
    a("buffer_load_dwordx4 v28, s[32:35], s54 offen lds")
    a(f"s_add_u32 s54, s54, {32*3584}")
    a(f"s_waitcnt vmcnt({FFN_THR})")
    a("s_cmp_lt_u32 s41, 16")
    a("s_cbranch_scc1 FFN_DMA")
    if "dmaonly" in EXP: a("s_branch FFN_FLAG")
    a(f"s_mov_b32 s40, {WS_SELG}")
    poll(a, "FSEL", 2, [40], wide=True, sleep=16)
    a(f"s_mov_b32 s40, {WS_XSEL}")
    for sx in range(16):
        a(f"buffer_load_dwordx4 {vr(32+4*sx,4)}, v7, s[24:27], s40 offen offset:{64*sx} sc1")
    a("s_waitcnt vmcnt(0)")
    for which, base, acc in (("g", 0, 16), ("u", 16384, 20)):
        for half in range(2):
            for sx in range(8 * half, 8 * half + 8):
                a(f"ds_read_b64_tr_b16 {vr(96+4*(sx&7),2)}, v13 offset:{base+1024*sx}")
                a(f"ds_read_b64_tr_b16 {vr(96+4*(sx&7)+2,2)}, v13 offset:{base+1024*sx+128}")
            a("s_waitcnt lgkmcnt(0)")
            for sx in range(8 * half, 8 * half + 8):
                cc = "0" if sx == 0 else vr(acc, 4)
                a(f"v_mfma_f32_16x16x32_bf16 {vr(acc,4)}, {vr(96+4*(sx&7),4)}, {vr(32+4*sx,4)}, {cc}")
            a("s_nop 7")
    if "nodown" in EXP: a("s_branch FFN_FLAG")
    a("s_lshl_b32 s52, s55, 14")
    a(f"s_mov_b32 s53, {L_KV}")
    a("s_mov_b32 s41, 0")
    a.label("FFN_DMA2")
    a("s_mov_b32 m0, s53")
    a("s_add_u32 s53, s53, 1040")
    a("buffer_load_dwordx4 v5, s[36:39], s52 offen lds")
    a("s_add_u32 s52, s52, 1024")
    a("s_add_u32 s41, s41, 1")
    a("s_waitcnt vmcnt(7)")
    a("s_cmp_lt_u32 s41, 16")
    a("s_cbranch_scc1 FFN_DMA2")
    a("v_cvt_pk_bf16_f32 v24, v16, v17")
    a("v_cvt_pk_bf16_f32 v25, v18, v19")
    a("v_cvt_pk_bf16_f32 v26, v20, v21")
    a("v_cvt_pk_bf16_f32 v27, v22, v23")
    for i in range(4):
        a(f"v_lshlrev_b32 v{16+2*i}, 16, v{24+i}")
        a(f"v_and_b32 v{17+2*i}, s42, v{24+i}")
    for i in range(4):
        a(f"v_mul_f32 v{24+i}, 0x{f2u(NLOG2E):08x}, v{16+i}")
    for i in range(4):
        a(f"v_exp_f32 v{24+i}, v{24+i}")
    a("s_nop 0")
    for i in range(4):
        a(f"v_add_f32 v{24+i}, 1.0, v{24+i}")
    for i in range(4):
        a(f"v_rcp_f32 v{24+i}, v{24+i}")
    a("s_nop 0")
    for i in range(0, 4, 2):
        a(f"v_pk_mul_f32 {vr(16+i,2)}, {vr(16+i,2)}, {vr(24+i,2)}")
    a("v_cvt_pk_bf16_f32 v24, v16, v17")
    a("v_cvt_pk_bf16_f32 v25, v18, v19")
    for i in range(2):
        a(f"v_lshlrev_b32 v{16+2*i}, 16, v{24+i}")
        a(f"v_and_b32 v{17+2*i}, s42, v{24+i}")
    for i in range(0, 4, 2):
        a(f"v_pk_mul_f32 {vr(16+i,2)}, {vr(16+i,2)}, {vr(20+i,2)}")
    a("v_cvt_pk_bf16_f32 v24, v16, v17")
    a("v_cvt_pk_bf16_f32 v25, v18, v19")
    a("v_mov_b32 v26, v24")
    a("v_mov_b32 v27, v25")
    a("v_lshrrev_b32 v13, 2, v4")
    a("v_permlane16_swap_b32 v24, v26")
    a("v_permlane16_swap_b32 v25, v27")
    a("v_lshrrev_b32 v14, 1, v6")
    a("v_lshl_add_u32 v13, v14, 3, v13")
    a("v_mul_u32_u24 v13, 1040, v13")
    a("v_and_b32 v15, 3, v4")
    a("v_lshl_add_u32 v13, v15, 3, v13")
    a("v_and_b32 v15, 1, v6")
    a("v_lshl_add_u32 v13, v15, 5, v13")
    a(f"v_add_u32 v13, 0x{L_KV:x}, v13")
    a("v_and_b32 v15, 31, v1")
    a("v_lshlrev_b32 v14, 11, v14")
    a("v_lshl_add_u32 v14, v15, 2, v14")
    a("s_lshl_b32 s52, s2, 12")
    a("s_mov_b32 s41, 0")
    a("s_waitcnt vmcnt(0)")
    a.label("FFN_DOWN")
    for tl in range(4):
        a(f"ds_read_b64_tr_b16 {vr(96+4*tl,2)}, v13 offset:{64*tl}")
        a(f"ds_read_b64_tr_b16 {vr(98+4*tl,2)}, v13 offset:{64*tl+4160}")
    a("s_waitcnt lgkmcnt(0)")
    for tl in range(4):
        a(f"v_mfma_f32_32x32x16_bf16 {vr(32+16*tl,16)}, v[24:27], {vr(96+4*tl,4)}, 0")
    a("v_add_u32 v13, 256, v13")
    a("s_add_u32 s41, s41, 1")
    a("s_nop 11")
    for tl in range(4):
        a(f"buffer_store_dword v{32+16*tl}, v14, s[44:47], s52 offen offset:{128*tl} sc1")
    a("s_add_u32 s52, s52, 512")
    a("s_cmp_lt_u32 s41, 4")
    a("s_cbranch_scc1 FFN_DOWN")
    a("s_waitcnt vmcnt(0)")
    a.label("FFN_FLAG")
    a("v_mov_b32 v3, s60")
    a("s_lshl_b32 s40, s2, 7")
    a(f"s_add_u32 s40, s40, {WS_FLAGF}")
    a("s_mov_b64 exec, 1")
    a("buffer_store_dword v3, v2, s[24:27], s40 offen sc1")
    stamp_flush(a)
    a("s_endpgm")

    a.label("SELECT")
    a("s_barrier")
    a("s_barrier")
    a(f"s_mov_b32 s40, {WS_TOPC}")
    a("buffer_load_dwordx4 v[8:11], v5, s[24:27], s40 offen sc1")
    a("buffer_load_dwordx4 v[12:15], v5, s[24:27], s40 offen offset:1024 sc1")
    a("s_barrier")
    a("s_setprio 3")
    a("s_waitcnt vmcnt(0)")
    for rnd in range(2):
        a("v_max3_u32 v16, v8, v9, v10")
        a("v_max3_u32 v17, v11, v12, v13")
        a("v_max3_u32 v16, v14, v15, v16")
        a("v_max_u32 v16, v16, v17")
        wave_reduce_rows(a, [16], op="v_max_u32")
        a("s_nop 0")
        a(f"v_readlane_b32 s{48+rnd}, v16, 63")
        a("s_nop 1")
        if rnd == 0:
            for i in range(8):
                a(f"v_cmp_eq_u32 vcc, s48, v{8+i}")
                a("s_nop 1")
                a(f"v_cndmask_b32 v{8+i}, v{8+i}, 0, vcc")
    for t in range(2):
        a(f"s_and_b32 s{50+t}, s{48+t}, 0xffff")
        a(f"s_sub_u32 s{50+t}, 2047, s{50+t}")
        a(f"s_lshl_b32 s52, s{50+t}, 10")
        a(f"buffer_load_dwordx4 {vr(8+4*t,4)}, v5, s[20:23], s52 offen")
        a(f"s_lshl_b32 s52, s{50+t}, 4")
        a(f"s_add_u32 s52, s52, {WS_STATS}")
        a(f"buffer_load_dwordx2 {vr(16+2*t,2)}, v2, s[24:27], s52 offen sc1")
    a("s_waitcnt vmcnt(0)")
    for t in range(2):
        for j in range(4):
            a(f"v_lshlrev_b32 v{32+8*t+2*j}, 16, v{8+4*t+j}")
            a(f"v_and_b32 v{33+8*t+2*j}, s42, v{8+4*t+j}")
        a(f"v_sub_f32 v{20+4*t}, 0, v{16+2*t}")
        a(f"v_sub_f32 v{21+4*t}, 0, v{16+2*t}")
        a(f"v_mov_b32 v{22+4*t}, v{17+2*t}")
        a(f"v_mov_b32 v{23+4*t}, v{17+2*t}")
    ln_normalize(a, [8, 12], 32, 48, [20, 24], [22, 26], 42)
    a(f"s_mov_b32 s40, {WS_XSEL}")
    a("buffer_store_dwordx4 v[8:11], v5, s[24:27], s40 offen sc1")
    a("buffer_store_dwordx4 v[12:15], v5, s[24:27], s40 offen offset:1024 sc1")
    a("v_mov_b32 v16, s60")
    a("v_mov_b32 v17, s48")
    a("v_mov_b32 v18, s49")
    a("v_mov_b32 v19, s60")
    a(f"s_mov_b32 s40, {WS_SELG}")
    a("s_waitcnt vmcnt(0)")
    a("s_mov_b64 exec, 1")
    a("buffer_store_dwordx4 v[16:19], v2, s[24:27], s40 offen sc1")
    a("s_endpgm")
    a.label("R_LN")

    a("s_lshl_b32 s43, s19, 3")
    a("s_add_u32 s43, s43, s17")
    a("s_lshl_b32 s44, s16, 1")
    a("s_add_u32 s44, s44, s43")
    a("s_lshl_b32 s45, s44, 10")
    NR = 2
    R = range(NR)
    XU, D = 32, 48
    STV = 96
    a(f"s_mul_i32 s40, s16, {NR*1040}")
    a(f"s_add_u32 s40, s40, {L_XN}")
    a("v_add_u32 v3, s40, v5")
    a(f"v_add_u32 v4, 0x{P1_WR:x}, v5")
    a("s_barrier")
    lds_wait(a, "LN0", need_imm=1, vt=84)
    stamp(a, 1)
    a("v_mov_b32 v104, 0")
    a("buffer_load_dword v105, v104, s[72:75], 0 offen sc1")
    for i in R:
        a(f"ds_read_b128 {vr(8+4*i,4)}, v3 offset:{1040*i}")
    a(f"ds_read_b128 {vr(24,4)}, v4")
    for i in R:
        a(f"s_waitcnt lgkmcnt({NR - i})")
        for j in range(4):
            a(f"v_lshlrev_b32 v{XU+8*i+2*j}, 16, v{8+4*i+j}")
            a(f"v_and_b32 v{XU+8*i+2*j+1}, s42, v{8+4*i+j}")
    for i in R:
        a(f"v_pk_add_f32 {vr(72+2*i,2)}, {vr(XU+8*i,2)}, {vr(XU+8*i+2,2)}")
        a(f"v_pk_add_f32 {vr(80+2*i,2)}, {vr(XU+8*i+4,2)}, {vr(XU+8*i+6,2)}")
    for i in R:
        a(f"v_pk_add_f32 {vr(72+2*i,2)}, {vr(72+2*i,2)}, {vr(80+2*i,2)}")
    for i in R:
        a(f"v_add_f32 v{64+i}, v{72+2*i}, v{73+2*i}")
    wave_reduce_rows(a, [64 + i for i in R])
    a("s_nop 0")
    for i in R:
        a(f"v_readlane_b32 s{48+i}, v{64+i}, 63")
    a("v_mov_b32 v68, 0xbb000000")
    a("s_nop 1")
    for i in R:
        a(f"v_mul_f32 v{72+2*i}, s{48+i}, v68")
        a(f"v_mul_f32 v{73+2*i}, s{48+i}, v68")
    for i in R:
        for j in range(4):
            a(f"v_pk_add_f32 {vr(D+8*i+2*j,2)}, {vr(XU+8*i+2*j,2)}, {vr(72+2*i,2)}")
    for i in R:
        a(f"v_pk_mul_f32 {vr(80+2*i,2)}, {vr(D+8*i,2)}, {vr(D+8*i,2)}")
    for j in range(1, 4):
        for i in R:
            a(f"v_pk_fma_f32 {vr(80+2*i,2)}, {vr(D+8*i+2*j,2)}, {vr(D+8*i+2*j,2)}, {vr(80+2*i,2)}")
    for i in R:
        a(f"v_add_f32 v{64+i}, v{80+2*i}, v{81+2*i}")
    wave_reduce_rows(a, [64 + i for i in R])
    a("s_nop 0")
    for i in R:
        a(f"v_readlane_b32 s{52+i}, v{64+i}, 63")
    a("s_nop 1")
    for i in R:
        a(f"v_cvt_pk_bf16_f32 v{72+2*i}, v{72+2*i}, v{72+2*i}")
    for i in R:
        a(f"v_and_b32 v{73+2*i}, s42, v{72+2*i}")
        a(f"v_lshlrev_b32 v{72+2*i}, 16, v{72+2*i}")
    for i in R:
        a(f"v_mul_f32 v{64+i}, s{52+i}, -v68")
    for op in ("add", "sqrt", "rcp"):
        a("v_cvt_pk_bf16_f32 v66, v64, v65")
        a("v_lshlrev_b32 v64, 16, v66")
        a("v_and_b32 v65, s42, v66")
        for i in R:
            if op == "add":
                a(f"v_add_f32 v{64+i}, 0x{f2u(1e-5):08x}, v{64+i}")
            elif op == "sqrt":
                a(f"v_sqrt_f32 v{64+i}, v{64+i}")
            else:
                a(f"v_rcp_f32 v{80+2*i}, v{64+i}")
        if op == "sqrt":
            a("s_nop 0")
    a("s_nop 1")
    for i in R:
        a(f"v_mov_b32 v{81+2*i}, v{80+2*i}")
    ln_normalize(a, [8, 12], XU, D, [72, 74], [80, 82], 42)
    a("s_waitcnt lgkmcnt(0)")
    for i in R:
        a(f"v_mov_b32 v{64+i}, 0")
    for j in range(4):
        for i in R:
            a(f"v_dot2c_f32_bf16 v{64+i}, v{8+4*i+j}, v{24+j}")
    for i in R:
        a(f"v_sub_f32 v{STV+4*i}, 0, v{72+2*i}")
        a(f"v_mov_b32 v{STV+4*i+1}, v{80+2*i}")
    wave_reduce_rows(a, [64 + i for i in R])
    a("v_cvt_pk_bf16_f32 v66, v64, v65")
    a("v_lshlrev_b32 v64, 16, v66")
    a("v_and_b32 v65, s42, v66")
    for i in R:
        a(f"v_ashrrev_i32 v{68+i}, 31, v{64+i}")
    for i in R:
        a(f"v_or_b32 v{68+i}, 0x80000000, v{68+i}")
    for i in R:
        a(f"v_xor_b32 v{64+i}, v{64+i}, v{68+i}")
        a(f"s_sub_u32 s{48+i}, {2047-i}, s44")
    for i in R:
        a(f"v_and_b32 v{64+i}, s42, v{64+i}")
    for i in R:
        a(f"v_or_b32 v{64+i}, s{48+i}, v{64+i}")
    a("s_lshl_b32 s40, s16, 3")
    a(f"s_add_u32 s40, s40, {L_KEY}")
    a("v_mov_b32 v4, s40")
    a("v_cmp_eq_u32 vcc, 63, v1")
    for i in R:
        a(f"ds_write_b128 v3, {vr(8+4*i,4)} offset:{1040*i}")
    a("s_and_saveexec_b64 s[56:57], vcc")
    a("ds_write_b64 v4, v[64:65]")
    a("s_mov_b64 exec, s[56:57]")
    a("v_and_b32 v3, 15, v1")
    a("v_lshrrev_b32 v4, 4, v1")
    a("s_waitcnt lgkmcnt(0)")
    a("v_mov_b32 v6, 1")
    lds_add(a, 86, 6, 12)
    stamp(a, 2)
    a("s_waitcnt vmcnt(0)")
    a("v_readfirstlane_b32 s60, v105")
    a("s_cmp_lg_u32 s60, 0")
    a("s_cbranch_scc1 TAGX_LN")
    get_tag(a, "LN", 104)
    for i in R:
        a(f"v_mov_b32 v{STV+4*i+2}, s60")
        a(f"v_mov_b32 v{STV+4*i+3}, s60")
    a("s_lshl_b32 s40, s44, 4")
    a(f"s_add_u32 s40, s40, {WS_STATS}")
    a("s_mov_b64 exec, 1")
    for i in R:
        a(f"buffer_store_dwordx4 {vr(STV+4*i,4)}, v104, s[24:27], s40 offen offset:{16*i} sc1")
    a("s_mov_b64 exec, -1")
    lds_wait(a, "LN1", need_imm=4, off=12, two=False, vt=84)
    lds_wait(a, "LN2", need_imm=2, vt=84)
    a("s_cmp_ge_u32 s16, 2")
    a("s_cbranch_scc1 LN_MISC")
    a("v_and_b32 v6, 7, v1")
    a("v_mul_u32_u24 v6, 1040, v6")
    a("v_lshl_add_u32 v6, v4, 4, v6")
    a(f"v_add_u32 v6, {L_XN}, v6")
    a("v_lshlrev_b32 v7, 8, v4")
    a("v_lshl_add_u32 v7, v3, 3, v7")
    a("s_lshl_b32 s40, s16, 14")
    a(f"s_add_u32 s40, s40, {P1_KV}")
    a("v_add_u32 v7, s40, v7")
    a("s_cmp_eq_u32 s16, 1")
    a("s_cbranch_scc1 LN_V")
    for part in ("K", "V"):
        if part == "V":
            a.label("LN_V")
        for half in range(2):
            for s in range(8 * half, 8 * half + 8):
                a(f"ds_read_b128 {vr(32+4*(s&7),4)}, v6 offset:{64*s}")
                a(f"ds_read_b64_tr_b16 {vr(64+4*(s&7),2)}, v7 offset:{1024*s}")
                a(f"ds_read_b64_tr_b16 {vr(64+4*(s&7)+2,2)}, v7 offset:{1024*s+128}")
            for s in range(8 * half, 8 * half + 8):
                k = s & 7
                if k in (0, 4):
                    a(f"s_waitcnt lgkmcnt({12 if k == 0 else 0})")
                cc = "0" if s == 0 else vr(8, 4)
                if part == "K":
                    a(f"v_mfma_f32_16x16x32_bf16 {vr(8,4)}, {vr(64+4*k,4)}, {vr(32+4*k,4)}, {cc}")
                else:
                    a(f"v_mfma_f32_16x16x32_bf16 {vr(8,4)}, {vr(32+4*k,4)}, {vr(64+4*k,4)}, {cc}")
            a("s_nop 7")
        if part == "K":
            a("v_lshrrev_b32 v7, 1, v4")
            a("v_lshl_add_u32 v7, v7, 5, v3")
            a("v_lshlrev_b32 v7, 4, v7")
            a("v_and_b32 v14, 1, v4")
            a("v_lshl_add_u32 v7, v14, 3, v7")
            a("s_lshr_b32 s40, s43, 5")
            a("s_lshl_b32 s40, s40, 10")
            a("s_and_b32 s41, s43, 31")
            a("s_lshl_b32 s41, s41, 4")
            a("s_add_u32 s40, s40, s41")
            a("v_cmp_gt_u32 vcc, 8, v3")
        else:
            a("v_and_b32 v7, 3, v3")
            a("v_and_b32 v14, 4, v3")
            a("v_lshl_add_u32 v7, v14, 1, v7")
            a("v_lshrrev_b32 v14, 3, v3")
            a("v_lshl_add_u32 v7, v14, 2, v7")
            a("v_lshlrev_b32 v7, 4, v7")
            a("v_lshl_add_u32 v7, v4, 3, v7")
            a("s_lshr_b32 s40, s43, 4")
            a("s_lshl_b32 s40, s40, 10")
            a("s_and_b32 s41, s43, 8")
            a("s_lshl_b32 s41, s41, 6")
            a("s_add_u32 s40, s40, s41")
            a(f"s_add_u32 s40, s40, {WS_VFRAG}")
            a("v_cmp_gt_u32 vcc, 32, v1")
        a("v_cvt_pk_bf16_f32 v12, v8, v9")
        a("v_cvt_pk_bf16_f32 v13, v10, v11")
        a("s_and_saveexec_b64 s[56:57], vcc")
        a("buffer_store_dwordx2 v[12:13], v7, s[24:27], s40 offen sc1")
        a("s_mov_b64 exec, s[56:57]")
        a("s_branch LN_DONE")
    a.label("LN_MISC")
    a("s_cmp_eq_u32 s16, 2")
    a("s_cbranch_scc1 LN_TOP")
    a("v_add_u32 v6, 16, v1")
    a("v_lshlrev_b32 v6, 4, v6")
    a("v_and_b32 v7, 11, v1")
    a("v_mov_b32 v8, 0x3f803f80")
    a("v_cmp_eq_u32 vcc, 0, v7")
    a("s_lshr_b32 s40, s43, 4")
    a("s_lshl_b32 s40, s40, 10")
    a("v_cndmask_b32 v8, 0, v8, vcc")
    a("v_mov_b32 v9, v8")
    a("v_mov_b32 v10, v8")
    a("v_mov_b32 v11, v8")
    a("s_and_b32 s41, s43, 8")
    a("s_lshl_b32 s41, s41, 6")
    a("s_add_u32 s40, s40, s41")
    a(f"s_add_u32 s40, s40, {WS_VFRAG}")
    a("v_cmp_gt_u32 vcc, 16, v1")
    a("s_and_saveexec_b64 s[56:57], vcc")
    a("buffer_store_dwordx4 v[8:11], v6, s[24:27], s40 offen sc1")
    a("s_mov_b64 exec, s[56:57]")
    a("s_branch LN_MISC2")
    a.label("LN_TOP")
    a("v_and_b32 v3, 7, v1")
    a("v_lshlrev_b32 v3, 2, v3")
    a(f"v_add_u32 v3, 0x{L_KEY:x}, v3")
    a("ds_read_b32 v8, v3")
    a("s_waitcnt lgkmcnt(0)")
    a("v_mov_b32 v10, v8")
    wave_reduce_rows(a, [10], op="v_max_u32", nsteps=3)
    a("v_cmp_eq_u32 vcc, v8, v10")
    a("s_nop 1")
    a("v_cndmask_b32 v11, v8, 0, vcc")
    wave_reduce_rows(a, [11], op="v_max_u32", nsteps=3)
    a("s_lshl_b32 s40, s2, 3")
    a(f"s_add_u32 s40, s40, {WS_TOPC}")
    a("v_mov_b32 v3, 0")
    a("v_cmp_eq_u32 vcc, 0, v1")
    a("s_and_saveexec_b64 s[56:57], vcc")
    a("buffer_store_dwordx2 v[10:11], v3, s[24:27], s40 offen sc1")
    a("s_mov_b64 exec, s[56:57]")
    a.label("LN_MISC2")
    a.label("LN_DONE")
    a("s_waitcnt vmcnt(0)")
    stamp(a, 3)
    a("s_barrier")
    a("s_mov_b32 s46, 0")
    a("s_branch ATT")

    a.label("R_GEMM")
    gemm_addr(a, P1_W)
    stamp(a, 1)
    gemm_loop_p1(a)
    stamp(a, 3)
    a("s_waitcnt vmcnt(0)")
    a("v_readfirstlane_b32 s60, v121")
    a("s_cmp_lg_u32 s60, 0")
    a("s_cbranch_scc1 TAGX_G")
    get_tag(a, "G", 2)
    a("s_lshr_b32 s40, s16, 1")
    a("s_lshl_b32 s40, s40, 5")
    a("s_add_u32 s40, s40, s17")
    a("s_lshl_b32 s40, s40, 4")
    a(f"s_add_u32 s40, s40, {WS_STATS}")
    a("v_and_b32 v2, 31, v1")
    a("v_lshlrev_b32 v2, 4, v2")
    a("s_lshl_b32 s41, s16, 11")
    a(f"s_add_u32 s41, s41, {L_Q}")
    a("v_lshlrev_b32 v5, 4, v1")
    a("v_add_u32 v3, s41, v5")
    a("s_barrier")
    poll(a, "ST", 2, [40], wide=True, cmpw=(22, 23))
    a(f"v_mul_f32 v6, 0x{f2u(SCALE):08x}, v21")
    a("v_mul_f32 v7, v20, v6")
    for i in range(16):
        a(f"v_mul_f32 v{ACC+i}, v{ACC+i}, v6")
    for i in range(16):
        a(f"v_fma_f32 v{ACC+i}, -v{ACC2+i}, v7, v{ACC+i}")
    for i in range(8):
        a(f"v_cvt_pk_bf16_f32 v{FR+i}, v{ACC+2*i}, v{ACC+2*i+1}")
    a(f"ds_write_b128 v3, {vr(FR,4)}")
    a(f"ds_write_b128 v3, {vr(FR+4,4)} offset:1024")
    a("s_mov_b32 s46, 1")

    a.label("ATT")
    a("s_lshl_b32 s44, s16, 14")
    a("s_lshl_b32 s45, s16, 15")
    a(f"s_add_u32 s45, s45, {WS_VFRAG}")
    a(f"v_mov_b32 v{IDX}, 0xdddddddd")
    for i in range(0, 64, 2):
        a(f"v_mov_b64 {vr(O0+i,2)}, 0")
    for i in range(0, 4, 2):
        a(f"v_mov_b64 {vr(VB+12+i,2)}, 0")
    for i in range(0, 8, 2):
        a(f"v_mov_b64 {vr(S0+24+i,2)}, 0")
    a("s_lshl_b32 s40, s46, 12")
    a(f"s_add_u32 s40, s40, {L_Q}")
    for i in range(4):
        a(f"s_add_u32 s41, s16, {i}")
        a("s_and_b32 s41, s41, 3")
        a("s_lshl_b32 s41, s41, 10")
        a("s_add_u32 s41, s41, s40")
        a(f"v_add_u32 v{10+i}, s41, v5")
    a("s_waitcnt lgkmcnt(0)")
    a("s_barrier")
    stamp(a, 4)
    a(f"buffer_load_dwordx4 {vr(KB,4)}, v5, s[24:27], s44 offen")
    a(f"buffer_load_dwordx4 {vr(VB,4)}, v5, s[24:27], s45 offen")
    a(f"buffer_load_dwordx4 {vr(VB+4,4)}, v5, s[24:27], s45 offen offset:1024")
    a(f"buffer_load_dwordx4 {vr(KB+4,4)}, v5, s[24:27], s44 offen offset:1024")
    a(f"buffer_load_dwordx4 {vr(VB+8,4)}, v5, s[24:27], s45 offen offset:2048")
    a("s_add_u32 s44, s44, 2048")
    a("s_add_u32 s45, s45, 3072")
    for i in range(4):
        a(f"ds_read_b128 {vr(Q0+4*i,4)}, v{10+i}")
    a("s_waitcnt lgkmcnt(0)")
    a("s_barrier")
    a("s_waitcnt vmcnt(4)")
    a(f"v_mfma_f32_32x32x16_bf16 {vr(S0,16)}, {vr(KB,4)}, {vr(Q0,4)}, 0")
    a("s_mov_b32 s47, 0")
    stamp(a, 5)
    a("s_nop 15")
    a.raw(".p2align 6")
    a.label("ATT_LOOP")
    for X in range(8):
        t = X >> 2
        c = X & 3
        Sx = S0 + 16 * (X & 1)
        Sp = S0 + 16 * ((X + 1) & 1)
        cp = (c - 1) & 3
        tp = ((X - 1) >> 2) & 1
        cn = (c + 1) & 3
        tn = ((X + 1) >> 2) & 1
        for e in range(16):
            a(f"v_exp_f32 v{Sx+e}, v{Sx+e}")
            if e == 1:
                if c == 1:
                    a("s_waitcnt vmcnt(3)")
                a(f"v_smfmac_f32_32x32x32_bf16 {vr(O0+16*cp,16)}, {vr(VB+8*tp+4,4)}, {vr(Sp+8,8)}, v{IDX}")
                if c == 0:
                    a(f"buffer_load_dwordx4 {vr(VB+8*tp+4,4)}, v5, s[24:27], s45 offen")
                    a("s_add_u32 s45, s45, 1024")
            if e == 4:
                if c == 3:
                    a("s_waitcnt vmcnt(3)")
                a(f"v_mfma_f32_32x32x16_bf16 {vr(Sp,16)}, {vr(KB+4*tn,4)}, {vr(Q0+4*cn,4)}, 0")
                if c == 2:
                    a(f"buffer_load_dwordx4 {vr(KB+4*t,4)}, v5, s[24:27], s44 offen")
                    a("s_add_u32 s44, s44, 1024")
            if e == 14:
                if c == 0:
                    a("s_waitcnt vmcnt(4)")
                a(f"v_smfmac_f32_32x32x32_bf16 {vr(O0+16*c,16)}, {vr(VB+8*t,4)}, {vr(Sx,8)}, v{IDX}")
                if c == 3:
                    a(f"buffer_load_dwordx4 {vr(VB+8*t,4)}, v5, s[24:27], s45 offen")
                    a("s_add_u32 s45, s45, 1024")
    a("s_add_u32 s47, s47, 1")
    a("s_cmp_lt_u32 s47, 8")
    a("s_cbranch_scc1 ATT_LOOP")
    stamp(a, 6)
    a("s_nop 1")
    a(f"v_smfmac_f32_32x32x32_bf16 {vr(O0+48,16)}, {vr(VB+8+4,4)}, {vr(S0+16+8,8)}, v{IDX}")
    a("s_mul_i32 s40, s46, 27648")
    a("v_lshlrev_b32 v9, 2, v1")
    for i in range(1, 4):
        a(f"s_add_u32 s41, s16, {i}")
        a("s_and_b32 s41, s41, 3")
        a("s_mul_i32 s41, s41, 6912")
        a("s_add_u32 s41, s41, s40")
        a(f"v_add_u32 v{9+i}, s41, v5")
        a(f"v_add_u32 v{12+i}, s41, v9")
    a("s_mul_i32 s41, s16, 6912")
    a("s_add_u32 s41, s41, s40")
    a("v_add_u32 v6, s41, v5")
    a("v_add_u32 v7, s41, v9")
    for i in range(1, 4):
        a(f"ds_write_b128 v{9+i}, {vr(O0+16*i,4)} offset:{2304*(i-1)}")
        a(f"ds_write_b128 v{9+i}, {vr(O0+16*i+4,4)} offset:{2304*(i-1)+1024}")
        a(f"ds_write_b32 v{12+i}, v{O0+16*i+8} offset:{2304*(i-1)+2048}")
    srd(a, 32, 14, 15, WS_O, 2048 * 1024)
    a("s_mov_b32 s67, 0")
    a("s_waitcnt lgkmcnt(0)")
    a("s_cmp_eq_u32 s46, 1")
    a("s_cbranch_scc1 ATT_BR")
    a("s_load_dwordx2 s[68:69], s[0:1], 80")
    a("s_lshr_b32 s64, s16, 1")
    a("s_lshl_b32 s64, s64, 5")
    a("s_add_u32 s64, s64, s17")
    a("s_and_b32 s40, s16, 1")
    a("s_lshl_b32 s40, s40, 5")
    a("s_add_u32 s40, s40, s18")
    a("s_lshl_b32 s65, s64, 10")
    a("s_lshl_b32 s40, s40, 1")
    a("s_add_u32 s65, s65, s40")
    a("s_add_u32 s66, s65, 16384")
    a("s_waitcnt vmcnt(0)")
    p3_pre(a, False)
    a("s_waitcnt lgkmcnt(0)")
    a.label("ATT_BR")
    a("s_barrier")
    stamp(a, 7)
    Rr = O0
    for i in range(1, 4):
        a(f"ds_read_b128 {vr(Rr+16*i,4)}, v6 offset:{2304*(i-1)}")
        a(f"ds_read_b128 {vr(Rr+16*i+4,4)}, v6 offset:{2304*(i-1)+1024}")
        a(f"ds_read_b32 v{Rr+16*i+8}, v7 offset:{2304*(i-1)+2048}")
    a("s_mov_b32 s48, 0x7f000000")
    a("s_mov_b32 s49, 0x1f800000")
    a("s_mov_b32 s50, 0x5f800000")
    a("v_and_b32 v2, 31, v1")
    a("v_lshrrev_b32 v3, 5, v1")
    a("v_mul_u32_u24 v4, 144, v2")
    a("v_lshl_add_u32 v4, v3, 4, v4")
    a("s_mul_i32 s40, s46, 4608")
    a("s_lshl_b32 s41, s16, 5")
    a("s_add_u32 s40, s40, s41")
    a(f"s_add_u32 s40, s40, {L_KV}")
    a("v_add_u32 v4, s40, v4")
    a("v_lshrrev_b32 v2, 3, v1")
    a("v_and_b32 v3, 7, v1")
    a("v_mul_u32_u24 v15, 144, v2")
    a("v_lshl_add_u32 v15, v3, 4, v15")
    a("s_mul_i32 s40, s78, 1152")
    a(f"s_add_u32 s40, s40, {L_KV - 4*1152}")
    a("v_add_u32 v15, s40, v15")
    a("v_lshlrev_b32 v2, 10, v2")
    a("v_lshl_add_u32 v2, v3, 4, v2")
    a("s_lshl_b32 s40, s78, 3")
    a("s_add_u32 s40, s40, s17")
    a("s_sub_u32 s40, s40, 32")
    a("s_lshl_b32 s40, s40, 10")
    a("s_lshl_b32 s41, s18, 1")
    a("s_add_u32 s51, s40, s41")
    for i in range(1, 4):
        a(f"s_waitcnt lgkmcnt({3*(3-i)})")
        for j in range(0, 8, 2):
            a(f"v_pk_add_f32 {vr(Rr+j,2)}, {vr(Rr+j,2)}, {vr(Rr+16*i+j,2)}")
        a(f"v_add_f32 v{Rr+8}, v{Rr+8}, v{Rr+16*i+8}")
    a(f"v_add_f32 v11, abs(v{Rr}), abs(v{Rr+1})")
    a(f"v_add_f32 v12, abs(v{Rr+2}), abs(v{Rr+3})")
    a(f"v_add_f32 v13, abs(v{Rr+4}), abs(v{Rr+5})")
    a(f"v_add_f32 v14, abs(v{Rr+6}), abs(v{Rr+7})")
    a("v_add_f32 v11, v11, v12")
    a("v_add_f32 v13, v13, v14")
    a("v_add_f32 v11, v11, v13")
    a("v_cmp_gt_f32 s[52:53], s48, v11")
    a(f"v_cmp_le_f32 s[54:55], s49, v{Rr+8}")
    a(f"v_cmp_ge_f32 vcc, s50, v{Rr+8}")
    a("s_and_b64 s[52:53], s[52:53], s[54:55]")
    a("s_and_b64 s[52:53], s[52:53], vcc")
    a("s_cmp_eq_u64 s[52:53], -1")
    a("s_cbranch_scc0 ATT_SLOW")
    a.label("ATT_FIN")
    a(f"v_rcp_f32 v11, v{Rr+8}")
    a("s_nop 0")
    for i in range(8):
        a(f"v_mul_f32 v{Rr+i}, v{Rr+i}, v11")
    for i in range(4):
        a(f"v_cvt_pk_bf16_f32 v{Rr+12+i}, v{Rr+2*i}, v{Rr+2*i+1}")
    a(f"ds_write_b128 v4, {vr(Rr+12,4)}")
    a("s_waitcnt lgkmcnt(0)")
    a("s_barrier")
    a(f"ds_read_b128 {vr(Rr+12,4)}, v15")
    a("s_waitcnt lgkmcnt(0)")
    a(f"buffer_store_dwordx4 {vr(Rr+12,4)}, v2, s[32:35], s51 offen sc1")
    a("s_waitcnt vmcnt(0)")
    stamp(a, 8)
    a("s_barrier")
    a("s_cmp_eq_u32 s46, 0")
    a("s_cbranch_scc1 P3")
    stamp_flush(a)
    a.label("L_END")
    a("s_endpgm")

    a.label("ATT_SLOW")
    a("s_mov_b32 s67, 1")
    a("v_mov_b32 v11, 0xff7fffff")
    a("s_mov_b32 s44, 0")
    a.label("ATT_SLOW1")
    a(f"buffer_load_dwordx4 {vr(KB,4)}, v5, s[24:27], s44 offen")
    a("s_waitcnt vmcnt(0)")
    a(f"v_mfma_f32_32x32x16_bf16 {vr(S0,16)}, {vr(KB,4)}, {vr(Q0,4)}, 0")
    a("s_nop 15")
    a("s_nop 3")
    for i in range(0, 16, 2):
        a(f"v_max3_f32 v11, v{S0+i}, v{S0+i+1}, v11")
    a("s_add_u32 s44, s44, 1024")
    a("s_cmp_lt_u32 s44, 0x10000")
    a("s_cbranch_scc1 ATT_SLOW1")
    a("v_mov_b32 v9, v11")
    a("s_nop 1")
    a("v_permlane32_swap_b32 v11, v9")
    a("s_nop 1")
    a("v_max_f32 v11, v11, v9")
    for i in range(16):
        a(f"v_sub_f32 v{S0+16+i}, 0, v11")
    for i in range(0, 16, 2):
        a(f"v_mov_b64 {vr(Rr+i,2)}, 0")
    a("s_mov_b32 s44, 0")
    a(f"s_mov_b32 s45, {WS_VFRAG}")
    a.label("ATT_SLOW2")
    a(f"buffer_load_dwordx4 {vr(KB,4)}, v5, s[24:27], s44 offen")
    a(f"buffer_load_dwordx4 {vr(VB,4)}, v5, s[24:27], s45 offen")
    a(f"buffer_load_dwordx4 {vr(VB+4,4)}, v5, s[24:27], s45 offen offset:1024")
    a("s_waitcnt vmcnt(0)")
    a(f"v_mfma_f32_32x32x16_bf16 {vr(S0,16)}, {vr(KB,4)}, {vr(Q0,4)}, {vr(S0+16,16)}")
    a("s_nop 15")
    a("s_nop 3")
    for e in range(16):
        a(f"v_exp_f32 v{S0+e}, v{S0+e}")
    a("s_nop 1")
    a(f"v_smfmac_f32_32x32x32_bf16 {vr(Rr,16)}, {vr(VB,4)}, {vr(S0,8)}, v{IDX}")
    a(f"v_smfmac_f32_32x32x32_bf16 {vr(Rr,16)}, {vr(VB+4,4)}, {vr(S0+8,8)}, v{IDX}")
    a("s_nop 15")
    a("s_nop 3")
    a("s_add_u32 s44, s44, 1024")
    a("s_add_u32 s45, s45, 2048")
    a("s_cmp_lt_u32 s44, 0x10000")
    a("s_cbranch_scc1 ATT_SLOW2")
    a("s_branch ATT_FIN")

    a.label("P3")
    a(f"v_mov_b32 v2, 0x{L_MISC:x}")
    a("ds_read_b64 v[2:3], v2 offset:8")
    a("s_mov_b32 s70, 0x200000")
    a("s_mov_b32 s71, 0x00020000")
    a("s_waitcnt lgkmcnt(0)")
    a("v_readfirstlane_b32 s56, v2")
    a("v_readfirstlane_b32 s57, v3")
    for t in range(2):
        a(f"s_and_b32 s58, s{56+t}, 0xffff")
        a("s_sub_u32 s58, 2047, s58")
        a("s_sub_u32 s58, s58, s64")
        a("s_or_b32 s59, s67, 2")
        a("s_cmp_lt_u32 s58, 32")
        a("s_cselect_b32 s67, s59, s67")
    a(f"v_lshrrev_b32 v{PV}, 2, v1")
    a(f"v_and_b32 v{PV+1}, 3, v1")
    gemm_addr(a, L_W)
    a("s_mul_i32 s40, s16, 4352")
    a(f"s_add_u32 s40, s40, {L_KV + 13312}")
    a("v_lshlrev_b32 v14, 4, v1")
    a("v_add_u32 v14, s40, v14")
    a(f"v_lshrrev_b32 v15, 1, v{PV+1}")
    a("v_mul_u32_u24 v15, 2176, v15")
    a(f"v_and_b32 v2, 1, v{PV+1}")
    a("v_lshl_add_u32 v15, v2, 9, v15")
    a(f"v_lshl_add_u32 v15, v{PV}, 4, v15")
    a("v_add_u32 v15, s40, v15")
    for i in range(0, 16, 2):
        a(f"v_mov_b64 {vr(ACC+i,2)}, 0")
    a("s_mov_b32 s41, 0")
    stamp(a, 9)
    a(f"v_mov_b32 v4, 0x{L_MISC:x}")
    a.label("P3_LOOP")
    a("ds_read_b64 v[2:3], v4 offset:16")
    a("s_waitcnt lgkmcnt(0)")
    a("v_and_b32 v2, v2, v3")
    a("s_nop 0")
    a("v_readfirstlane_b32 s40, v2")
    a("s_andn2_b32 s40, s40, s41")
    a("s_cbranch_scc0 P3_LOOP")
    a.label("P3_CH")
    a("s_ff1_i32_b32 s43, s40")
    a("s_bitset1_b32 s41, s43")
    a("s_bitset0_b32 s40, s43")
    a("s_lshl_b32 s43, s43, 13")
    a("v_add_u32 v64, s43, v6")
    for i in range(4):
        a(f"v_add_u32 v{65+i}, s43, v{10+i}")
    for sx in range(4):
        a(f"ds_read_b64_tr_b16 {vr(FR+8*sx,2)}, v64 offset:{sx*2048}")
        a(f"ds_read_b64_tr_b16 {vr(FR+8*sx+2,2)}, v64 offset:{sx*2048+512}")
        a(f"ds_read_b128 {vr(FR+8*sx+4,4)}, v{65+sx}")
    for sx in range(4):
        a(f"s_waitcnt lgkmcnt({3*(3-sx)})")
        a(f"v_mfma_f32_32x32x16_bf16 {vr(ACC,16)}, {vr(FR+8*sx,4)}, {vr(FR+8*sx+4,4)}, {vr(ACC,16)}")
    a("s_cmp_lg_u32 s40, 0")
    a("s_cbranch_scc1 P3_CH")
    a("s_cmp_lg_u32 s41, 0xff")
    a("s_cbranch_scc1 P3_LOOP")
    a("s_cmp_lg_u32 s67, 0")
    a("s_cbranch_scc1 P3_REDO")
    a.label("P3_GO")
    a("s_nop 15")
    stamp(a, 12)
    for ch in range(4):
        a(f"ds_write_b128 v14, {vr(ACC+4*ch,4)} offset:{1088*ch}")
    a("s_waitcnt lgkmcnt(0)")
    for j in range(2):
        for e in range(2):
            a(f"ds_read_b128 {vr(FR+8*j+4*e,4)}, v15 offset:{j*256+e*1088}")
    a("s_waitcnt lgkmcnt(0)")
    for i in range(8):
        a(f"v_pk_fma_f32 {vr(FR+2*i,2)}, {vr(FR+2*i,2)}, {vr(PG+2*i,2)}, {vr(PXF+2*i,2)}")
    for i in range(8):
        a(f"v_cvt_pk_bf16_f32 v{64+i}, v{FR+2*i}, v{FR+2*i+1}")
    a(f"buffer_store_dwordx4 {vr(64,4)}, v{PV+2}, s[68:71], s65 offen")
    a(f"buffer_store_dwordx4 {vr(68,4)}, v{PV+2}, s[68:71], s66 offen")
    stamp_flush(a)
    a("s_endpgm")
    a.label("P3_REDO")
    p3_pre(a, True)
    a("s_branch P3_GO")


def main(out):
    a = Asm()
    hdr = f"""; {NAME}: fused LN+QKV | MQA attention + routed FFN | out-proj + gate   (generated by gen/gen2.py)
; @launch grid=(256,1,1) block=(768,1,1) lds=163840
.amdgcn_target "amdgcn-amd-amdhsa--gfx950"
.text
"""
    kernel(a)
    vg = 152
    txt = hdr + a.text() + f""".section .rodata,"a"
.p2align 6
.amdhsa_kernel {NAME}_kernel
  .amdhsa_next_free_vgpr {vg}
  .amdhsa_next_free_sgpr {102 if PROF else 80}
  .amdhsa_accum_offset {vg}
  .amdhsa_group_segment_fixed_size 0
  .amdhsa_kernarg_size 104
  .amdhsa_user_sgpr_count 2
  .amdhsa_user_sgpr_kernarg_segment_ptr 1
  .amdhsa_system_sgpr_workgroup_id_x 1
.end_amdhsa_kernel
"""
    open(out, "w").write(txt)


if __name__ == "__main__":
    PROF = os.environ.get("PROF", "0") == "1"
    main(sys.argv[1] if len(sys.argv) > 1 else f"fused.s")
```

```python
import sys, os, struct

NAME = "recurrent_scan__grouped_kv_mqa__moe_arch_mod__prompt"

WS_KMAT = 0x0
WS_VFRAG = 0x10000
WS_STATS = 0x30000
WS_TOPC = 0x38000
WS_SELG = 0x39000
WS_XSEL = 0x39400
WS_FLAG1 = 0x40000
WS_FLAG2 = 0x48000
WS_FLAGF = 0x50000
WS_FLAGA = 0x58000
WS_GP = 0x60000
WS_SMALL = 0xA0000
WS_YPART = 0xA0000
WS_O = 0x200000
WS_PROF = 0xA00000

SCALE = 0.25 * 1.4426950408889634
NLOG2E = -1.4426950408889634
PROF = False
SPIN_MAX = 1 << 22
EXP = os.environ.get('EXP', '')
FFN_THR = int(os.environ.get('FFN_THR', '4'))

L_X = 0
L_W = 65536
L_KV = 131072
P1_X = 0
P1_W = 57344
P1_KV = 114688
L_XN = 147456
P1_WR = 155776
L_KEY = 156800
P1_FL = 156928
L_RED = 0
L_Q = 114688
L_MISC = L_KV + 12288
L_UPD = L_MISC + 64
L_SEL = 63488
L_FX = L_Q


def f2u(x):
    return struct.unpack("<I", struct.pack("<f", x))[0]


class Asm:
    def __init__(self):
        self.l = []
    def __call__(self, s):
        self.l.append("    " + s)
    def label(self, s):
        self.l.append(s + ":")
    def raw(self, s):
        self.l.append(s)
    def c(self, s):
        self.l.append("    ; " + s)
    def text(self):
        return "\n".join(self.l) + "\n"


def srd(a, d, base_lo, base_hi, off, size):
    if off:
        a(f"s_add_u32 s{d}, s{base_lo}, 0x{off:x}")
        a(f"s_addc_u32 s{d+1}, s{base_hi}, 0")
    else:
        a(f"s_mov_b32 s{d}, s{base_lo}")
        a(f"s_mov_b32 s{d+1}, s{base_hi}")
    a(f"s_mov_b32 s{d+2}, 0x{size:x}")
    a(f"s_mov_b32 s{d+3}, 0x00020000")


def stamp(a, i):
    if PROF:
        a("s_memtime s[96:97]")
        a("s_waitcnt lgkmcnt(0)")
        a(f"s_mov_b32 s{80+i}, s96")


def stamp_flush(a):
    if PROF:
        a("s_waitcnt vmcnt(0)")
        stamp(a, 13)
        a("s_memrealtime s[96:97]")
        a("s_waitcnt lgkmcnt(0)")
        a("s_mov_b32 s95, s96")
        a(f"s_add_u32 s96, s14, 0x{WS_PROF:x}")
        a("s_addc_u32 s97, s15, 0")
        a("s_mov_b32 s98, 0x100000")
        a("s_mov_b32 s99, 0x00020000")
        a("s_lshl_b32 s79, s2, 4")
        a("s_add_u32 s79, s79, s78")
        a("s_lshl_b32 s79, s79, 6")
        a("s_mov_b64 exec, 1")
        a("v_mov_b32 v0, 0")
        for q in range(4):
            for i in range(4):
                a(f"v_mov_b32 v{4+i}, s{80+4*q+i}")
            a(f"buffer_store_dwordx4 v[4:7], v0, s[96:99], s79 offen offset:{16*q}")
            a("s_waitcnt vmcnt(0)")


def vr(b, n):
    return f"v[{b}:{b+n-1}]"


DPP_STEPS = ["quad_perm:[1,0,3,2] row_mask:0xf bank_mask:0xf",
             "quad_perm:[2,3,0,1] row_mask:0xf bank_mask:0xf",
             "row_half_mirror row_mask:0xf bank_mask:0xf",
             "row_mirror row_mask:0xf bank_mask:0xf",
             "row_bcast:15 row_mask:0xa bank_mask:0xf",
             "row_bcast:31 row_mask:0xc bank_mask:0xf"]


def wave_reduce_rows(a, regs, op="v_add_f32", nsteps=6):
    for st in DPP_STEPS[:nsteps]:
        if len(regs) == 1:
            a("s_nop 1")
        elif len(regs) == 2:
            a("s_nop 0")
        for r in regs:
            a(f"{op}_dpp v{r}, v{r}, v{r} {st}")


FR = 16
ACC = 48
ACC2 = 64
ONES = 80
Q0, O0, S0, KB, VB, IDX = 16, 32, 96, 128, 136, 8


def lds_wait(a, name, need_s=None, need_imm=None, off=0, two=True, vt=14):
    a(f"v_mov_b32 v{vt+2}, 0x{P1_FL:x}")
    a.label(f"LW_{name}")
    if two:
        a(f"ds_read_b64 {vr(vt,2)}, v{vt+2} offset:{off}")
        a("s_waitcnt lgkmcnt(0)")
        a(f"v_min_u32 v{vt}, v{vt}, v{vt+1}")
        a("s_nop 0")
    else:
        a(f"ds_read_b32 v{vt}, v{vt+2} offset:{off}")
        a("s_waitcnt lgkmcnt(0)")
    a(f"v_readfirstlane_b32 s62, v{vt}")
    a(f"s_cmp_lt_u32 s62, " + (f"s{need_s}" if need_s is not None else str(need_imm)))
    a(f"s_cbranch_scc1 LW_{name}")


def lds_add(a, vaddr, vone, off):
    a("s_mov_b64 exec, 1")
    a(f"ds_add_u32 v{vaddr}, v{vone} offset:{off}")
    a("s_mov_b64 exec, -1")


def gemm_addr(a, wbase):
    a("v_lshrrev_b32 v3, 5, v1")
    a("v_lshrrev_b32 v5, 2, v1")
    a("v_and_b32 v5, 3, v5")
    a("v_lshl_add_u32 v6, v3, 3, v5")
    a("v_lshlrev_b32 v6, 7, v6")
    a("v_lshrrev_b32 v7, 1, v5")
    a("s_and_b32 s40, s16, 1")
    a("v_xor_b32 v7, s40, v7")
    a("v_lshl_add_u32 v6, v7, 6, v6")
    a("v_and_b32 v7, 16, v1")
    a("v_lshl_add_u32 v6, v7, 1, v6")
    a("v_and_b32 v7, 1, v1")
    a("v_lshl_add_u32 v6, v7, 4, v6")
    a("v_and_b32 v7, 2, v1")
    a("v_lshl_add_u32 v6, v7, 2, v6")
    a(f"v_add_u32 v6, 0x{wbase:x}, v6")
    a("v_and_b32 v2, 31, v1")
    a("v_lshrrev_b32 v5, 1, v2")
    a("v_and_b32 v5, 7, v5")
    a("v_xor_b32 v5, v5, v3")
    a("v_lshlrev_b32 v2, 7, v2")
    a("v_lshl_add_u32 v2, v5, 4, v2")
    a("s_lshr_b32 s40, s16, 1")
    a("s_lshl_b32 s40, s40, 12")
    a("v_add_u32 v10, s40, v2")
    a("v_xor_b32 v11, 32, v10")
    a("v_xor_b32 v12, 64, v10")
    a("v_xor_b32 v13, 96, v10")


def gemm_loop_p1(a):
    for i in range(0, 32, 2):
        a(f"v_mov_b64 {vr(ACC+i,2)}, 0")
    for i in range(4):
        a(f"v_mov_b32 v{ONES+i}, 0x3f803f80")
    a("v_mov_b32 v7, 1")
    a("s_mov_b32 s41, 3")
    a("s_barrier")
    FB = [FR, 88]

    def rd(buf):
        for sx in range(4):
            a(f"ds_read_b64_tr_b16 {vr(FB[buf]+8*sx,2)}, v6 offset:{sx*2048}")
            a(f"ds_read_b64_tr_b16 {vr(FB[buf]+8*sx+2,2)}, v6 offset:{sx*2048+512}")
            a(f"ds_read_b128 {vr(FB[buf]+8*sx+4,4)}, v{10+sx}")
        a("s_movk_i32 s40, 0x2000")
        a("s_cmp_eq_u32 s41, 9")
        a(f"s_cselect_b32 s40, {(-6*8192) & 0xffffffff}, s40")
        a("v_add_u32 v6, s40, v6")
        for i in range(4):
            a(f"v_add_u32 v{10+i}, s40, v{10+i}")
        a("s_add_u32 s41, s41, 1")

    def mm(buf):
        for sx in range(4):
            a(f"v_mfma_f32_32x32x16_bf16 {vr(ACC,16)}, {vr(FB[buf]+8*sx,4)}, {vr(FB[buf]+8*sx+4,4)}, {vr(ACC,16)}")
            a(f"v_mfma_f32_32x32x16_bf16 {vr(ACC2,16)}, {vr(FB[buf]+8*sx,4)}, {vr(ONES,4)}, {vr(ACC2,16)}")

    lds_wait(a, "G0", need_s=41, vt=84)
    a("v_mov_b32 v120, 0")
    a("buffer_load_dword v121, v120, s[72:75], 0 offen sc1")
    rd(0)
    a.label("GL_P1")
    a("s_cmp_ge_u32 s62, s41")
    a("s_cbranch_scc1 GL_S1")
    lds_wait(a, "G1", need_s=41, vt=84)
    a.label("GL_S1")
    rd(1)
    a("s_waitcnt lgkmcnt(12)")
    a("s_cmp_lg_u32 s41, 5")
    a("s_cbranch_scc1 GL_NOSIG")
    lds_add(a, 86, 7, 8)
    a.label("GL_NOSIG")
    mm(0)
    a("s_cmp_eq_u32 s41, 11")
    a("s_cbranch_scc1 GL_END")
    a("s_cmp_ge_u32 s62, s41")
    a("s_cbranch_scc1 GL_S2")
    lds_wait(a, "G2", need_s=41, vt=84)
    a.label("GL_S2")
    rd(0)
    a("s_waitcnt lgkmcnt(12)")
    mm(1)
    a("s_branch GL_P1")
    a.label("GL_END")
    a("s_waitcnt lgkmcnt(0)")
    mm(1)


def poll(a, tag, voff, soffs, wide=False, sleep=2, cmpw=(20, 23), dst=20):
    a("s_mov_b32 s61, 0")
    a.label(f"POLL_{tag}")
    if wide:
        a(f"buffer_load_dwordx4 v[20:23], v{voff}, s[24:27], s{soffs[0]} offen sc1")
        regs = list(cmpw)
    else:
        for i, so in enumerate(soffs):
            a(f"buffer_load_dword v{dst+i}, v{voff}, s[24:27], s{so} offen sc1")
        regs = [dst + i for i in range(len(soffs))]
    a("s_add_u32 s61, s61, 1")
    a("s_waitcnt vmcnt(0)")
    for i, r in enumerate(regs):
        if i == 0:
            a(f"v_cmp_ne_u32 vcc, s60, v{r}")
        else:
            a(f"v_cmp_ne_u32 s[62:63], s60, v{r}")
            a("s_or_b64 vcc, vcc, s[62:63]")
    a(f"s_cmp_ge_u32 s61, {SPIN_MAX}")
    a(f"s_cbranch_scc1 POLLX_{tag}")
    a("s_cmp_eq_u64 vcc, 0")
    a(f"s_cbranch_scc1 POLLX_{tag}")
    a(f"s_sleep {sleep}")
    a(f"s_branch POLL_{tag}")
    a.label(f"POLLX_{tag}")


def get_tag(a, name, vt):
    a("s_mov_b32 s61, 0")
    a(f"v_mov_b32 v{vt}, 0")
    a.label(f"TAG_{name}")
    a(f"buffer_load_dword v{vt+1}, v{vt}, s[72:75], 0 offen sc1")
    a("s_add_u32 s61, s61, 1")
    a("s_waitcnt vmcnt(0)")
    a(f"v_readfirstlane_b32 s60, v{vt+1}")
    a(f"s_cmp_ge_u32 s61, {SPIN_MAX}")
    a(f"s_cbranch_scc1 TAGX_{name}")
    a("s_cmp_eq_u32 s60, 0")
    a(f"s_cbranch_scc1 TAG_{name}")
    a.label(f"TAGX_{name}")


def ln_normalize(a, rows_packed, XU, D, negm_pairs, rinv_pairs, mask_s):
    R = range(len(rows_packed))
    for i in R:
        for j in range(4):
            a(f"v_pk_add_f32 {vr(D+8*i+2*j,2)}, {vr(XU+8*i+2*j,2)}, {vr(negm_pairs[i],2)}")
    for i in R:
        for j in range(4):
            a(f"v_cvt_pk_bf16_f32 v{rows_packed[i]+j}, v{D+8*i+2*j}, v{D+8*i+2*j+1}")
    for i in R:
        for j in range(4):
            a(f"v_lshlrev_b32 v{D+8*i+2*j}, 16, v{rows_packed[i]+j}")
            a(f"v_and_b32 v{D+8*i+2*j+1}, s{mask_s}, v{rows_packed[i]+j}")
    for i in R:
        for j in range(4):
            a(f"v_pk_mul_f32 {vr(D+8*i+2*j,2)}, {vr(D+8*i+2*j,2)}, {vr(rinv_pairs[i],2)}")
    for i in R:
        for j in range(4):
            a(f"v_cvt_pk_bf16_f32 v{rows_packed[i]+j}, v{D+8*i+2*j}, v{D+8*i+2*j+1}")


PG, PXF = 96, 112
PRE_A = (128, 48, 136, 64)
PRE_B = (128, 16, 136, 64)
PV = 144


def p3_pre(a, sfx, EX, T, PR, YL):
    G, XF = PG, PXF
    SV = 148
    a(f"v_lshrrev_b32 v{PV}, 2, v1")
    a(f"v_and_b32 v{PV+1}, 3, v1")
    a(f"v_lshlrev_b32 v{PV+2}, 10, v{PV}")
    a(f"v_lshl_add_u32 v{PV+2}, v{PV+1}, 4, v{PV+2}")
    a(f"buffer_load_dwordx4 {vr(EX,4)}, v{PV+2}, s[20:23], s65 offen")
    a(f"buffer_load_dwordx4 {vr(EX+4,4)}, v{PV+2}, s[20:23], s66 offen")
    a(f"v_lshlrev_b32 v{T}, 4, v{PV}")
    a("s_lshl_b32 s40, s64, 4")
    a(f"s_add_u32 s40, s40, {WS_STATS}")
    a(f"buffer_load_dwordx2 {vr(SV,2)}, v{T}, s[24:27], s40 offen sc1")
    a(f"buffer_load_dwordx2 {vr(SV+2,2)}, v{T}, s[24:27], s40 offen offset:256 sc1")
    a("s_waitcnt vmcnt(0)")
    for i in range(8):
        a(f"v_lshlrev_b32 v{XF+2*i}, 16, v{EX+i}")
        a(f"v_and_b32 v{XF+2*i+1}, s42, v{EX+i}")
    for j in range(2):
        a(f"v_sub_f32 v{PR+4*j}, 0, v{SV+2*j}")
        a(f"v_sub_f32 v{PR+1+4*j}, 0, v{SV+2*j}")
        a(f"v_mov_b32 v{PR+2+4*j}, v{SV+1+2*j}")
        a(f"v_mov_b32 v{PR+3+4*j}, v{SV+1+2*j}")
    ln_normalize(a, [EX, EX + 4], XF, G, [PR, PR + 4], [PR + 2, PR + 6], 42)
    for i in range(8):
        a(f"v_lshlrev_b32 v{G+2*i}, 16, v{EX+i}")
        a(f"v_and_b32 v{G+2*i+1}, s42, v{EX+i}")
    a("s_mov_b32 s58, s76")
    a("s_mov_b32 s47, 0")
    a.label(f"PU_{sfx}")
    a("s_and_b32 s59, s58, 0xffff")
    a("s_sub_u32 s59, 2047, s59")
    a("s_sub_u32 s59, s59, s64")
    a("s_cmp_lt_u32 s59, 32")
    a(f"s_cbranch_scc1 PUY_{sfx}")
    a.label(f"PUN_{sfx}")
    a("s_mov_b32 s58, s77")
    a("s_add_u32 s47, s47, 2048")
    a("s_cmp_lt_u32 s47, 4096")
    a(f"s_cbranch_scc1 PU_{sfx}")
    for i in range(16):
        a(f"v_mul_f32 v{T+i}, 0x{f2u(NLOG2E):08x}, v{G+i}")
    for i in range(16):
        a(f"v_exp_f32 v{T+i}, v{T+i}")
    for i in range(16):
        a(f"v_add_f32 v{T+i}, 1.0, v{T+i}")
    for i in range(16):
        a(f"v_rcp_f32 v{T+i}, v{T+i}")
    for i in range(0, 16, 2):
        a(f"v_pk_mul_f32 {vr(G+i,2)}, {vr(G+i,2)}, {vr(T+i,2)}")
    for i in range(8):
        a(f"v_cvt_pk_bf16_f32 v{T+i}, v{G+2*i}, v{G+2*i+1}")
    for i in range(8):
        a(f"v_lshlrev_b32 v{G+2*i}, 16, v{T+i}")
        a(f"v_and_b32 v{G+2*i+1}, s42, v{T+i}")


def p3_upd(a, sfx, EX, T, PR, YL):
    G = PG
    a.label(f"PUY_{sfx}")
    a(f"v_min_u32 v{PR}, 55, v1")
    a(f"v_lshlrev_b32 v{PR}, 7, v{PR}")
    a(f"s_mov_b32 s44, {WS_FLAGF}")
    a(f"s_mov_b32 s45, {WS_FLAGF + 56*128}")
    poll(a, f"FF{sfx}", PR, [44, 45], sleep=4, dst=EX)
    srd(a, 48, 14, 15, WS_YPART, 112 * 4096)
    a(f"v_mul_u32_u24 v{PR}, 0x7000, v{PV}")
    a(f"v_lshl_add_u32 v{PR}, v{PV+1}, 5, v{PR}")
    a("s_and_b32 s40, s16, 1")
    a("s_lshl_b32 s40, s40, 5")
    a("s_add_u32 s40, s40, s18")
    a("s_lshl_b32 s40, s40, 2")
    a("s_add_u32 s40, s40, s47")
    for i in range(0, 8, 2):
        a(f"v_mov_b64 {vr(T+i,2)}, 0")
    for cnt in (4, 3):
        for p in range(cnt):
            a(f"buffer_load_dwordx4 {vr(YL+8*p,4)}, v{PR}, s[48:51], s40 offen sc1")
            a(f"buffer_load_dwordx4 {vr(YL+8*p+4,4)}, v{PR}, s[48:51], s40 offen offset:16 sc1")
            a("s_add_u32 s40, s40, 4096")
        a("s_waitcnt vmcnt(0)")
        for p in range(cnt):
            for i in range(0, 8, 2):
                a(f"v_pk_add_f32 {vr(T+i,2)}, {vr(T+i,2)}, {vr(YL+8*p+i,2)}")
    for ror in (4, 8):
        a("s_nop 1")
        for i in range(8):
            a(f"v_add_f32_dpp v{T+i}, v{T+i}, v{T+i} row_ror:{ror} row_mask:0xf bank_mask:0xf")
    for swap in ("v_permlane16_swap_b32", "v_permlane32_swap_b32"):
        for i in range(8):
            a(f"v_mov_b32 v{T+8+i}, v{T+i}")
        a("s_nop 1")
        for i in range(8):
            a(f"{swap} v{T+i}, v{T+8+i}")
        a("s_nop 1")
        for i in range(8):
            a(f"v_add_f32 v{T+i}, v{T+i}, v{T+8+i}")
    a("s_and_b32 s40, s58, 0xffff0000")
    a("s_ashr_i32 s41, s40, 31")
    a("s_not_b32 s41, s41")
    a("s_or_b32 s41, s41, 0x80000000")
    a("s_xor_b32 s40, s40, s41")
    a("s_and_b32 s40, s40, 0xffff0000")
    a(f"v_mov_b32 v{PR}, s40")
    a(f"v_mul_f32 v{PR}, 0x{f2u(NLOG2E):08x}, v{PR}")
    a(f"v_exp_f32 v{PR}, v{PR}")
    a("s_nop 0")
    a(f"v_add_f32 v{PR}, 1.0, v{PR}")
    a(f"v_rcp_f32 v{PR}, v{PR}")
    a("s_nop 0")
    a(f"v_cvt_pk_bf16_f32 v{PR}, v{PR}, v{PR}")
    a(f"v_lshlrev_b32 v{PR}, 16, v{PR}")
    for rp in range(2):
        for i in range(4):
            a(f"v_cvt_pk_bf16_f32 v{T+8+i}, v{T+2*i}, v{T+2*i+1}")
        for i in range(4):
            a(f"v_lshlrev_b32 v{T+2*i}, 16, v{T+8+i}")
            a(f"v_and_b32 v{T+2*i+1}, s42, v{T+8+i}")
        if rp == 0:
            for i in range(8):
                a(f"v_mul_f32 v{T+i}, v{T+i}, v{PR}")
    for j in range(2):
        a(f"v_add_u32 v{PR}, {16*j}, v{PV}")
        a(f"v_cmp_eq_u32 vcc, s59, v{PR}")
        for i in range(8):
            a(f"v_add_f32 v{T+8+i}, v{T+i}, v{G+8*j+i}")
        for i in range(4):
            a(f"v_cvt_pk_bf16_f32 v{T+8+i}, v{T+8+2*i}, v{T+9+2*i}")
        for i in range(3, -1, -1):
            a(f"v_and_b32 v{T+9+2*i}, s42, v{T+8+i}")
            a(f"v_lshlrev_b32 v{T+8+2*i}, 16, v{T+8+i}")
        for i in range(8):
            a(f"v_cndmask_b32 v{G+8*j+i}, v{G+8*j+i}, v{T+8+i}, vcc")
    a(f"s_branch PUN_{sfx}")


def kernel(a):
    K = NAME + "_kernel"
    a.raw(f".globl {K}")
    a.raw(".p2align 8")
    a.raw(f".type {K},@function")
    a.label(K)
    a("s_cmp_ge_u32 s2, 256")
    a("s_cbranch_scc1 L_END")
    if PROF:
        a("s_memrealtime s[96:97]")
        a("s_waitcnt lgkmcnt(0)")
        a("s_mov_b32 s94, s96")
    stamp(a, 0)
    a("s_load_dwordx8 s[4:11], s[0:1], 0")
    a("s_load_dwordx2 s[12:13], s[0:1], 32")
    a("s_load_dwordx2 s[14:15], s[0:1], 96")
    a("s_load_dwordx2 s[28:29], s[0:1], 48")
    a("s_load_dwordx2 s[72:73], s[0:1], 88")
    a("v_and_b32 v1, 63, v0")
    a("v_lshrrev_b32 v2, 6, v0")
    a("s_nop 0")
    a("v_readfirstlane_b32 s78, v2")
    a("s_and_b32 s17, s2, 7")
    a("s_lshr_b32 s18, s2, 3")
    a("s_and_b32 s19, s18, 3")
    a("s_lshl_b32 s17, s17, 2")
    a("s_add_u32 s17, s17, s19")
    a("s_lshl_b32 s17, s17, 6")
    a("s_lshr_b32 s19, s18, 2")
    a("s_lshl_b32 s18, s19, 6")
    a("s_and_b32 s16, s78, 3")
    a("s_mov_b32 s42, 0xffff0000")
    a("v_lshlrev_b32 v5, 4, v1")
    a("s_waitcnt lgkmcnt(0)")
    srd(a, 20, 4, 5, 0, 2048 * 1024)
    srd(a, 24, 14, 15, 0, WS_SMALL)
    a("s_mov_b32 s74, 256")
    a("s_mov_b32 s75, 0x00020000")
    a("s_cmp_ge_u32 s78, 8")
    a("s_cbranch_scc1 R_GEMM")
    a("s_cmp_ge_u32 s78, 4")
    a("s_cbranch_scc1 R_LN")
    a.label("R_AUX")
    a("s_cmp_ge_u32 s16, 2")
    a("s_cbranch_scc1 R_AUX2")
    srd(a, 52, 28, 29, 0, 1024)
    srd(a, 28, 6, 7, 0, 512 * 1024)
    a("v_lshrrev_b32 v2, 3, v1")
    a("v_lshlrev_b32 v2, 10, v2")
    a("v_lshrrev_b32 v3, 4, v1")
    a("v_xor_b32 v6, v3, v1")
    a("v_and_b32 v6, 7, v6")
    a("v_lshl_add_u32 v8, v6, 4, v2")
    a("v_xor_b32 v9, 64, v8")
    a("v_and_b32 v6, 1, v3")
    a("v_lshlrev_b32 v6, 2, v6")
    a("v_xor_b32 v6, v6, v1")
    a("v_and_b32 v6, 7, v6")
    a("v_lshl_add_u32 v4, v6, 4, v2")
    a("s_lshl_b32 s43, s16, 15")
    a("s_lshl_b32 s44, s17, 10")
    a("s_add_u32 s44, s44, s43")
    a("s_lshl_b32 s45, s18, 1")
    a("s_add_u32 s45, s45, s43")
    a("s_lshl_b32 s46, s16, 12")

    a("s_lshl_b32 s47, s19, 3")
    a("s_add_u32 s47, s47, s17")
    a("s_lshl_b32 s48, s16, 2")
    a("s_add_u32 s47, s47, s48")
    a("s_lshl_b32 s47, s47, 10")
    a("s_mul_i32 s48, s16, 4160")
    for j in range(4):
        a(f"s_add_u32 m0, s48, {L_XN + j*1040}")
        a(f"s_add_u32 s40, s47, {j*1024}")
        a("buffer_load_dwordx4 v5, s[20:23], s40 offen lds")
    a(f"s_mov_b32 m0, {P1_WR}")
    a("s_lshl_b32 s47, s16, 13")
    a("buffer_load_dwordx4 v5, s[52:55], 0 offen lds")
    srd(a, 32, 8, 9, 0, 16384)
    srd(a, 36, 10, 11, 0, 16384)
    a("s_lshl_b32 s40, s16, 2")
    a(f"s_add_u32 s40, s40, {P1_FL}")
    a("v_mov_b32 v10, s40")
    a("v_mov_b32 v11, 1")
    for which in range(2):
        for j in range(8):
            a(f"s_add_u32 m0, s47, {P1_KV + which*16384 + j*1024}")
            a(f"s_add_u32 s40, s47, {j*1024}")
            a(f"buffer_load_dwordx4 v5, s[{32+4*which}:{35+4*which}], s40 offen lds")
        if which == 0:
            a("s_barrier")
            a("s_waitcnt vmcnt(8)")
            lds_add(a, 10, 11, 0)
            stamp(a, 1)
    a("s_mov_b32 s47, s46")
    a("s_mov_b32 s48, s45")
    a("s_mov_b32 s49, s44")
    a("s_mov_b32 s50, 0")
    a.label("LD_P1")
    a("s_cmp_lg_u32 s50, 7")
    a("s_cbranch_scc1 LD_NOWRAP")
    a("s_mov_b32 s47, s46")
    lds_wait(a, "L", need_imm=4, off=8, two=False)
    a.label("LD_NOWRAP")
    for j in range(4):
        a(f"s_add_u32 m0, s47, {P1_W + j*1024}")
        a(f"s_add_u32 s40, s48, {j*8192}")
        a("buffer_load_dwordx4 v4, s[28:31], s40 offen lds")
    for j in range(4):
        a(f"s_add_u32 m0, s47, {P1_X + j*1024}")
        a(f"s_add_u32 s40, s49, {j*8192}")
        a(f"buffer_load_dwordx4 v{8+(j&1)}, s[20:23], s40 offen lds")
    a("s_add_u32 s47, s47, 8192")
    a("s_add_u32 s48, s48, 65536")
    a("s_add_u32 s49, s49, 128")
    a("s_add_u32 s50, s50, 1")
    a("s_cmp_lt_u32 s50, 2")
    a("s_cbranch_scc1 LD_P1")
    a("s_waitcnt vmcnt(16)")
    lds_add(a, 10, 11, 0)
    a("s_cmp_lt_u32 s50, 8")
    a("s_cbranch_scc1 LD_P1")
    a("s_waitcnt vmcnt(8)")
    lds_add(a, 10, 11, 0)
    a("s_waitcnt vmcnt(0)")
    lds_add(a, 10, 11, 0)
    stamp(a, 2)
    a("s_barrier")
    a("s_barrier")
    srd(a, 28, 12, 13, 0, 512 * 1024)
    a(f"s_add_u32 s47, s46, {L_W}")
    a("s_mov_b32 s48, s45")
    a("s_mov_b32 s49, 0")
    a.label("LD_WO")
    for j in range(4):
        a(f"s_add_u32 m0, s47, {j*1024}")
        a(f"s_add_u32 s40, s48, {j*8192}")
        a("buffer_load_dwordx4 v4, s[28:31], s40 offen lds")
        if j & 1:
            a("s_waitcnt vmcnt(0)")
    a("s_add_u32 s47, s47, 8192")
    a("s_add_u32 s48, s48, 65536")
    a("s_add_u32 s49, s49, 1")
    a("s_cmp_lt_u32 s49, 8")
    a("s_cbranch_scc1 LD_WO")
    srd(a, 32, 14, 15, WS_O, 2048 * 1024)
    a("s_lshl_b32 s40, s16, 2")
    a(f"s_add_u32 s40, s40, {L_MISC + 16}")
    a("v_mov_b32 v10, s40")
    a("s_barrier")
    a("s_barrier")
    stamp(a, 10)
    a("s_mov_b32 s50, 0")
    a(f"v_mov_b32 v6, 0x{L_MISC:x}")
    a("s_mov_b32 s53, 0")
    a.label("LD_P3")
    a("ds_read_b32 v12, v6 offset:28")
    a("s_waitcnt lgkmcnt(0)")
    a("v_readfirstlane_b32 s51, v12")
    a("s_andn2_b32 s51, s51, s50")
    a("s_cbranch_scc0 LD_P3")
    a("s_mov_b32 s54, s51")
    a("s_mov_b32 s55, 0")
    a("s_or_b32 s50, s50, s51")
    a.label("LD_P3I")
    a("s_ff1_i32_b32 s52, s51")
    a("s_bitset0_b32 s51, s52")
    a("s_lshl_b32 s47, s52, 13")
    a("s_add_u32 s47, s47, s46")
    a("s_lshl_b32 s49, s52, 7")
    a("s_add_u32 s49, s49, s44")
    for j in range(4):
        a(f"s_add_u32 m0, s47, {L_X + j*1024}")
        a(f"s_add_u32 s40, s49, {j*8192}")
        a(f"buffer_load_dwordx4 v{8+(j&1)}, s[32:35], s40 offen lds")
    a("s_add_u32 s55, s55, 1")

    def publish(rem, lab):
        a(f"s_cmp_le_u32 s55, {rem}")
        a(f"s_cbranch_scc1 {lab}")
        a("s_ff1_i32_b32 s52, s54")
        a("s_bitset0_b32 s54, s52")
        a("s_bitset1_b32 s53, s52")
        a("v_mov_b32 v11, s53")
        a("s_sub_u32 s55, s55, 1")
        a(f"s_waitcnt vmcnt({4*rem})")
        a("ds_write_b32 v10, v11")
        a.label(lab)

    publish(2, "LD_L2")
    a("s_cmp_lg_u32 s51, 0")
    a("s_cbranch_scc1 LD_P3I")
    publish(1, "LD_L1")
    publish(0, "LD_L0")
    a("s_cmp_lg_u32 s50, 0xff")
    a("s_cbranch_scc1 LD_P3")
    a("s_waitcnt lgkmcnt(0)")
    stamp(a, 12)
    stamp_flush(a)
    a("s_endpgm")

    a.label("R_AUX2")
    a("s_and_b32 s16, s16, 1")
    a("v_mov_b32 v2, 0")
    a("s_cmp_eq_u32 s16, 0")
    a("s_cbranch_scc1 AUX_NOTAG")
    a("s_cmp_lg_u32 s2, 0")
    a("s_cbranch_scc1 AUX_NOTAG")
    a("s_memrealtime s[48:49]")
    a("s_waitcnt lgkmcnt(0)")
    a("s_or_b32 s48, s48, 1")
    a("v_mov_b32 v3, s48")
    a("s_mov_b64 exec, 1")
    a("buffer_store_dword v3, v2, s[72:75], 0 offen sc1")
    a("s_mov_b64 exec, -1")
    a.label("AUX_NOTAG")
    a(f"v_mov_b32 v6, 0x{P1_FL:x}")
    a("v_mov_b64 v[8:9], 0")
    a("v_mov_b64 v[10:11], 0")
    a("ds_write_b128 v6, v[8:11]")
    a("ds_write_b128 v6, v[8:11] offset:16")
    a("s_waitcnt lgkmcnt(0)")
    a("s_barrier")
    get_tag(a, "AUX", 2)
    a("s_cmp_eq_u32 s16, 0")
    a("s_cbranch_scc1 AUX_FFN0")
    a("v_mov_b32 v3, s60")
    a("s_lshl_b32 s40, s2, 7")
    a(f"s_add_u32 s40, s40, {WS_FLAG1}")
    for i in range(4):
        a(f"s_mov_b32 s{44+i}, {WS_FLAG1 + i*8192}")
    a("v_lshlrev_b32 v7, 7, v1")
    a("s_getreg_b32 s59, hwreg(HW_REG_XCC_ID)")
    stamp(a, 3)
    a(f"v_mov_b32 v11, 0x{L_SEL:x}")
    lds_wait(a, "SY", need_imm=4, off=16, two=False, vt=84)
    poll(a, "S1", 7, [44, 45, 46, 47], sleep=1)
    stamp(a, 4)
    a("s_barrier")
    a("ds_write_b32 v11, v2")
    a("s_waitcnt lgkmcnt(0)")
    a("s_barrier")
    a("s_setprio 3")
    a("s_lshl_b32 s40, s17, 4")
    a(f"s_add_u32 s41, s40, {WS_FLAG2}")
    a("s_lshl_b32 s40, s19, 7")
    a("s_add_u32 s40, s40, s41")
    a("v_and_b32 v6, 7, v1")
    a("v_lshlrev_b32 v6, 7, v6")
    a("s_and_b32 s44, s2, 31")
    a("s_lshl_b32 s44, s44, 7")
    a(f"s_add_u32 s44, s44, {WS_FLAG1 + 4}")
    a("v_lshlrev_b32 v14, 5, v6")
    a("buffer_load_dword v15, v14, s[24:27], s44 offen sc1")
    a("s_waitcnt vmcnt(0)")
    a("v_cmp_ne_u32 vcc, s59, v15")
    a("s_cmp_eq_u64 vcc, 0")
    a("s_cselect_b32 s59, 1, 0")
    if "noxcd" in EXP: a("s_mov_b32 s59, 0")
    a(f"s_mov_b32 s44, {WS_SELG}")
    poll(a, "SEL", 2, [44], wide=True, sleep=32)
    a("v_readfirstlane_b32 s56, v21")
    a("v_readfirstlane_b32 s57, v22")
    a("v_mov_b32 v23, s59")
    a("ds_write_b128 v11, v[20:23]")
    a("s_waitcnt lgkmcnt(0)")
    a("s_barrier")
    a(f"v_mov_b32 v11, 0x{L_MISC:x}")
    a("v_mov_b64 v[102:103], 0")
    a("ds_write_b64 v11, v[102:103] offset:16")
    a("ds_write_b64 v11, v[102:103] offset:24")
    a("ds_write_b32 v11, v102 offset:32")
    a("s_waitcnt lgkmcnt(0)")
    a("buffer_load_dword v12, v6, s[24:27], s41 offen sc1")
    a("s_barrier")
    a("s_mov_b32 s61, 0")
    a("s_mov_b32 s52, 0")
    a.label("SYNC_P")
    a("ds_read_b32 v13, v11 offset:32")
    a("s_add_u32 s61, s61, 1")
    a("s_waitcnt vmcnt(0) lgkmcnt(0)")
    a("v_cmp_eq_u32 vcc, s60, v12")
    a("v_readfirstlane_b32 s53, v13")
    a(f"s_cmp_ge_u32 s61, {SPIN_MAX}")
    a("s_cselect_b32 s51, 0xff, vcc_lo")
    a("s_and_b32 s51, s51, 0xff")
    a("s_cmp_lg_u32 s52, 0")
    a("s_cbranch_scc1 SYNC_Q")
    a("s_cmp_lt_u32 s53, 8")
    a("s_cbranch_scc1 SYNC_Q")
    stamp(a, 8)
    a("s_lshl_b32 s52, 1, s19")
    a.label("SYNC_Q")
    a("s_or_b32 s51, s51, s52")
    a("v_mov_b32 v12, s51")
    a("ds_write_b32 v11, v12 offset:28")
    a("s_cmp_eq_u32 s51, 0xff")
    a("s_cbranch_scc1 SYNC_X")
    a("buffer_load_dword v12, v6, s[24:27], s41 offen sc1")
    a("s_branch SYNC_P")
    a.label("SYNC_X")
    a("s_waitcnt lgkmcnt(0)")
    stamp_flush(a)
    a("s_endpgm")

    a.label("AUX_FFN0")
    a("s_load_dwordx4 s[4:7], s[0:1], 56")
    a("s_load_dwordx2 s[8:9], s[0:1], 72")
    a("s_mul_i32 s54, s2, 2341")
    a("s_lshr_b32 s54, s54, 16")
    a("s_mul_i32 s55, s54, 28")
    a("s_sub_u32 s55, s2, s55")
    a("v_lshrrev_b32 v28, 3, v1")
    a("v_mul_u32_u24 v28, 3584, v28")
    a("v_lshrrev_b32 v6, 2, v1")
    a("v_and_b32 v6, 4, v6")
    a("v_xor_b32 v6, v6, v1")
    a("v_and_b32 v6, 7, v6")
    a("v_lshl_add_u32 v28, v6, 4, v28")
    a("v_lshrrev_b32 v14, 5, v1")
    a("v_lshrrev_b32 v6, 2, v1")
    a("v_and_b32 v6, 3, v6")
    a("v_lshl_add_u32 v13, v14, 3, v6")
    a("v_lshlrev_b32 v12, 10, v13")
    a("v_lshlrev_b32 v13, 7, v13")
    a("v_lshrrev_b32 v6, 1, v6")
    a("v_lshl_add_u32 v13, v6, 6, v13")
    a("v_and_b32 v6, 16, v1")
    a("v_lshlrev_b32 v6, 1, v6")
    a("v_and_b32 v7, 3, v1")
    a("v_lshl_add_u32 v6, v7, 3, v6")
    a("v_add_u32 v13, v13, v6")
    a(f"v_add_u32 v13, 0x{L_KV:x}, v13")
    a("v_xor_b32 v15, 64, v13")
    a("v_add_u32 v12, v12, v6")
    a(f"v_add_u32 v12, 0x{L_KV+16384:x}, v12")
    a("v_and_b32 v7, 4, v1")
    a("v_lshlrev_b32 v7, 8, v7")
    a("v_lshl_add_u32 v7, v14, 4, v7")
    a("v_and_b32 v4, 31, v1")
    a("s_waitcnt lgkmcnt(0)")
    srd(a, 28, 4, 5, 0, 512 * 3584)
    srd(a, 32, 6, 7, 0, 512 * 3584)
    srd(a, 36, 8, 9, 0, 1792 * 1024)
    srd(a, 44, 14, 15, WS_YPART, 112 * 4096)
    a("s_barrier")
    a("s_cmp_eq_u32 s2, 255")
    a("s_cbranch_scc1 SELECT")
    a("s_barrier")
    a("s_setprio 3")
    a.label("FFN_GO")
    a("s_cmp_ge_u32 s2, 224")
    a("s_cbranch_scc1 FFN_NA1")
    a(f"s_mul_i32 s52, s54, {64*3584}")
    a("s_lshl_b32 s53, s55, 7")
    a("s_add_u32 s52, s52, s53")
    a(f"s_mov_b32 s53, {L_KV}")
    a("s_mov_b32 s41, 0")
    a.label("FFN_DMA")
    a("s_mov_b32 m0, s53")
    a("s_add_u32 s53, s53, 1024")
    a("buffer_load_dwordx4 v28, s[28:31], s52 offen lds")
    a("s_add_u32 m0, m0, 8192")
    a("s_add_u32 s41, s41, 1")
    a("buffer_load_dwordx4 v28, s[32:35], s52 offen lds")
    a(f"s_add_u32 s52, s52, {8*3584}")
    a(f"s_waitcnt vmcnt({FFN_THR})")
    a("s_cmp_lt_u32 s41, 8")
    a("s_cbranch_scc1 FFN_DMA")
    a.label("FFN_NA1")
    a("s_cmp_lt_u32 s2, 144")
    a("s_cbranch_scc1 FFN_NB1")
    a("s_sub_u32 s56, s2, 144")
    a("s_lshl_b32 s52, s56, 14")
    a(f"s_mov_b32 s53, {L_KV + 16384}")
    a("s_mov_b32 s41, 0")
    a.label("FFN_DMA2")
    a("s_mov_b32 m0, s53")
    a("s_add_u32 s53, s53, 1024")
    a("buffer_load_dwordx4 v5, s[36:39], s52 offen lds")
    a("s_add_u32 s52, s52, 1024")
    a("s_add_u32 s41, s41, 1")
    a(f"s_waitcnt vmcnt({FFN_THR})")
    a("s_cmp_lt_u32 s41, 16")
    a("s_cbranch_scc1 FFN_DMA2")
    a.label("FFN_NB1")
    a("s_cmp_ge_u32 s2, 224")
    a("s_cbranch_scc1 FFN_B")
    a(f"s_mov_b32 s40, {WS_SELG}")
    poll(a, "FSEL", 2, [40], wide=True, sleep=8)
    a("s_lshl_b32 s40, s54, 7")
    a(f"s_add_u32 s40, s40, {WS_XSEL}")
    for sx in range(4):
        a(f"buffer_load_dwordx4 {vr(16+4*sx,4)}, v7, s[24:27], s40 offen offset:{32*sx} sc1")
    a("v_mul_u32_u24 v6, 7168, v14")
    a("v_lshl_add_u32 v6, v4, 2, v6")
    a(f"s_mul_i32 s40, s54, {4*7168}")
    a("s_lshl_b32 s41, s55, 8")
    a("s_add_u32 s40, s40, s41")
    a(f"s_add_u32 s40, s40, {WS_GP}")
    a(f"s_add_u32 s41, s40, {2*7168}")
    a("s_waitcnt vmcnt(0)")
    for mat in range(2):
        for ct in range(2):
            for sx in range(4):
                a(f"ds_read_b64_tr_b16 {vr(96+16*ct+4*sx,2)}, v{13+2*ct} offset:{mat*8192+sx*2048}")
                a(f"ds_read_b64_tr_b16 {vr(98+16*ct+4*sx,2)}, v{13+2*ct} offset:{mat*8192+sx*2048+512}")
        a("s_waitcnt lgkmcnt(0)")
        for ct in range(2):
            acc = 32 + 32 * mat + 16 * ct
            for sx in range(4):
                cc = "0" if sx == 0 else vr(acc, 16)
                a(f"v_mfma_f32_32x32x16_bf16 {vr(acc,16)}, {vr(16+4*sx,4)}, {vr(96+16*ct+4*sx,4)}, {cc}")
    a("s_nop 15")
    for mat in range(2):
        for ct in range(2):
            a(f"buffer_store_dword v{32+32*mat+16*ct}, v6, s[24:27], s{40+mat} offen offset:{128*ct} sc1")
    a("s_lshl_b32 s40, s55, 3")
    a("s_add_u32 s40, s40, s54")
    a("s_lshl_b32 s40, s40, 7")
    a(f"s_add_u32 s40, s40, {WS_FLAGA}")
    a("v_mov_b32 v3, s60")
    a("s_waitcnt vmcnt(0)")
    a("s_mov_b64 exec, 1")
    a("buffer_store_dword v3, v2, s[24:27], s40 offen sc1")
    a("s_mov_b64 exec, -1")
    a("s_cmp_lt_u32 s2, 144")
    a("s_cbranch_scc1 FFN_EXIT")
    a.label("FFN_B")
    a("s_sub_u32 s56, s2, 144")
    a("s_lshr_b32 s40, s56, 2")
    a("s_lshl_b32 s40, s40, 10")
    a(f"s_add_u32 s40, s40, {WS_FLAGA}")
    a("v_and_b32 v6, 7, v1")
    a("v_lshlrev_b32 v6, 7, v6")
    poll(a, "FA", 6, [40], sleep=8)
    a("v_and_b32 v6, 3, v1")
    a("v_and_b32 v7, 8, v1")
    a("v_lshrrev_b32 v7, 1, v7")
    a("v_or_b32 v6, v6, v7")
    a("v_lshlrev_b32 v6, 2, v6")
    a("v_lshrrev_b32 v7, 3, v4")
    a("v_and_b32 v7, 2, v7")
    a("v_add_u32 v6, v6, v7")
    a("v_lshrrev_b32 v7, 2, v1")
    a("v_and_b32 v7, 1, v7")
    a("v_add_u32 v6, v6, v7")
    a("v_mul_u32_u24 v6, 7168, v6")
    a("v_lshl_add_u32 v6, v14, 5, v6")
    a("s_lshl_b32 s40, s56, 6")
    a(f"s_add_u32 s40, s40, {WS_GP}")
    a("buffer_load_dwordx4 v[16:19], v6, s[24:27], s40 offen sc1")
    a("buffer_load_dwordx4 v[20:23], v6, s[24:27], s40 offen offset:16 sc1")
    a("v_lshlrev_b32 v14, 11, v14")
    a("v_lshl_add_u32 v14, v4, 2, v14")
    a("s_lshl_b32 s52, s56, 12")
    a("s_waitcnt vmcnt(0)")
    for st in ("quad_perm:[1,0,3,2]", "quad_perm:[2,3,0,1]", "row_ror:8"):
        for i in range(8):
            a(f"v_add_f32_dpp v{16+i}, v{16+i}, v{16+i} {st} row_mask:0xf bank_mask:0xf")
    for i in range(4):
        a(f"v_cvt_pk_bf16_f32 v{24+i}, v{16+2*i}, v{17+2*i}")
    for i in range(4):
        a(f"v_mov_b32 v{28+i}, v{24+i}")
    a("s_nop 1")
    for i in range(4):
        a(f"v_permlane16_swap_b32 v{24+i}, v{28+i}")
    a("s_nop 1")
    for i in range(4):
        a(f"v_lshlrev_b32 v{16+2*i}, 16, v{24+i}")
        a(f"v_and_b32 v{17+2*i}, s42, v{24+i}")
    for i in range(8):
        a(f"v_mul_f32 v{32+i}, 0x{f2u(NLOG2E):08x}, v{16+i}")
    for i in range(8):
        a(f"v_exp_f32 v{32+i}, v{32+i}")
    for i in range(8):
        a(f"v_add_f32 v{32+i}, 1.0, v{32+i}")
    for i in range(8):
        a(f"v_rcp_f32 v{32+i}, v{32+i}")
    a("s_nop 0")
    for i in range(0, 8, 2):
        a(f"v_pk_mul_f32 {vr(16+i,2)}, {vr(16+i,2)}, {vr(32+i,2)}")
    for i in range(4):
        a(f"v_cvt_pk_bf16_f32 v{24+i}, v{16+2*i}, v{17+2*i}")
    for i in range(4):
        a(f"v_lshlrev_b32 v{16+2*i}, 16, v{24+i}")
        a(f"v_and_b32 v{17+2*i}, s42, v{24+i}")
        a(f"v_lshlrev_b32 v{32+2*i}, 16, v{28+i}")
        a(f"v_and_b32 v{33+2*i}, s42, v{28+i}")
    for i in range(0, 8, 2):
        a(f"v_pk_mul_f32 {vr(16+i,2)}, {vr(16+i,2)}, {vr(32+i,2)}")
    for i in range(4):
        a(f"v_cvt_pk_bf16_f32 v{24+i}, v{16+2*i}, v{17+2*i}")
    a("s_mov_b32 s41, 0")
    a.label("FFN_DOWN")
    for tl in range(4):
        a(f"ds_read_b64_tr_b16 {vr(96+4*tl,2)}, v12 offset:{64*tl}")
        a(f"ds_read_b64_tr_b16 {vr(98+4*tl,2)}, v12 offset:{64*tl+4096}")
    a("s_waitcnt lgkmcnt(0)")
    for tl in range(4):
        a(f"v_mfma_f32_32x32x16_bf16 {vr(32+16*tl,16)}, v[24:27], {vr(96+4*tl,4)}, 0")
    a("v_add_u32 v12, 256, v12")
    a("s_add_u32 s41, s41, 1")
    a("s_nop 11")
    for tl in range(4):
        a(f"buffer_store_dword v{32+16*tl}, v14, s[44:47], s52 offen offset:{128*tl} sc1")
    a("s_add_u32 s52, s52, 512")
    a("s_cmp_lt_u32 s41, 4")
    a("s_cbranch_scc1 FFN_DOWN")
    a("v_mov_b32 v3, s60")
    a("s_lshl_b32 s40, s56, 7")
    a(f"s_add_u32 s40, s40, {WS_FLAGF}")
    a("s_waitcnt vmcnt(0)")
    a("s_mov_b64 exec, 1")
    a("buffer_store_dword v3, v2, s[24:27], s40 offen sc1")
    a.label("FFN_EXIT")
    stamp_flush(a)
    a("s_endpgm")

    a.label("SELECT")
    a(f"s_mov_b32 s40, {WS_TOPC}")
    a("buffer_load_dwordx4 v[64:67], v5, s[24:27], s40 offen sc1")
    a("buffer_load_dwordx4 v[68:71], v5, s[24:27], s40 offen offset:1024 sc1")
    a("s_barrier")
    a("s_setprio 3")
    a("s_waitcnt vmcnt(0)")
    for rnd in range(2):
        a("v_max3_u32 v16, v64, v65, v66")
        a("v_max3_u32 v17, v67, v68, v69")
        a("v_max3_u32 v16, v70, v71, v16")
        a("v_max_u32 v16, v16, v17")
        wave_reduce_rows(a, [16], op="v_max_u32")
        a("s_nop 0")
        a(f"v_readlane_b32 s{48+rnd}, v16, 63")
        a("s_nop 1")
        if rnd == 0:
            for i in range(8):
                a(f"v_cmp_eq_u32 vcc, s48, v{64+i}")
                a("s_nop 1")
                a(f"v_cndmask_b32 v{64+i}, v{64+i}, 0, vcc")
    for t in range(2):
        a(f"s_and_b32 s{50+t}, s{48+t}, 0xffff")
        a(f"s_sub_u32 s{50+t}, 2047, s{50+t}")
        a(f"s_lshl_b32 s52, s{50+t}, 10")
        a(f"buffer_load_dwordx4 {vr(64+4*t,4)}, v5, s[20:23], s52 offen")
        a(f"s_lshl_b32 s52, s{50+t}, 4")
        a(f"s_add_u32 s52, s52, {WS_STATS}")
        a(f"buffer_load_dwordx2 {vr(16+2*t,2)}, v2, s[24:27], s52 offen sc1")
    a("s_waitcnt vmcnt(0)")
    for t in range(2):
        for j in range(4):
            a(f"v_lshlrev_b32 v{32+8*t+2*j}, 16, v{64+4*t+j}")
            a(f"v_and_b32 v{33+8*t+2*j}, s42, v{64+4*t+j}")
        a(f"v_sub_f32 v{20+4*t}, 0, v{16+2*t}")
        a(f"v_sub_f32 v{21+4*t}, 0, v{16+2*t}")
        a(f"v_mov_b32 v{22+4*t}, v{17+2*t}")
        a(f"v_mov_b32 v{23+4*t}, v{17+2*t}")
    ln_normalize(a, [64, 68], 32, 48, [20, 24], [22, 26], 42)
    a(f"s_mov_b32 s40, {WS_XSEL}")
    a("buffer_store_dwordx4 v[64:67], v5, s[24:27], s40 offen sc1")
    a("buffer_store_dwordx4 v[68:71], v5, s[24:27], s40 offen offset:1024 sc1")
    a("v_mov_b32 v16, s60")
    a("v_mov_b32 v17, s48")
    a("v_mov_b32 v18, s49")
    a("v_mov_b32 v19, s60")
    a(f"s_mov_b32 s40, {WS_SELG}")
    a("s_waitcnt vmcnt(0)")
    a("s_mov_b64 exec, 1")
    a("buffer_store_dwordx4 v[16:19], v2, s[24:27], s40 offen sc1")
    a("s_mov_b64 exec, -1")
    a("s_branch FFN_GO")
    a.label("R_LN")

    a("s_lshl_b32 s43, s19, 3")
    a("s_add_u32 s43, s43, s17")
    a("s_lshl_b32 s44, s16, 1")
    a("s_add_u32 s44, s44, s43")
    a("s_lshl_b32 s45, s44, 10")
    NR = 2
    R = range(NR)
    XU, D = 32, 48
    STV = 96
    a(f"s_mul_i32 s40, s16, {NR*1040}")
    a(f"s_add_u32 s40, s40, {L_XN}")
    a("v_add_u32 v3, s40, v5")
    a(f"v_add_u32 v4, 0x{P1_WR:x}, v5")
    a("s_barrier")
    lds_wait(a, "LN0", need_imm=1, vt=84)
    stamp(a, 1)
    a("v_mov_b32 v104, 0")
    a("buffer_load_dword v105, v104, s[72:75], 0 offen sc1")
    for i in R:
        a(f"ds_read_b128 {vr(8+4*i,4)}, v3 offset:{1040*i}")
    a(f"ds_read_b128 {vr(24,4)}, v4")
    for i in R:
        a(f"s_waitcnt lgkmcnt({NR - i})")
        for j in range(4):
            a(f"v_lshlrev_b32 v{XU+8*i+2*j}, 16, v{8+4*i+j}")
            a(f"v_and_b32 v{XU+8*i+2*j+1}, s42, v{8+4*i+j}")
    for i in R:
        a(f"v_pk_add_f32 {vr(72+2*i,2)}, {vr(XU+8*i,2)}, {vr(XU+8*i+2,2)}")
        a(f"v_pk_add_f32 {vr(80+2*i,2)}, {vr(XU+8*i+4,2)}, {vr(XU+8*i+6,2)}")
    for i in R:
        a(f"v_pk_add_f32 {vr(72+2*i,2)}, {vr(72+2*i,2)}, {vr(80+2*i,2)}")
    for i in R:
        a(f"v_add_f32 v{64+i}, v{72+2*i}, v{73+2*i}")
    wave_reduce_rows(a, [64 + i for i in R])
    a("s_nop 0")
    for i in R:
        a(f"v_readlane_b32 s{48+i}, v{64+i}, 63")
    a("v_mov_b32 v68, 0xbb000000")
    a("s_nop 1")
    for i in R:
        a(f"v_mul_f32 v{72+2*i}, s{48+i}, v68")
        a(f"v_mul_f32 v{73+2*i}, s{48+i}, v68")
    for i in R:
        for j in range(4):
            a(f"v_pk_add_f32 {vr(D+8*i+2*j,2)}, {vr(XU+8*i+2*j,2)}, {vr(72+2*i,2)}")
    for i in R:
        a(f"v_pk_mul_f32 {vr(80+2*i,2)}, {vr(D+8*i,2)}, {vr(D+8*i,2)}")
    for j in range(1, 4):
        for i in R:
            a(f"v_pk_fma_f32 {vr(80+2*i,2)}, {vr(D+8*i+2*j,2)}, {vr(D+8*i+2*j,2)}, {vr(80+2*i,2)}")
    for i in R:
        a(f"v_add_f32 v{64+i}, v{80+2*i}, v{81+2*i}")
    wave_reduce_rows(a, [64 + i for i in R])
    a("s_nop 0")
    for i in R:
        a(f"v_readlane_b32 s{52+i}, v{64+i}, 63")
    a("s_nop 1")
    for i in R:
        a(f"v_cvt_pk_bf16_f32 v{72+2*i}, v{72+2*i}, v{72+2*i}")
    for i in R:
        a(f"v_and_b32 v{73+2*i}, s42, v{72+2*i}")
        a(f"v_lshlrev_b32 v{72+2*i}, 16, v{72+2*i}")
    for i in R:
        a(f"v_mul_f32 v{64+i}, s{52+i}, -v68")
    for op in ("add", "sqrt", "rcp"):
        a("v_cvt_pk_bf16_f32 v66, v64, v65")
        a("v_lshlrev_b32 v64, 16, v66")
        a("v_and_b32 v65, s42, v66")
        for i in R:
            if op == "add":
                a(f"v_add_f32 v{64+i}, 0x{f2u(1e-5):08x}, v{64+i}")
            elif op == "sqrt":
                a(f"v_sqrt_f32 v{64+i}, v{64+i}")
            else:
                a(f"v_rcp_f32 v{80+2*i}, v{64+i}")
        if op == "sqrt":
            a("s_nop 0")
    a("s_nop 1")
    for i in R:
        a(f"v_mov_b32 v{81+2*i}, v{80+2*i}")
    ln_normalize(a, [8, 12], XU, D, [72, 74], [80, 82], 42)
    a("s_waitcnt lgkmcnt(0)")
    for i in R:
        a(f"v_mov_b32 v{64+i}, 0")
    for j in range(4):
        for i in R:
            a(f"v_dot2c_f32_bf16 v{64+i}, v{8+4*i+j}, v{24+j}")
    for i in R:
        a(f"v_sub_f32 v{STV+4*i}, 0, v{72+2*i}")
        a(f"v_mov_b32 v{STV+4*i+1}, v{80+2*i}")
    wave_reduce_rows(a, [64 + i for i in R])
    a("v_cvt_pk_bf16_f32 v66, v64, v65")
    a("v_lshlrev_b32 v64, 16, v66")
    a("v_and_b32 v65, s42, v66")
    for i in R:
        a(f"v_ashrrev_i32 v{68+i}, 31, v{64+i}")
    for i in R:
        a(f"v_or_b32 v{68+i}, 0x80000000, v{68+i}")
    for i in R:
        a(f"v_xor_b32 v{64+i}, v{64+i}, v{68+i}")
        a(f"s_sub_u32 s{48+i}, {2047-i}, s44")
    for i in R:
        a(f"v_and_b32 v{64+i}, s42, v{64+i}")
    for i in R:
        a(f"v_or_b32 v{64+i}, s{48+i}, v{64+i}")
    a("s_lshl_b32 s40, s16, 3")
    a(f"s_add_u32 s40, s40, {L_KEY}")
    a("v_mov_b32 v4, s40")
    a("v_cmp_eq_u32 vcc, 63, v1")
    for i in R:
        a(f"ds_write_b128 v3, {vr(8+4*i,4)} offset:{1040*i}")
    a("s_and_saveexec_b64 s[56:57], vcc")
    a("ds_write_b64 v4, v[64:65]")
    a("s_mov_b64 exec, s[56:57]")
    a("v_and_b32 v3, 15, v1")
    a("v_lshrrev_b32 v4, 4, v1")
    a("s_waitcnt lgkmcnt(0)")
    a("v_mov_b32 v6, 1")
    lds_add(a, 86, 6, 12)
    stamp(a, 2)
    a("s_waitcnt vmcnt(0)")
    a("v_readfirstlane_b32 s60, v105")
    a("s_cmp_lg_u32 s60, 0")
    a("s_cbranch_scc1 TAGX_LN")
    get_tag(a, "LN", 104)
    for i in R:
        a(f"v_mov_b32 v{STV+4*i+2}, s60")
        a(f"v_mov_b32 v{STV+4*i+3}, s60")
    a("s_lshl_b32 s40, s44, 4")
    a(f"s_add_u32 s40, s40, {WS_STATS}")
    a("s_mov_b64 exec, 1")
    for i in R:
        a(f"buffer_store_dwordx4 {vr(STV+4*i,4)}, v104, s[24:27], s40 offen offset:{16*i} sc1")
    a("s_mov_b64 exec, -1")
    lds_wait(a, "LN1", need_imm=4, off=12, two=False, vt=84)
    lds_wait(a, "LN2", need_imm=2, vt=84)
    a("s_cmp_ge_u32 s16, 2")
    a("s_cbranch_scc1 LN_MISC")
    a("v_and_b32 v6, 7, v1")
    a("v_mul_u32_u24 v6, 1040, v6")
    a("v_lshl_add_u32 v6, v4, 4, v6")
    a(f"v_add_u32 v6, {L_XN}, v6")
    a("v_lshlrev_b32 v7, 8, v4")
    a("v_lshl_add_u32 v7, v3, 3, v7")
    a("s_lshl_b32 s40, s16, 14")
    a(f"s_add_u32 s40, s40, {P1_KV}")
    a("v_add_u32 v7, s40, v7")
    a("s_cmp_eq_u32 s16, 1")
    a("s_cbranch_scc1 LN_V")
    for part in ("K", "V"):
        if part == "V":
            a.label("LN_V")
        for half in range(2):
            for s in range(8 * half, 8 * half + 8):
                a(f"ds_read_b128 {vr(32+4*(s&7),4)}, v6 offset:{64*s}")
                a(f"ds_read_b64_tr_b16 {vr(64+4*(s&7),2)}, v7 offset:{1024*s}")
                a(f"ds_read_b64_tr_b16 {vr(64+4*(s&7)+2,2)}, v7 offset:{1024*s+128}")
            for s in range(8 * half, 8 * half + 8):
                k = s & 7
                if k in (0, 4):
                    a(f"s_waitcnt lgkmcnt({12 if k == 0 else 0})")
                cc = "0" if s == 0 else vr(8, 4)
                if part == "K":
                    a(f"v_mfma_f32_16x16x32_bf16 {vr(8,4)}, {vr(64+4*k,4)}, {vr(32+4*k,4)}, {cc}")
                else:
                    a(f"v_mfma_f32_16x16x32_bf16 {vr(8,4)}, {vr(32+4*k,4)}, {vr(64+4*k,4)}, {cc}")
            a("s_nop 7")
        if part == "K":
            a("v_lshrrev_b32 v7, 1, v4")
            a("v_lshl_add_u32 v7, v7, 5, v3")
            a("v_lshlrev_b32 v7, 4, v7")
            a("v_and_b32 v14, 1, v4")
            a("v_lshl_add_u32 v7, v14, 3, v7")
            a("s_lshr_b32 s40, s43, 5")
            a("s_lshl_b32 s40, s40, 10")
            a("s_and_b32 s41, s43, 31")
            a("s_lshl_b32 s41, s41, 4")
            a("s_add_u32 s40, s40, s41")
            a("v_cmp_gt_u32 vcc, 8, v3")
        else:
            a("v_and_b32 v7, 3, v3")
            a("v_and_b32 v14, 4, v3")
            a("v_lshl_add_u32 v7, v14, 1, v7")
            a("v_lshrrev_b32 v14, 3, v3")
            a("v_lshl_add_u32 v7, v14, 2, v7")
            a("v_lshlrev_b32 v7, 4, v7")
            a("v_lshl_add_u32 v7, v4, 3, v7")
            a("s_lshr_b32 s40, s43, 4")
            a("s_lshl_b32 s40, s40, 10")
            a("s_and_b32 s41, s43, 8")
            a("s_lshl_b32 s41, s41, 6")
            a("s_add_u32 s40, s40, s41")
            a(f"s_add_u32 s40, s40, {WS_VFRAG}")
            a("v_cmp_gt_u32 vcc, 32, v1")
        a("v_cvt_pk_bf16_f32 v12, v8, v9")
        a("v_cvt_pk_bf16_f32 v13, v10, v11")
        a("s_and_saveexec_b64 s[56:57], vcc")
        a("buffer_store_dwordx2 v[12:13], v7, s[24:27], s40 offen sc1")
        a("s_mov_b64 exec, s[56:57]")
        a("s_branch LN_DONE")
    a.label("LN_MISC")
    a("s_cmp_eq_u32 s16, 2")
    a("s_cbranch_scc1 LN_TOP")
    a("v_add_u32 v6, 16, v1")
    a("v_lshlrev_b32 v6, 4, v6")
    a("v_and_b32 v7, 11, v1")
    a("v_mov_b32 v8, 0x3f803f80")
    a("v_cmp_eq_u32 vcc, 0, v7")
    a("s_lshr_b32 s40, s43, 4")
    a("s_lshl_b32 s40, s40, 10")
    a("v_cndmask_b32 v8, 0, v8, vcc")
    a("v_mov_b32 v9, v8")
    a("v_mov_b32 v10, v8")
    a("v_mov_b32 v11, v8")
    a("s_and_b32 s41, s43, 8")
    a("s_lshl_b32 s41, s41, 6")
    a("s_add_u32 s40, s40, s41")
    a(f"s_add_u32 s40, s40, {WS_VFRAG}")
    a("v_cmp_gt_u32 vcc, 16, v1")
    a("s_and_saveexec_b64 s[56:57], vcc")
    a("buffer_store_dwordx4 v[8:11], v6, s[24:27], s40 offen sc1")
    a("s_mov_b64 exec, s[56:57]")
    a("s_branch LN_MISC2")
    a.label("LN_TOP")
    a("v_and_b32 v3, 7, v1")
    a("v_lshlrev_b32 v3, 2, v3")
    a(f"v_add_u32 v3, 0x{L_KEY:x}, v3")
    a("ds_read_b32 v8, v3")
    a("s_waitcnt lgkmcnt(0)")
    a("v_mov_b32 v10, v8")
    wave_reduce_rows(a, [10], op="v_max_u32", nsteps=3)
    a("v_cmp_eq_u32 vcc, v8, v10")
    a("s_nop 1")
    a("v_cndmask_b32 v11, v8, 0, vcc")
    wave_reduce_rows(a, [11], op="v_max_u32", nsteps=3)
    a("s_lshl_b32 s40, s2, 3")
    a(f"s_add_u32 s40, s40, {WS_TOPC}")
    a("v_mov_b32 v3, 0")
    a("v_cmp_eq_u32 vcc, 0, v1")
    a("s_and_saveexec_b64 s[56:57], vcc")
    a("buffer_store_dwordx2 v[10:11], v3, s[24:27], s40 offen sc1")
    a("s_mov_b64 exec, s[56:57]")
    a.label("LN_MISC2")
    a.label("LN_DONE")
    a("s_getreg_b32 s59, hwreg(HW_REG_XCC_ID)")
    a("v_mov_b32 v8, s60")
    a("v_mov_b32 v9, s59")
    a(f"v_mov_b32 v6, 0x{P1_FL:x}")
    a("v_mov_b32 v7, 1")
    a("s_lshl_b32 s40, s2, 7")
    a(f"s_add_u32 s40, s40, {WS_FLAG1}")
    a("s_waitcnt vmcnt(0) lgkmcnt(0)")
    a("s_mov_b64 exec, 1")
    a("ds_add_rtn_u32 v7, v6, v7 offset:16")
    a("s_waitcnt lgkmcnt(0)")
    a("v_readfirstlane_b32 s41, v7")
    a("s_cmp_lg_u32 s41, 3")
    a("s_cbranch_scc1 LN_NOFLAG")
    a("buffer_store_dwordx2 v[8:9], v104, s[24:27], s40 offen sc1")
    a.label("LN_NOFLAG")
    a("s_mov_b64 exec, -1")
    stamp(a, 3)
    a("s_mov_b32 s46, 0")
    a("s_branch ATT")

    a.label("R_GEMM")
    gemm_addr(a, P1_W)
    stamp(a, 1)
    gemm_loop_p1(a)
    stamp(a, 3)
    a("s_waitcnt vmcnt(0)")
    a("v_readfirstlane_b32 s60, v121")
    a("s_cmp_lg_u32 s60, 0")
    a("s_cbranch_scc1 TAGX_G")
    get_tag(a, "G", 2)
    a("s_lshr_b32 s40, s16, 1")
    a("s_lshl_b32 s40, s40, 5")
    a("s_add_u32 s40, s40, s17")
    a("s_lshl_b32 s40, s40, 4")
    a(f"s_add_u32 s40, s40, {WS_STATS}")
    a("v_and_b32 v2, 31, v1")
    a("v_lshlrev_b32 v2, 4, v2")
    a("s_lshl_b32 s41, s16, 11")
    a(f"s_add_u32 s41, s41, {L_Q}")
    a("v_lshlrev_b32 v5, 4, v1")
    a("v_add_u32 v3, s41, v5")
    poll(a, "ST", 2, [40], wide=True, cmpw=(22, 23))
    lds_wait(a, "GQ", need_imm=4, off=16, two=False, vt=84)
    a(f"v_mul_f32 v6, 0x{f2u(SCALE):08x}, v21")
    a("v_mul_f32 v7, v20, v6")
    for i in range(16):
        a(f"v_mul_f32 v{ACC+i}, v{ACC+i}, v6")
    for i in range(16):
        a(f"v_fma_f32 v{ACC+i}, -v{ACC2+i}, v7, v{ACC+i}")
    for i in range(8):
        a(f"v_cvt_pk_bf16_f32 v{FR+i}, v{ACC+2*i}, v{ACC+2*i+1}")
    a(f"ds_write_b128 v3, {vr(FR,4)}")
    a(f"ds_write_b128 v3, {vr(FR+4,4)} offset:1024")
    a("s_mov_b32 s46, 1")

    a.label("ATT")
    a("s_lshl_b32 s44, s16, 14")
    a("s_lshl_b32 s45, s16, 15")
    a(f"s_add_u32 s45, s45, {WS_VFRAG}")
    a(f"v_mov_b32 v{IDX}, 0xdddddddd")
    for i in range(0, 64, 2):
        a(f"v_mov_b64 {vr(O0+i,2)}, 0")
    for i in range(0, 4, 2):
        a(f"v_mov_b64 {vr(VB+12+i,2)}, 0")
    for i in range(0, 8, 2):
        a(f"v_mov_b64 {vr(S0+24+i,2)}, 0")
    a("s_lshl_b32 s40, s46, 12")
    a(f"s_add_u32 s40, s40, {L_Q}")
    for i in range(4):
        a(f"s_add_u32 s41, s16, {i}")
        a("s_and_b32 s41, s41, 3")
        a("s_lshl_b32 s41, s41, 10")
        a("s_add_u32 s41, s41, s40")
        a(f"v_add_u32 v{10+i}, s41, v5")
    a("s_waitcnt lgkmcnt(0)")
    a("s_barrier")
    stamp(a, 4)
    a(f"buffer_load_dwordx4 {vr(KB,4)}, v5, s[24:27], s44 offen")
    a(f"buffer_load_dwordx4 {vr(VB,4)}, v5, s[24:27], s45 offen")
    a(f"buffer_load_dwordx4 {vr(VB+4,4)}, v5, s[24:27], s45 offen offset:1024")
    a(f"buffer_load_dwordx4 {vr(KB+4,4)}, v5, s[24:27], s44 offen offset:1024")
    a(f"buffer_load_dwordx4 {vr(VB+8,4)}, v5, s[24:27], s45 offen offset:2048")
    a("s_add_u32 s44, s44, 2048")
    a("s_add_u32 s45, s45, 3072")
    for i in range(4):
        a(f"ds_read_b128 {vr(Q0+4*i,4)}, v{10+i}")
    a("s_waitcnt lgkmcnt(0)")
    a("s_barrier")
    a("s_waitcnt vmcnt(4)")
    a(f"v_mfma_f32_32x32x16_bf16 {vr(S0,16)}, {vr(KB,4)}, {vr(Q0,4)}, 0")
    a("s_mov_b32 s47, 0")
    stamp(a, 5)
    a("s_nop 15")
    a.raw(".p2align 6")
    a.label("ATT_LOOP")
    for X in range(8):
        t = X >> 2
        c = X & 3
        Sx = S0 + 16 * (X & 1)
        Sp = S0 + 16 * ((X + 1) & 1)
        cp = (c - 1) & 3
        tp = ((X - 1) >> 2) & 1
        cn = (c + 1) & 3
        tn = ((X + 1) >> 2) & 1
        for e in range(16):
            a(f"v_exp_f32 v{Sx+e}, v{Sx+e}")
            if e == 1:
                if c == 1:
                    a("s_waitcnt vmcnt(3)")
                a(f"v_smfmac_f32_32x32x32_bf16 {vr(O0+16*cp,16)}, {vr(VB+8*tp+4,4)}, {vr(Sp+8,8)}, v{IDX}")
                if c == 0:
                    a(f"buffer_load_dwordx4 {vr(VB+8*tp+4,4)}, v5, s[24:27], s45 offen")
                    a("s_add_u32 s45, s45, 1024")
            if e == 4:
                if c == 3:
                    a("s_waitcnt vmcnt(3)")
                a(f"v_mfma_f32_32x32x16_bf16 {vr(Sp,16)}, {vr(KB+4*tn,4)}, {vr(Q0+4*cn,4)}, 0")
                if c == 2:
                    a(f"buffer_load_dwordx4 {vr(KB+4*t,4)}, v5, s[24:27], s44 offen")
                    a("s_add_u32 s44, s44, 1024")
            if e == 14:
                if c == 0:
                    a("s_waitcnt vmcnt(4)")
                a(f"v_smfmac_f32_32x32x32_bf16 {vr(O0+16*c,16)}, {vr(VB+8*t,4)}, {vr(Sx,8)}, v{IDX}")
                if c == 3:
                    a(f"buffer_load_dwordx4 {vr(VB+8*t,4)}, v5, s[24:27], s45 offen")
                    a("s_add_u32 s45, s45, 1024")
    a("s_add_u32 s47, s47, 1")
    a("s_cmp_lt_u32 s47, 8")
    a("s_cbranch_scc1 ATT_LOOP")
    stamp(a, 6)
    a("s_nop 1")
    a(f"v_smfmac_f32_32x32x32_bf16 {vr(O0+48,16)}, {vr(VB+8+4,4)}, {vr(S0+16+8,8)}, v{IDX}")
    a("s_mul_i32 s40, s46, 27648")
    a("v_lshlrev_b32 v9, 2, v1")
    for i in range(1, 4):
        a(f"s_add_u32 s41, s16, {i}")
        a("s_and_b32 s41, s41, 3")
        a("s_mul_i32 s41, s41, 6912")
        a("s_add_u32 s41, s41, s40")
        a(f"v_add_u32 v{9+i}, s41, v5")
        a(f"v_add_u32 v{12+i}, s41, v9")
    a("s_mul_i32 s41, s16, 6912")
    a("s_add_u32 s41, s41, s40")
    a("v_add_u32 v6, s41, v5")
    a("v_add_u32 v7, s41, v9")
    for i in range(1, 4):
        a(f"ds_write_b128 v{9+i}, {vr(O0+16*i,4)} offset:{2304*(i-1)}")
        a(f"ds_write_b128 v{9+i}, {vr(O0+16*i+4,4)} offset:{2304*(i-1)+1024}")
        a(f"ds_write_b32 v{12+i}, v{O0+16*i+8} offset:{2304*(i-1)+2048}")
    srd(a, 32, 14, 15, WS_O, 2048 * 1024)
    a("s_mov_b32 s67, 0")
    a("s_waitcnt lgkmcnt(0)")
    a("s_cmp_eq_u32 s46, 1")
    a("s_cbranch_scc1 ATT_BR")
    a("s_load_dwordx2 s[68:69], s[0:1], 80")
    a("s_lshr_b32 s64, s16, 1")
    a("s_lshl_b32 s64, s64, 5")
    a("s_add_u32 s64, s64, s17")
    a("s_and_b32 s40, s16, 1")
    a("s_lshl_b32 s40, s40, 5")
    a("s_add_u32 s40, s40, s18")
    a("s_lshl_b32 s65, s64, 10")
    a("s_lshl_b32 s40, s40, 1")
    a("s_add_u32 s65, s65, s40")
    a("s_add_u32 s66, s65, 16384")
    a(f"v_mov_b32 v2, 0x{L_SEL:x}")
    a.label("SELW")
    a("ds_read_b128 v[48:51], v2")
    a("s_waitcnt vmcnt(0) lgkmcnt(0)")
    a("v_readfirstlane_b32 s40, v48")
    a("v_readfirstlane_b32 s76, v49")
    a("v_readfirstlane_b32 s77, v50")
    a("s_cmp_eq_u32 s40, 0")
    a("s_cbranch_scc1 SELW")
    p3_pre(a, "A", *PRE_A)
    a("s_waitcnt lgkmcnt(0)")
    a.label("ATT_BR")
    a("s_barrier")
    stamp(a, 7)
    Rr = O0
    for i in range(1, 4):
        a(f"ds_read_b128 {vr(Rr+16*i,4)}, v6 offset:{2304*(i-1)}")
        a(f"ds_read_b128 {vr(Rr+16*i+4,4)}, v6 offset:{2304*(i-1)+1024}")
        a(f"ds_read_b32 v{Rr+16*i+8}, v7 offset:{2304*(i-1)+2048}")
    a(f"v_mov_b32 v2, 0x{L_SEL:x}")
    a("ds_read_b32 v9, v2 offset:12")
    a("s_mov_b32 s48, 0x7f000000")
    a("s_mov_b32 s49, 0x1f800000")
    a("s_mov_b32 s50, 0x5f800000")
    a("v_and_b32 v2, 31, v1")
    a("v_lshrrev_b32 v3, 5, v1")
    a("v_mul_u32_u24 v4, 144, v2")
    a("v_lshl_add_u32 v4, v3, 4, v4")
    a("s_mul_i32 s40, s46, 4608")
    a("s_lshl_b32 s41, s16, 5")
    a("s_add_u32 s40, s40, s41")
    a(f"s_add_u32 s40, s40, {L_KV}")
    a("v_add_u32 v4, s40, v4")
    a("v_lshrrev_b32 v2, 3, v1")
    a("v_and_b32 v3, 7, v1")
    a("v_mul_u32_u24 v15, 144, v2")
    a("v_lshl_add_u32 v15, v3, 4, v15")
    a("s_mul_i32 s40, s78, 1152")
    a(f"s_add_u32 s40, s40, {L_KV - 4*1152}")
    a("v_add_u32 v15, s40, v15")
    a("v_lshlrev_b32 v2, 10, v2")
    a("v_lshl_add_u32 v2, v3, 4, v2")
    a("s_lshl_b32 s40, s78, 3")
    a("s_add_u32 s40, s40, s17")
    a("s_sub_u32 s40, s40, 32")
    a("s_lshl_b32 s40, s40, 10")
    a("s_lshl_b32 s41, s18, 1")
    a("s_add_u32 s51, s40, s41")
    for i in range(1, 4):
        a(f"s_waitcnt lgkmcnt({3*(3-i)+1})")
        for j in range(0, 8, 2):
            a(f"v_pk_add_f32 {vr(Rr+j,2)}, {vr(Rr+j,2)}, {vr(Rr+16*i+j,2)}")
        a(f"v_add_f32 v{Rr+8}, v{Rr+8}, v{Rr+16*i+8}")
    a("s_waitcnt lgkmcnt(0)")
    a("v_readfirstlane_b32 s57, v9")
    a(f"v_add_f32 v11, abs(v{Rr}), abs(v{Rr+1})")
    a(f"v_add_f32 v12, abs(v{Rr+2}), abs(v{Rr+3})")
    a(f"v_add_f32 v13, abs(v{Rr+4}), abs(v{Rr+5})")
    a(f"v_add_f32 v14, abs(v{Rr+6}), abs(v{Rr+7})")
    a("v_add_f32 v11, v11, v12")
    a("v_add_f32 v13, v13, v14")
    a("v_add_f32 v11, v11, v13")
    a("v_cmp_gt_f32 s[52:53], s48, v11")
    a(f"v_cmp_le_f32 s[54:55], s49, v{Rr+8}")
    a(f"v_cmp_ge_f32 vcc, s50, v{Rr+8}")
    a("s_and_b64 s[52:53], s[52:53], s[54:55]")
    a("s_and_b64 s[52:53], s[52:53], vcc")
    a("s_cmp_eq_u64 s[52:53], -1")
    if "forceslow" in EXP: a("s_branch ATT_SLOW")
    a("s_cbranch_scc0 ATT_SLOW")
    a.label("ATT_FIN")
    a(f"v_rcp_f32 v11, v{Rr+8}")
    a("s_nop 0")
    for i in range(8):
        a(f"v_mul_f32 v{Rr+i}, v{Rr+i}, v11")
    for i in range(4):
        a(f"v_cvt_pk_bf16_f32 v{Rr+12+i}, v{Rr+2*i}, v{Rr+2*i+1}")
    a(f"ds_write_b128 v4, {vr(Rr+12,4)}")
    a("s_waitcnt lgkmcnt(0)")
    a("s_barrier")
    a(f"ds_read_b128 {vr(Rr+12,4)}, v15")
    a("s_waitcnt lgkmcnt(0)")
    a("s_cmp_eq_u32 s57, 1")
    a("s_cbranch_scc1 ATT_ST1")
    a(f"buffer_store_dwordx4 {vr(Rr+12,4)}, v2, s[32:35], s51 offen sc1")
    a("s_branch ATT_ST2")
    a.label("ATT_ST1")
    a(f"buffer_store_dwordx4 {vr(Rr+12,4)}, v2, s[32:35], s51 offen")
    a.label("ATT_ST2")
    a(f"v_mov_b32 v4, 0x{L_MISC:x}")
    a("v_mov_b32 v3, 1")
    a("s_lshl_b32 s40, s17, 4")
    a("s_lshl_b32 s41, s19, 7")
    a("s_add_u32 s40, s40, s41")
    a(f"s_add_u32 s40, s40, {WS_FLAG2}")
    a("v_mov_b32 v9, s60")
    a("v_mov_b32 v10, 0")
    a("s_waitcnt vmcnt(0)")
    a("s_mov_b64 exec, 1")
    a("ds_add_rtn_u32 v3, v4, v3 offset:32")
    a("s_waitcnt lgkmcnt(0)")
    a("v_readfirstlane_b32 s41, v3")
    a("s_cmp_lg_u32 s41, 7")
    a("s_cbranch_scc1 ATT_NOFLAG")
    a("s_cmp_eq_u32 s57, 1")
    a("s_cbranch_scc1 ATT_FL1")
    a("buffer_store_dword v9, v10, s[24:27], s40 offen sc1")
    a("s_branch ATT_NOFLAG")
    a.label("ATT_FL1")
    a("buffer_store_dword v9, v10, s[24:27], s40 offen")
    a.label("ATT_NOFLAG")
    a("s_mov_b64 exec, -1")
    stamp(a, 8)
    a("s_cmp_eq_u32 s46, 0")
    a("s_cbranch_scc1 P3")
    stamp_flush(a)
    a.label("L_END")
    a("s_endpgm")

    a.label("ATT_SLOW")
    a("s_mov_b32 s67, 1")
    a("v_mov_b32 v11, 0xff7fffff")
    a("s_mov_b32 s44, 0")
    a.label("ATT_SLOW1")
    a(f"buffer_load_dwordx4 {vr(KB,4)}, v5, s[24:27], s44 offen")
    a("s_waitcnt vmcnt(0)")
    a(f"v_mfma_f32_32x32x16_bf16 {vr(S0,16)}, {vr(KB,4)}, {vr(Q0,4)}, 0")
    a("s_nop 15")
    a("s_nop 3")
    for i in range(0, 16, 2):
        a(f"v_max3_f32 v11, v{S0+i}, v{S0+i+1}, v11")
    a("s_add_u32 s44, s44, 1024")
    a("s_cmp_lt_u32 s44, 0x10000")
    a("s_cbranch_scc1 ATT_SLOW1")
    a("v_mov_b32 v9, v11")
    a("s_nop 1")
    a("v_permlane32_swap_b32 v11, v9")
    a("s_nop 1")
    a("v_max_f32 v11, v11, v9")
    for i in range(16):
        a(f"v_sub_f32 v{S0+16+i}, 0, v11")
    for i in range(0, 16, 2):
        a(f"v_mov_b64 {vr(Rr+i,2)}, 0")
    a("s_mov_b32 s44, 0")
    a(f"s_mov_b32 s45, {WS_VFRAG}")
    a.label("ATT_SLOW2")
    a(f"buffer_load_dwordx4 {vr(KB,4)}, v5, s[24:27], s44 offen")
    a(f"buffer_load_dwordx4 {vr(VB,4)}, v5, s[24:27], s45 offen")
    a(f"buffer_load_dwordx4 {vr(VB+4,4)}, v5, s[24:27], s45 offen offset:1024")
    a("s_waitcnt vmcnt(0)")
    a(f"v_mfma_f32_32x32x16_bf16 {vr(S0,16)}, {vr(KB,4)}, {vr(Q0,4)}, {vr(S0+16,16)}")
    a("s_nop 15")
    a("s_nop 3")
    for e in range(16):
        a(f"v_exp_f32 v{S0+e}, v{S0+e}")
    a("s_nop 1")
    a(f"v_smfmac_f32_32x32x32_bf16 {vr(Rr,16)}, {vr(VB,4)}, {vr(S0,8)}, v{IDX}")
    a(f"v_smfmac_f32_32x32x32_bf16 {vr(Rr,16)}, {vr(VB+4,4)}, {vr(S0+8,8)}, v{IDX}")
    a("s_nop 15")
    a("s_nop 3")
    a("s_add_u32 s44, s44, 1024")
    a("s_add_u32 s45, s45, 2048")
    a("s_cmp_lt_u32 s44, 0x10000")
    a("s_cbranch_scc1 ATT_SLOW2")
    a("s_branch ATT_FIN")

    a.label("P3")
    a("s_mov_b32 s70, 0x200000")
    a("s_mov_b32 s71, 0x00020000")
    a("s_cmp_lg_u32 s67, 0")
    a("s_cbranch_scc1 P3_REDO")
    a.label("P3_GO")
    gemm_addr(a, L_W)
    a("s_mul_i32 s40, s16, 4352")
    a(f"s_add_u32 s40, s40, {L_KV + 13312}")
    a("v_lshlrev_b32 v14, 4, v1")
    a("v_add_u32 v14, s40, v14")
    a(f"v_lshrrev_b32 v15, 1, v{PV+1}")
    a("v_mul_u32_u24 v15, 2176, v15")
    a(f"v_and_b32 v2, 1, v{PV+1}")
    a("v_lshl_add_u32 v15, v2, 9, v15")
    a(f"v_lshl_add_u32 v15, v{PV}, 4, v15")
    a("v_add_u32 v15, s40, v15")
    for i in range(0, 16, 2):
        a(f"v_mov_b64 {vr(ACC+i,2)}, 0")
    a("s_mov_b32 s41, 0")
    stamp(a, 9)
    a(f"v_mov_b32 v4, 0x{L_MISC:x}")
    a.label("P3_LOOP")
    a("ds_read_b64 v[2:3], v4 offset:16")
    a("s_waitcnt lgkmcnt(0)")
    a("v_and_b32 v2, v2, v3")
    a("s_nop 0")
    a("v_readfirstlane_b32 s40, v2")
    a("s_andn2_b32 s40, s40, s41")
    a("s_cbranch_scc0 P3_LOOP")
    FB = [16, 64]

    def pick(ab):
        a("s_ff1_i32_b32 s43, s40")
        a("s_bitset1_b32 s41, s43")
        a("s_bitset0_b32 s40, s43")
        a("s_lshl_b32 s43, s43, 13")
        a(f"v_add_u32 v{ab}, s43, v6")
        for i in range(4):
            a(f"v_add_u32 v{ab+1+i}, s43, v{10+i}")

    def rd(buf, ab):
        for sx in range(4):
            a(f"ds_read_b64_tr_b16 {vr(FB[buf]+8*sx,2)}, v{ab} offset:{sx*2048}")
            a(f"ds_read_b64_tr_b16 {vr(FB[buf]+8*sx+2,2)}, v{ab} offset:{sx*2048+512}")
            a(f"ds_read_b128 {vr(FB[buf]+8*sx+4,4)}, v{ab+1+sx}")

    def mm(buf, base):
        for sx in range(4):
            a(f"s_waitcnt lgkmcnt({base+3*(3-sx)})")
            a(f"v_mfma_f32_32x32x16_bf16 {vr(ACC,16)}, {vr(FB[buf]+8*sx,4)}, {vr(FB[buf]+8*sx+4,4)}, {vr(ACC,16)}")

    a.label("P3_CH")
    pick(128)
    rd(0, 128)
    a("s_cmp_eq_u32 s40, 0")
    a("s_cbranch_scc1 P3_ONE")
    pick(134)
    a("s_waitcnt lgkmcnt(3)")
    rd(1, 134)
    a("s_waitcnt lgkmcnt(12)")
    for sx in range(4):
        a(f"v_mfma_f32_32x32x16_bf16 {vr(ACC,16)}, {vr(FB[0]+8*sx,4)}, {vr(FB[0]+8*sx+4,4)}, {vr(ACC,16)}")
    mm(1, 0)
    a("s_branch P3_NXT")
    a.label("P3_ONE")
    mm(0, 0)
    a.label("P3_NXT")
    a("s_cmp_lg_u32 s40, 0")
    a("s_cbranch_scc1 P3_CH")
    a("s_cmp_lg_u32 s41, 0xff")
    a("s_cbranch_scc1 P3_LOOP")
    a("s_nop 15")
    stamp(a, 12)
    for ch in range(4):
        a(f"ds_write_b128 v14, {vr(ACC+4*ch,4)} offset:{1088*ch}")
    a("s_waitcnt lgkmcnt(0)")
    for j in range(2):
        for e in range(2):
            a(f"ds_read_b128 {vr(FR+8*j+4*e,4)}, v15 offset:{j*256+e*1088}")
    a("s_waitcnt lgkmcnt(0)")
    for i in range(8):
        a(f"v_pk_fma_f32 {vr(FR+2*i,2)}, {vr(FR+2*i,2)}, {vr(PG+2*i,2)}, {vr(PXF+2*i,2)}")
    for i in range(8):
        a(f"v_cvt_pk_bf16_f32 v{64+i}, v{FR+2*i}, v{FR+2*i+1}")
    a(f"buffer_store_dwordx4 {vr(64,4)}, v{PV+2}, s[68:71], s65 offen")
    a(f"buffer_store_dwordx4 {vr(68,4)}, v{PV+2}, s[68:71], s66 offen")
    stamp_flush(a)
    a("s_endpgm")
    a.label("P3_REDO")
    p3_pre(a, "B", *PRE_B)
    a("s_branch P3_GO")
    p3_upd(a, "A", *PRE_A)
    p3_upd(a, "B", *PRE_B)


def main(out):
    a = Asm()
    hdr = f"""; {NAME}: fused LN+QKV | MQA attention + routed FFN | out-proj + gate   (generated by gen/gen2.py)
; @launch grid=(256,1,1) block=(768,1,1) lds=163840
.amdgcn_target "amdgcn-amd-amdhsa--gfx950"
.text
"""
    kernel(a)
    vg = 152
    txt = hdr + a.text() + f""".section .rodata,"a"
.p2align 6
.amdhsa_kernel {NAME}_kernel
  .amdhsa_next_free_vgpr {vg}
  .amdhsa_next_free_sgpr {102 if PROF else 80}
  .amdhsa_accum_offset {vg}
  .amdhsa_group_segment_fixed_size 0
  .amdhsa_kernarg_size 104
  .amdhsa_user_sgpr_count 2
  .amdhsa_user_sgpr_kernarg_segment_ptr 1
  .amdhsa_system_sgpr_workgroup_id_x 1
.end_amdhsa_kernel
"""
    open(out, "w").write(txt)


if __name__ == "__main__":
    PROF = os.environ.get("PROF", "0") == "1"
    main(sys.argv[1] if len(sys.argv) > 1 else f"fused.s")
```

```python
import sys, os, struct

NAME = "recurrent_scan__grouped_kv_mqa__moe_arch_mod__prompt"

WS_KMAT = 0x0
WS_VFRAG = 0x10000
WS_STATS = 0x30000
WS_TOPC = 0x38000
WS_SELG = 0x39000
WS_XSEL = 0x39400
WS_FLAG1 = 0x40000
WS_FLAG2 = 0x48000
WS_FLAGF = 0x50000
WS_FLAGA = 0x58000
WS_GP = 0x60000
WS_SMALL = 0xA0000
WS_YPART = 0xA0000
WS_O = 0x200000
WS_PROF = 0xA00000

SCALE = 0.25 * 1.4426950408889634
NLOG2E = -1.4426950408889634
PROF = False
SPIN_MAX = int(os.environ.get('SPIN_MAX', 1 << 17))
POLL_IDS = {}
EXP = os.environ.get('EXP', '')
FFN_THR = int(os.environ.get('FFN_THR', '4'))

L_X = 0
L_W = 65536
L_KV = 131072
P1_X = 0
P1_W = 57344
P1_KV = 114688
L_XN = 147456
P1_WR = 155776
L_KEY = 156800
P1_FL = 156928
L_RED = 0
L_Q = 114688
L_MISC = L_KV + 12288
L_UPD = L_MISC + 64
L_SEL = 63488
L_FX = L_Q


def f2u(x):
    return struct.unpack("<I", struct.pack("<f", x))[0]


class Asm:
    def __init__(self):
        self.l = []
    def __call__(self, s):
        self.l.append("    " + s)
    def label(self, s):
        self.l.append(s + ":")
    def raw(self, s):
        self.l.append(s)
    def c(self, s):
        self.l.append("    ; " + s)
    def text(self):
        return "\n".join(self.l) + "\n"


def srd(a, d, base_lo, base_hi, off, size):
    if off:
        a(f"s_add_u32 s{d}, s{base_lo}, 0x{off:x}")
        a(f"s_addc_u32 s{d+1}, s{base_hi}, 0")
    else:
        a(f"s_mov_b32 s{d}, s{base_lo}")
        a(f"s_mov_b32 s{d+1}, s{base_hi}")
    a(f"s_mov_b32 s{d+2}, 0x{size:x}")
    a(f"s_mov_b32 s{d+3}, 0x00020000")


def stamp(a, i):
    if PROF:
        a("s_memtime s[96:97]")
        a("s_waitcnt lgkmcnt(0)")
        a(f"s_mov_b32 s{80+i}, s96")


def stamp_flush(a):
    if PROF:
        a("s_waitcnt vmcnt(0)")
        stamp(a, 13)
        a("s_memrealtime s[96:97]")
        a("s_waitcnt lgkmcnt(0)")
        a("s_mov_b32 s95, s96")
        a(f"s_add_u32 s96, s14, 0x{WS_PROF:x}")
        a("s_addc_u32 s97, s15, 0")
        a("s_mov_b32 s98, 0x100000")
        a("s_mov_b32 s99, 0x00020000")
        a("s_lshl_b32 s79, s2, 4")
        a("s_add_u32 s79, s79, s78")
        a("s_lshl_b32 s79, s79, 6")
        a("s_mov_b64 exec, 1")
        a("v_mov_b32 v0, 0")
        for q in range(4):
            for i in range(4):
                a(f"v_mov_b32 v{4+i}, s{80+4*q+i}")
            a(f"buffer_store_dwordx4 v[4:7], v0, s[96:99], s79 offen offset:{16*q}")
            a("s_waitcnt vmcnt(0)")


def vr(b, n):
    return f"v[{b}:{b+n-1}]"


DPP_STEPS = ["quad_perm:[1,0,3,2] row_mask:0xf bank_mask:0xf",
             "quad_perm:[2,3,0,1] row_mask:0xf bank_mask:0xf",
             "row_half_mirror row_mask:0xf bank_mask:0xf",
             "row_mirror row_mask:0xf bank_mask:0xf",
             "row_bcast:15 row_mask:0xa bank_mask:0xf",
             "row_bcast:31 row_mask:0xc bank_mask:0xf"]


def wave_reduce_rows(a, regs, op="v_add_f32", nsteps=6):
    for st in DPP_STEPS[:nsteps]:
        if len(regs) == 1:
            a("s_nop 1")
        elif len(regs) == 2:
            a("s_nop 0")
        for r in regs:
            a(f"{op}_dpp v{r}, v{r}, v{r} {st}")


FR = 16
ACC = 48
ACC2 = 64
ONES = 80
Q0, O0, S0, KB, VB, IDX = 16, 32, 96, 128, 136, 8


def lds_wait(a, name, need_s=None, need_imm=None, off=0, two=True, vt=14):
    a(f"v_mov_b32 v{vt+2}, 0x{P1_FL:x}")
    a.label(f"LW_{name}")
    if two:
        a(f"ds_read_b64 {vr(vt,2)}, v{vt+2} offset:{off}")
        a("s_waitcnt lgkmcnt(0)")
        a(f"v_min_u32 v{vt}, v{vt}, v{vt+1}")
        a("s_nop 0")
    else:
        a(f"ds_read_b32 v{vt}, v{vt+2} offset:{off}")
        a("s_waitcnt lgkmcnt(0)")
    a(f"v_readfirstlane_b32 s62, v{vt}")
    a(f"s_cmp_lt_u32 s62, " + (f"s{need_s}" if need_s is not None else str(need_imm)))
    a(f"s_cbranch_scc1 LW_{name}")


def lds_add(a, vaddr, vone, off):
    a("s_mov_b64 exec, 1")
    a(f"ds_add_u32 v{vaddr}, v{vone} offset:{off}")
    a("s_mov_b64 exec, -1")


def gemm_addr(a, wbase):
    a("v_lshrrev_b32 v3, 5, v1")
    a("v_lshrrev_b32 v5, 2, v1")
    a("v_and_b32 v5, 3, v5")
    a("v_lshl_add_u32 v6, v3, 3, v5")
    a("v_lshlrev_b32 v6, 7, v6")
    a("v_lshrrev_b32 v7, 1, v5")
    a("s_and_b32 s40, s16, 1")
    a("v_xor_b32 v7, s40, v7")
    a("v_lshl_add_u32 v6, v7, 6, v6")
    a("v_and_b32 v7, 16, v1")
    a("v_lshl_add_u32 v6, v7, 1, v6")
    a("v_and_b32 v7, 1, v1")
    a("v_lshl_add_u32 v6, v7, 4, v6")
    a("v_and_b32 v7, 2, v1")
    a("v_lshl_add_u32 v6, v7, 2, v6")
    a(f"v_add_u32 v6, 0x{wbase:x}, v6")
    a("v_and_b32 v2, 31, v1")
    a("v_lshrrev_b32 v5, 1, v2")
    a("v_and_b32 v5, 7, v5")
    a("v_xor_b32 v5, v5, v3")
    a("v_lshlrev_b32 v2, 7, v2")
    a("v_lshl_add_u32 v2, v5, 4, v2")
    a("s_lshr_b32 s40, s16, 1")
    a("s_lshl_b32 s40, s40, 12")
    a("v_add_u32 v10, s40, v2")
    a("v_xor_b32 v11, 32, v10")
    a("v_xor_b32 v12, 64, v10")
    a("v_xor_b32 v13, 96, v10")


def gemm_loop_p1(a):
    for i in range(0, 32, 2):
        a(f"v_mov_b64 {vr(ACC+i,2)}, 0")
    for i in range(4):
        a(f"v_mov_b32 v{ONES+i}, 0x3f803f80")
    a("v_mov_b32 v7, 1")
    a("s_mov_b32 s41, 3")
    a("s_barrier")
    FB = [FR, 88]

    def rd(buf):
        for sx in range(4):
            a(f"ds_read_b64_tr_b16 {vr(FB[buf]+8*sx,2)}, v6 offset:{sx*2048}")
            a(f"ds_read_b64_tr_b16 {vr(FB[buf]+8*sx+2,2)}, v6 offset:{sx*2048+512}")
            a(f"ds_read_b128 {vr(FB[buf]+8*sx+4,4)}, v{10+sx}")
        a("s_movk_i32 s40, 0x2000")
        a("s_cmp_eq_u32 s41, 9")
        a(f"s_cselect_b32 s40, {(-6*8192) & 0xffffffff}, s40")
        a("v_add_u32 v6, s40, v6")
        for i in range(4):
            a(f"v_add_u32 v{10+i}, s40, v{10+i}")
        a("s_add_u32 s41, s41, 1")

    def mm(buf):
        for sx in range(4):
            a(f"v_mfma_f32_32x32x16_bf16 {vr(ACC,16)}, {vr(FB[buf]+8*sx,4)}, {vr(FB[buf]+8*sx+4,4)}, {vr(ACC,16)}")
            a(f"v_mfma_f32_32x32x16_bf16 {vr(ACC2,16)}, {vr(FB[buf]+8*sx,4)}, {vr(ONES,4)}, {vr(ACC2,16)}")

    lds_wait(a, "G0", need_s=41, vt=84)
    rd(0)
    a.label("GL_P1")
    a("s_cmp_ge_u32 s62, s41")
    a("s_cbranch_scc1 GL_S1")
    lds_wait(a, "G1", need_s=41, vt=84)
    a.label("GL_S1")
    rd(1)
    a("s_waitcnt lgkmcnt(12)")
    a("s_cmp_lg_u32 s41, 5")
    a("s_cbranch_scc1 GL_NOSIG")
    lds_add(a, 86, 7, 8)
    a.label("GL_NOSIG")
    mm(0)
    a("s_cmp_eq_u32 s41, 11")
    a("s_cbranch_scc1 GL_END")
    a("s_cmp_ge_u32 s62, s41")
    a("s_cbranch_scc1 GL_S2")
    lds_wait(a, "G2", need_s=41, vt=84)
    a.label("GL_S2")
    rd(0)
    a("s_waitcnt lgkmcnt(12)")
    mm(1)
    a("s_branch GL_P1")
    a.label("GL_END")
    a("s_waitcnt lgkmcnt(0)")
    mm(1)


def dbg_timeout(a, tag):
    if "dbgspin" in EXP:
        pid = POLL_IDS.setdefault(tag, len(POLL_IDS) + 1)
        a(f"s_cmp_lt_u32 s61, {SPIN_MAX}")
        a(f"s_cbranch_scc1 DBGT_{tag}")
        a(f"v_mov_b32 v150, {4*pid}")
        a("v_mov_b32 v151, 1")
        a("s_mov_b64 exec, 1")
        a("buffer_atomic_add v151, v150, s[72:75], 0 offen")
        a("s_mov_b64 exec, -1")
        a.label(f"DBGT_{tag}")


def poll(a, tag, voff, soffs, wide=False, sleep=2, cmpw=(20, 23), dst=20):
    a("s_mov_b32 s61, 0")
    a.label(f"POLL_{tag}")
    if wide:
        a(f"buffer_load_dwordx4 v[20:23], v{voff}, s[24:27], s{soffs[0]} offen sc1")
        regs = list(cmpw)
    else:
        for i, so in enumerate(soffs):
            a(f"buffer_load_dword v{dst+i}, v{voff}, s[24:27], s{so} offen sc1")
        regs = [dst + i for i in range(len(soffs))]
    a("s_add_u32 s61, s61, 1")
    a("s_waitcnt vmcnt(0)")
    for i, r in enumerate(regs):
        if i == 0:
            a(f"v_cmp_ne_u32 vcc, s60, v{r}")
        else:
            a(f"v_cmp_ne_u32 s[62:63], s60, v{r}")
            a("s_or_b64 vcc, vcc, s[62:63]")
    a(f"s_cmp_ge_u32 s61, {SPIN_MAX}")
    a(f"s_cbranch_scc1 POLLX_{tag}")
    a("s_cmp_eq_u64 vcc, 0")
    a(f"s_cbranch_scc1 POLLX_{tag}")
    a(f"s_sleep {sleep}")
    a(f"s_branch POLL_{tag}")
    a.label(f"POLLX_{tag}")
    dbg_timeout(a, tag)


def get_tag(a, name, vt):
    a("s_mov_b32 s61, 0")
    a(f"v_mov_b32 v{vt}, 0")
    a.label(f"TAG_{name}")
    a(f"buffer_load_dword v{vt+1}, v{vt}, s[72:75], 0 offen sc1")
    a("s_add_u32 s61, s61, 1")
    a("s_waitcnt vmcnt(0)")
    a(f"v_readfirstlane_b32 s60, v{vt+1}")
    a(f"s_cmp_ge_u32 s61, {SPIN_MAX}")
    a(f"s_cbranch_scc1 TAGX_{name}")
    a("s_cmp_eq_u32 s60, 0")
    a(f"s_cbranch_scc1 TAG_{name}")
    a.label(f"TAGX_{name}")


def lds_tag(a, name, vt):
    lds_wait(a, f"T{name}", need_imm=1, off=20, two=False, vt=vt)
    a("s_mov_b32 s60, s62")


def ln_normalize(a, rows_packed, XU, D, negm_pairs, rinv_pairs, mask_s):
    R = range(len(rows_packed))
    for i in R:
        for j in range(4):
            a(f"v_pk_add_f32 {vr(D+8*i+2*j,2)}, {vr(XU+8*i+2*j,2)}, {vr(negm_pairs[i],2)}")
    for i in R:
        for j in range(4):
            a(f"v_cvt_pk_bf16_f32 v{rows_packed[i]+j}, v{D+8*i+2*j}, v{D+8*i+2*j+1}")
    for i in R:
        for j in range(4):
            a(f"v_lshlrev_b32 v{D+8*i+2*j}, 16, v{rows_packed[i]+j}")
            a(f"v_and_b32 v{D+8*i+2*j+1}, s{mask_s}, v{rows_packed[i]+j}")
    for i in R:
        for j in range(4):
            a(f"v_pk_mul_f32 {vr(D+8*i+2*j,2)}, {vr(D+8*i+2*j,2)}, {vr(rinv_pairs[i],2)}")
    for i in R:
        for j in range(4):
            a(f"v_cvt_pk_bf16_f32 v{rows_packed[i]+j}, v{D+8*i+2*j}, v{D+8*i+2*j+1}")


PG, PXF = 96, 112
PRE_A = (128, 48, 136, 64)
PRE_B = (128, 16, 136, 64)
PV = 144


def p3_pre(a, sfx, EX, T, PR, YL):
    G, XF = PG, PXF
    SV = 148
    a(f"v_lshrrev_b32 v{PV}, 2, v1")
    a(f"v_and_b32 v{PV+1}, 3, v1")
    a(f"v_lshlrev_b32 v{PV+2}, 10, v{PV}")
    a(f"v_lshl_add_u32 v{PV+2}, v{PV+1}, 4, v{PV+2}")
    a(f"buffer_load_dwordx4 {vr(EX,4)}, v{PV+2}, s[20:23], s65 offen")
    a(f"buffer_load_dwordx4 {vr(EX+4,4)}, v{PV+2}, s[20:23], s66 offen")
    a(f"v_lshlrev_b32 v{T}, 4, v{PV}")
    a("s_lshl_b32 s40, s64, 4")
    a(f"s_add_u32 s40, s40, {WS_STATS}")
    a(f"buffer_load_dwordx2 {vr(SV,2)}, v{T}, s[24:27], s40 offen sc1")
    a(f"buffer_load_dwordx2 {vr(SV+2,2)}, v{T}, s[24:27], s40 offen offset:256 sc1")
    a("s_waitcnt vmcnt(0)")
    for i in range(8):
        a(f"v_lshlrev_b32 v{XF+2*i}, 16, v{EX+i}")
        a(f"v_and_b32 v{XF+2*i+1}, s42, v{EX+i}")
    for j in range(2):
        a(f"v_sub_f32 v{PR+4*j}, 0, v{SV+2*j}")
        a(f"v_sub_f32 v{PR+1+4*j}, 0, v{SV+2*j}")
        a(f"v_mov_b32 v{PR+2+4*j}, v{SV+1+2*j}")
        a(f"v_mov_b32 v{PR+3+4*j}, v{SV+1+2*j}")
    ln_normalize(a, [EX, EX + 4], XF, G, [PR, PR + 4], [PR + 2, PR + 6], 42)
    for i in range(8):
        a(f"v_lshlrev_b32 v{G+2*i}, 16, v{EX+i}")
        a(f"v_and_b32 v{G+2*i+1}, s42, v{EX+i}")
    a("s_mov_b32 s58, s76")
    a("s_mov_b32 s47, 0")
    a.label(f"PU_{sfx}")
    a("s_and_b32 s59, s58, 0xffff")
    a("s_sub_u32 s59, 2047, s59")
    a("s_sub_u32 s59, s59, s64")
    a("s_cmp_lt_u32 s59, 32")
    a(f"s_cbranch_scc1 PUY_{sfx}")
    a.label(f"PUN_{sfx}")
    a("s_mov_b32 s58, s77")
    a("s_add_u32 s47, s47, 2048")
    a("s_cmp_lt_u32 s47, 4096")
    a(f"s_cbranch_scc1 PU_{sfx}")
    for i in range(16):
        a(f"v_mul_f32 v{T+i}, 0x{f2u(NLOG2E):08x}, v{G+i}")
    for i in range(16):
        a(f"v_exp_f32 v{T+i}, v{T+i}")
    for i in range(16):
        a(f"v_add_f32 v{T+i}, 1.0, v{T+i}")
    for i in range(16):
        a(f"v_rcp_f32 v{T+i}, v{T+i}")
    for i in range(0, 16, 2):
        a(f"v_pk_mul_f32 {vr(G+i,2)}, {vr(G+i,2)}, {vr(T+i,2)}")
    for i in range(8):
        a(f"v_cvt_pk_bf16_f32 v{T+i}, v{G+2*i}, v{G+2*i+1}")
    for i in range(8):
        a(f"v_lshlrev_b32 v{G+2*i}, 16, v{T+i}")
        a(f"v_and_b32 v{G+2*i+1}, s42, v{T+i}")


def p3_upd(a, sfx, EX, T, PR, YL):
    G = PG
    a.label(f"PUY_{sfx}")
    a(f"v_min_u32 v{PR}, 55, v1")
    a(f"v_lshlrev_b32 v{PR}, 7, v{PR}")
    a(f"s_mov_b32 s44, {WS_FLAGF}")
    a(f"s_mov_b32 s45, {WS_FLAGF + 56*128}")
    poll(a, f"FF{sfx}", PR, [44, 45], sleep=4, dst=EX)
    srd(a, 48, 14, 15, WS_YPART, 112 * 4096)
    a(f"v_mul_u32_u24 v{PR}, 0x7000, v{PV}")
    a(f"v_lshl_add_u32 v{PR}, v{PV+1}, 5, v{PR}")
    a("s_and_b32 s40, s16, 1")
    a("s_lshl_b32 s40, s40, 5")
    a("s_add_u32 s40, s40, s18")
    a("s_lshl_b32 s40, s40, 2")
    a("s_add_u32 s40, s40, s47")
    for i in range(0, 8, 2):
        a(f"v_mov_b64 {vr(T+i,2)}, 0")
    for cnt in (4, 3):
        for p in range(cnt):
            a(f"buffer_load_dwordx4 {vr(YL+8*p,4)}, v{PR}, s[48:51], s40 offen sc1")
            a(f"buffer_load_dwordx4 {vr(YL+8*p+4,4)}, v{PR}, s[48:51], s40 offen offset:16 sc1")
            a("s_add_u32 s40, s40, 4096")
        a("s_waitcnt vmcnt(0)")
        for p in range(cnt):
            for i in range(0, 8, 2):
                a(f"v_pk_add_f32 {vr(T+i,2)}, {vr(T+i,2)}, {vr(YL+8*p+i,2)}")
    for ror in (4, 8):
        a("s_nop 1")
        for i in range(8):
            a(f"v_add_f32_dpp v{T+i}, v{T+i}, v{T+i} row_ror:{ror} row_mask:0xf bank_mask:0xf")
    for swap in ("v_permlane16_swap_b32", "v_permlane32_swap_b32"):
        for i in range(8):
            a(f"v_mov_b32 v{T+8+i}, v{T+i}")
        a("s_nop 1")
        for i in range(8):
            a(f"{swap} v{T+i}, v{T+8+i}")
        a("s_nop 1")
        for i in range(8):
            a(f"v_add_f32 v{T+i}, v{T+i}, v{T+8+i}")
    a("s_and_b32 s40, s58, 0xffff0000")
    a("s_ashr_i32 s41, s40, 31")
    a("s_not_b32 s41, s41")
    a("s_or_b32 s41, s41, 0x80000000")
    a("s_xor_b32 s40, s40, s41")
    a("s_and_b32 s40, s40, 0xffff0000")
    a(f"v_mov_b32 v{PR}, s40")
    a(f"v_mul_f32 v{PR}, 0x{f2u(NLOG2E):08x}, v{PR}")
    a(f"v_exp_f32 v{PR}, v{PR}")
    a("s_nop 0")
    a(f"v_add_f32 v{PR}, 1.0, v{PR}")
    a(f"v_rcp_f32 v{PR}, v{PR}")
    a("s_nop 0")
    a(f"v_cvt_pk_bf16_f32 v{PR}, v{PR}, v{PR}")
    a(f"v_lshlrev_b32 v{PR}, 16, v{PR}")
    for rp in range(2):
        for i in range(4):
            a(f"v_cvt_pk_bf16_f32 v{T+8+i}, v{T+2*i}, v{T+2*i+1}")
        for i in range(4):
            a(f"v_lshlrev_b32 v{T+2*i}, 16, v{T+8+i}")
            a(f"v_and_b32 v{T+2*i+1}, s42, v{T+8+i}")
        if rp == 0:
            for i in range(8):
                a(f"v_mul_f32 v{T+i}, v{T+i}, v{PR}")
    for j in range(2):
        a(f"v_add_u32 v{PR}, {16*j}, v{PV}")
        a(f"v_cmp_eq_u32 vcc, s59, v{PR}")
        for i in range(8):
            a(f"v_add_f32 v{T+8+i}, v{T+i}, v{G+8*j+i}")
        for i in range(4):
            a(f"v_cvt_pk_bf16_f32 v{T+8+i}, v{T+8+2*i}, v{T+9+2*i}")
        for i in range(3, -1, -1):
            a(f"v_and_b32 v{T+9+2*i}, s42, v{T+8+i}")
            a(f"v_lshlrev_b32 v{T+8+2*i}, 16, v{T+8+i}")
        for i in range(8):
            a(f"v_cndmask_b32 v{G+8*j+i}, v{G+8*j+i}, v{T+8+i}, vcc")
    a(f"s_branch PUN_{sfx}")


def kernel(a):
    K = NAME + "_kernel"
    a.raw(f".globl {K}")
    a.raw(".p2align 8")
    a.raw(f".type {K},@function")
    a.label(K)
    a("s_cmp_ge_u32 s2, 256")
    a("s_cbranch_scc1 L_END")
    if PROF:
        a("s_memrealtime s[96:97]")
        a("s_waitcnt lgkmcnt(0)")
        a("s_mov_b32 s94, s96")
    stamp(a, 0)
    a("s_load_dwordx8 s[4:11], s[0:1], 0")
    a("s_load_dwordx2 s[12:13], s[0:1], 32")
    a("s_load_dwordx2 s[14:15], s[0:1], 96")
    a("s_load_dwordx2 s[28:29], s[0:1], 48")
    a("s_load_dwordx2 s[72:73], s[0:1], 88")
    a("v_and_b32 v1, 63, v0")
    a("v_lshrrev_b32 v2, 6, v0")
    a("s_nop 0")
    a("v_readfirstlane_b32 s78, v2")
    a("s_and_b32 s17, s2, 7")
    a("s_lshr_b32 s18, s2, 3")
    a("s_and_b32 s19, s18, 3")
    a("s_lshl_b32 s17, s17, 2")
    a("s_add_u32 s17, s17, s19")
    a("s_lshl_b32 s17, s17, 6")
    a("s_lshr_b32 s19, s18, 2")
    a("s_lshl_b32 s18, s19, 6")
    a("s_and_b32 s16, s78, 3")
    a("s_mov_b32 s42, 0xffff0000")
    a("v_lshlrev_b32 v5, 4, v1")
    a("s_waitcnt lgkmcnt(0)")
    srd(a, 20, 4, 5, 0, 2048 * 1024)
    srd(a, 24, 14, 15, 0, WS_SMALL)
    a("s_mov_b32 s74, 256")
    a("s_mov_b32 s75, 0x00020000")
    a("s_cmp_ge_u32 s78, 8")
    a("s_cbranch_scc1 R_GEMM")
    a("s_cmp_ge_u32 s78, 4")
    a("s_cbranch_scc1 R_LN")
    a.label("R_AUX")
    a("s_cmp_ge_u32 s16, 2")
    a("s_cbranch_scc1 R_AUX2")
    srd(a, 52, 28, 29, 0, 1024)
    srd(a, 28, 6, 7, 0, 512 * 1024)
    a("v_lshrrev_b32 v2, 3, v1")
    a("v_lshlrev_b32 v2, 10, v2")
    a("v_lshrrev_b32 v3, 4, v1")
    a("v_xor_b32 v6, v3, v1")
    a("v_and_b32 v6, 7, v6")
    a("v_lshl_add_u32 v8, v6, 4, v2")
    a("v_xor_b32 v9, 64, v8")
    a("v_and_b32 v6, 1, v3")
    a("v_lshlrev_b32 v6, 2, v6")
    a("v_xor_b32 v6, v6, v1")
    a("v_and_b32 v6, 7, v6")
    a("v_lshl_add_u32 v4, v6, 4, v2")
    a("s_lshl_b32 s43, s16, 15")
    a("s_lshl_b32 s44, s17, 10")
    a("s_add_u32 s44, s44, s43")
    a("s_lshl_b32 s45, s18, 1")
    a("s_add_u32 s45, s45, s43")
    a("s_lshl_b32 s46, s16, 12")

    a("s_lshl_b32 s47, s19, 3")
    a("s_add_u32 s47, s47, s17")
    a("s_lshl_b32 s48, s16, 2")
    a("s_add_u32 s47, s47, s48")
    a("s_lshl_b32 s47, s47, 10")
    a("s_mul_i32 s48, s16, 4160")
    for j in range(4):
        a(f"s_add_u32 m0, s48, {L_XN + j*1040}")
        a(f"s_add_u32 s40, s47, {j*1024}")
        a("buffer_load_dwordx4 v5, s[20:23], s40 offen lds")
    a(f"s_mov_b32 m0, {P1_WR}")
    a("s_lshl_b32 s47, s16, 13")
    a("buffer_load_dwordx4 v5, s[52:55], 0 offen lds")
    srd(a, 32, 8, 9, 0, 16384)
    srd(a, 36, 10, 11, 0, 16384)
    a("s_lshl_b32 s40, s16, 2")
    a(f"s_add_u32 s40, s40, {P1_FL}")
    a("v_mov_b32 v10, s40")
    a("v_mov_b32 v11, 1")
    for which in range(2):
        for j in range(8):
            a(f"s_add_u32 m0, s47, {P1_KV + which*16384 + j*1024}")
            a(f"s_add_u32 s40, s47, {j*1024}")
            a(f"buffer_load_dwordx4 v5, s[{32+4*which}:{35+4*which}], s40 offen lds")
        if which == 0:
            a("s_barrier")
            a("s_waitcnt vmcnt(8)")
            lds_add(a, 10, 11, 0)
            stamp(a, 1)
    a("s_mov_b32 s47, s46")
    a("s_mov_b32 s48, s45")
    a("s_mov_b32 s49, s44")
    a("s_mov_b32 s50, 0")
    a.label("LD_P1")
    a("s_cmp_lg_u32 s50, 7")
    a("s_cbranch_scc1 LD_NOWRAP")
    a("s_mov_b32 s47, s46")
    lds_wait(a, "L", need_imm=4, off=8, two=False)
    a.label("LD_NOWRAP")
    for j in range(4):
        a(f"s_add_u32 m0, s47, {P1_W + j*1024}")
        a(f"s_add_u32 s40, s48, {j*8192}")
        a("buffer_load_dwordx4 v4, s[28:31], s40 offen lds")
    for j in range(4):
        a(f"s_add_u32 m0, s47, {P1_X + j*1024}")
        a(f"s_add_u32 s40, s49, {j*8192}")
        a(f"buffer_load_dwordx4 v{8+(j&1)}, s[20:23], s40 offen lds")
    a("s_add_u32 s47, s47, 8192")
    a("s_add_u32 s48, s48, 65536")
    a("s_add_u32 s49, s49, 128")
    a("s_add_u32 s50, s50, 1")
    a("s_cmp_lt_u32 s50, 2")
    a("s_cbranch_scc1 LD_P1")
    a("s_waitcnt vmcnt(16)")
    lds_add(a, 10, 11, 0)
    a("s_cmp_lt_u32 s50, 8")
    a("s_cbranch_scc1 LD_P1")
    a("s_waitcnt vmcnt(8)")
    lds_add(a, 10, 11, 0)
    a("s_waitcnt vmcnt(0)")
    lds_add(a, 10, 11, 0)
    stamp(a, 2)
    a("s_barrier")
    a("s_barrier")
    srd(a, 28, 12, 13, 0, 512 * 1024)
    a(f"s_add_u32 s47, s46, {L_W}")
    a("s_mov_b32 s48, s45")
    a("s_mov_b32 s49, 0")
    a.label("LD_WO")
    for j in range(4):
        a(f"s_add_u32 m0, s47, {j*1024}")
        a(f"s_add_u32 s40, s48, {j*8192}")
        a("buffer_load_dwordx4 v4, s[28:31], s40 offen lds")
        if j & 1:
            a("s_waitcnt vmcnt(0)")
    a("s_add_u32 s47, s47, 8192")
    a("s_add_u32 s48, s48, 65536")
    a("s_add_u32 s49, s49, 1")
    a("s_cmp_lt_u32 s49, 8")
    a("s_cbranch_scc1 LD_WO")
    srd(a, 32, 14, 15, WS_O, 2048 * 1024)
    a("s_lshl_b32 s40, s16, 2")
    a(f"s_add_u32 s40, s40, {L_MISC + 16}")
    a("v_mov_b32 v10, s40")
    a("s_barrier")
    a("s_barrier")
    stamp(a, 10)
    a("s_mov_b32 s50, 0")
    a(f"v_mov_b32 v6, 0x{L_MISC:x}")
    a("s_mov_b32 s53, 0")
    a.label("LD_P3")
    a("ds_read_b32 v12, v6 offset:28")
    a("s_waitcnt lgkmcnt(0)")
    a("v_readfirstlane_b32 s51, v12")
    a("s_andn2_b32 s51, s51, s50")
    a("s_cbranch_scc0 LD_P3")
    a("s_mov_b32 s54, s51")
    a("s_mov_b32 s55, 0")
    a("s_or_b32 s50, s50, s51")
    a.label("LD_P3I")
    a("s_ff1_i32_b32 s52, s51")
    a("s_bitset0_b32 s51, s52")
    a("s_lshl_b32 s47, s52, 13")
    a("s_add_u32 s47, s47, s46")
    a("s_lshl_b32 s49, s52, 7")
    a("s_add_u32 s49, s49, s44")
    for j in range(4):
        a(f"s_add_u32 m0, s47, {L_X + j*1024}")
        a(f"s_add_u32 s40, s49, {j*8192}")
        a(f"buffer_load_dwordx4 v{8+(j&1)}, s[32:35], s40 offen lds")
    a("s_add_u32 s55, s55, 1")

    def publish(rem, lab):
        a(f"s_cmp_le_u32 s55, {rem}")
        a(f"s_cbranch_scc1 {lab}")
        a("s_ff1_i32_b32 s52, s54")
        a("s_bitset0_b32 s54, s52")
        a("s_bitset1_b32 s53, s52")
        a("v_mov_b32 v11, s53")
        a("s_sub_u32 s55, s55, 1")
        a(f"s_waitcnt vmcnt({4*rem})")
        a("ds_write_b32 v10, v11")
        a.label(lab)

    publish(2, "LD_L2")
    a("s_cmp_lg_u32 s51, 0")
    a("s_cbranch_scc1 LD_P3I")
    publish(1, "LD_L1")
    publish(0, "LD_L0")
    a("s_cmp_lg_u32 s50, 0xff")
    a("s_cbranch_scc1 LD_P3")
    a("s_waitcnt lgkmcnt(0)")
    stamp(a, 12)
    stamp_flush(a)
    a("s_endpgm")

    a.label("R_AUX2")
    a("s_and_b32 s16, s16, 1")
    a("v_mov_b32 v2, 0")
    a("s_cmp_eq_u32 s16, 0")
    a("s_cbranch_scc1 AUX_NOTAG")
    a("s_cmp_lg_u32 s2, 0")
    a("s_cbranch_scc1 AUX_NOTAG")
    a("s_memrealtime s[48:49]")
    a("s_waitcnt lgkmcnt(0)")
    a("s_or_b32 s48, s48, 1")
    a("v_mov_b32 v3, s48")
    a("s_mov_b64 exec, 1")
    a("buffer_store_dword v3, v2, s[72:75], 0 offen sc1")
    a("s_mov_b64 exec, -1")
    a.label("AUX_NOTAG")
    a(f"v_mov_b32 v6, 0x{P1_FL:x}")
    a("v_mov_b64 v[8:9], 0")
    a("v_mov_b64 v[10:11], 0")
    a("ds_write_b128 v6, v[8:11]")
    a("ds_write_b128 v6, v[8:11] offset:16")
    a("s_waitcnt lgkmcnt(0)")
    a("s_barrier")
    a("s_cmp_eq_u32 s16, 0")
    a("s_cbranch_scc1 AUX_FFN0")
    get_tag(a, "AUX", 2)
    a("s_or_b32 s60, s60, 1")
    a("v_mov_b32 v3, s60")
    a("ds_write_b32 v6, v3 offset:20")
    a("v_mov_b32 v3, s60")
    a("s_lshl_b32 s40, s2, 7")
    a(f"s_add_u32 s40, s40, {WS_FLAG1}")
    for i in range(4):
        a(f"s_mov_b32 s{44+i}, {WS_FLAG1 + i*8192}")
    a("v_lshlrev_b32 v7, 7, v1")
    a("s_getreg_b32 s59, hwreg(HW_REG_XCC_ID)")
    stamp(a, 3)
    a(f"v_mov_b32 v11, 0x{L_SEL:x}")
    lds_wait(a, "SY", need_imm=4, off=16, two=False, vt=84)
    poll(a, "S1", 7, [44, 45, 46, 47], sleep=1)
    a("s_cmp_lg_u32 s2, 0")
    a("s_cbranch_scc1 SYNC_NORST")
    a("s_mov_b64 exec, 1")
    a("buffer_store_dword v2, v2, s[72:75], 0 offen sc1")
    a("s_mov_b64 exec, -1")
    a.label("SYNC_NORST")
    stamp(a, 4)
    a("s_barrier")
    a("ds_write_b32 v11, v2")
    a("s_waitcnt lgkmcnt(0)")
    a("s_barrier")
    a("s_setprio 3")
    a("s_lshl_b32 s40, s17, 4")
    a(f"s_add_u32 s41, s40, {WS_FLAG2}")
    a("s_lshl_b32 s40, s19, 7")
    a("s_add_u32 s40, s40, s41")
    a("v_and_b32 v6, 7, v1")
    a("v_lshlrev_b32 v6, 7, v6")
    a("s_and_b32 s44, s2, 31")
    a("s_lshl_b32 s44, s44, 7")
    a(f"s_add_u32 s44, s44, {WS_FLAG1 + 4}")
    a("v_lshlrev_b32 v14, 5, v6")
    a("buffer_load_dword v15, v14, s[24:27], s44 offen sc1")
    a("s_waitcnt vmcnt(0)")
    a("v_cmp_ne_u32 vcc, s59, v15")
    a("s_cmp_eq_u64 vcc, 0")
    a("s_cselect_b32 s59, 1, 0")
    if "noxcd" in EXP: a("s_mov_b32 s59, 0")
    a(f"s_mov_b32 s44, {WS_SELG}")
    poll(a, "SEL", 2, [44], wide=True, sleep=32)
    a("v_readfirstlane_b32 s56, v21")
    a("v_readfirstlane_b32 s57, v22")
    a("v_mov_b32 v23, s59")
    a("ds_write_b128 v11, v[20:23]")
    a("s_waitcnt lgkmcnt(0)")
    a("s_barrier")
    a(f"v_mov_b32 v11, 0x{L_MISC:x}")
    a("v_mov_b64 v[102:103], 0")
    a("ds_write_b64 v11, v[102:103] offset:16")
    a("ds_write_b64 v11, v[102:103] offset:24")
    a("ds_write_b32 v11, v102 offset:32")
    a("s_waitcnt lgkmcnt(0)")
    a("buffer_load_dword v12, v6, s[24:27], s41 offen sc1")
    a("s_barrier")
    a("s_mov_b32 s61, 0")
    a("s_mov_b32 s52, 0")
    a.label("SYNC_P")
    a("ds_read_b32 v13, v11 offset:32")
    a("s_add_u32 s61, s61, 1")
    a("s_waitcnt vmcnt(0) lgkmcnt(0)")
    a("v_cmp_eq_u32 vcc, s60, v12")
    a("v_readfirstlane_b32 s53, v13")
    a(f"s_cmp_ge_u32 s61, {SPIN_MAX}")
    a("s_cselect_b32 s51, 0xff, vcc_lo")
    a("s_and_b32 s51, s51, 0xff")
    a("s_cmp_lg_u32 s52, 0")
    a("s_cbranch_scc1 SYNC_Q")
    a("s_cmp_lt_u32 s53, 8")
    a("s_cbranch_scc1 SYNC_Q")
    stamp(a, 8)
    a("s_lshl_b32 s52, 1, s19")
    a.label("SYNC_Q")
    a("s_or_b32 s51, s51, s52")
    a("v_mov_b32 v12, s51")
    a("ds_write_b32 v11, v12 offset:28")
    a("s_cmp_eq_u32 s51, 0xff")
    a("s_cbranch_scc1 SYNC_X")
    a("buffer_load_dword v12, v6, s[24:27], s41 offen sc1")
    a("s_branch SYNC_P")
    a.label("SYNC_X")
    dbg_timeout(a, "SYNCP")
    a("s_waitcnt lgkmcnt(0)")
    stamp_flush(a)
    a("s_endpgm")

    a.label("AUX_FFN0")
    lds_tag(a, "F", 84)
    a("s_load_dwordx4 s[4:7], s[0:1], 56")
    a("s_load_dwordx2 s[8:9], s[0:1], 72")
    a("s_mul_i32 s54, s2, 2341")
    a("s_lshr_b32 s54, s54, 16")
    a("s_mul_i32 s55, s54, 28")
    a("s_sub_u32 s55, s2, s55")
    a("v_lshrrev_b32 v28, 3, v1")
    a("v_mul_u32_u24 v28, 3584, v28")
    a("v_lshrrev_b32 v6, 2, v1")
    a("v_and_b32 v6, 4, v6")
    a("v_xor_b32 v6, v6, v1")
    a("v_and_b32 v6, 7, v6")
    a("v_lshl_add_u32 v28, v6, 4, v28")
    a("v_lshrrev_b32 v14, 5, v1")
    a("v_lshrrev_b32 v6, 2, v1")
    a("v_and_b32 v6, 3, v6")
    a("v_lshl_add_u32 v13, v14, 3, v6")
    a("v_lshlrev_b32 v12, 10, v13")
    a("v_lshlrev_b32 v13, 7, v13")
    a("v_lshrrev_b32 v6, 1, v6")
    a("v_lshl_add_u32 v13, v6, 6, v13")
    a("v_and_b32 v6, 16, v1")
    a("v_lshlrev_b32 v6, 1, v6")
    a("v_and_b32 v7, 3, v1")
    a("v_lshl_add_u32 v6, v7, 3, v6")
    a("v_add_u32 v13, v13, v6")
    a(f"v_add_u32 v13, 0x{L_KV:x}, v13")
    a("v_xor_b32 v15, 64, v13")
    a("v_add_u32 v12, v12, v6")
    a(f"v_add_u32 v12, 0x{L_KV+16384:x}, v12")
    a("v_and_b32 v7, 4, v1")
    a("v_lshlrev_b32 v7, 8, v7")
    a("v_lshl_add_u32 v7, v14, 4, v7")
    a("v_and_b32 v4, 31, v1")
    a("s_waitcnt lgkmcnt(0)")
    srd(a, 28, 4, 5, 0, 512 * 3584)
    srd(a, 32, 6, 7, 0, 512 * 3584)
    srd(a, 36, 8, 9, 0, 1792 * 1024)
    srd(a, 44, 14, 15, WS_YPART, 112 * 4096)
    a("s_barrier")
    a("s_cmp_eq_u32 s2, 255")
    a("s_cbranch_scc1 SELECT")
    a("s_barrier")
    a("s_setprio 3")
    a.label("FFN_GO")
    a("s_cmp_ge_u32 s2, 224")
    a("s_cbranch_scc1 FFN_NA1")
    a(f"s_mul_i32 s52, s54, {64*3584}")
    a("s_lshl_b32 s53, s55, 7")
    a("s_add_u32 s52, s52, s53")
    a(f"s_mov_b32 s53, {L_KV}")
    a("s_mov_b32 s41, 0")
    a.label("FFN_DMA")
    a("s_mov_b32 m0, s53")
    a("s_add_u32 s53, s53, 1024")
    a("buffer_load_dwordx4 v28, s[28:31], s52 offen lds")
    a("s_add_u32 m0, m0, 8192")
    a("s_add_u32 s41, s41, 1")
    a("buffer_load_dwordx4 v28, s[32:35], s52 offen lds")
    a(f"s_add_u32 s52, s52, {8*3584}")
    a(f"s_waitcnt vmcnt({FFN_THR})")
    a("s_cmp_lt_u32 s41, 8")
    a("s_cbranch_scc1 FFN_DMA")
    a.label("FFN_NA1")
    a("s_cmp_lt_u32 s2, 144")
    a("s_cbranch_scc1 FFN_NB1")
    a("s_sub_u32 s56, s2, 144")
    a("s_lshl_b32 s52, s56, 14")
    a(f"s_mov_b32 s53, {L_KV + 16384}")
    a("s_mov_b32 s41, 0")
    a.label("FFN_DMA2")
    a("s_mov_b32 m0, s53")
    a("s_add_u32 s53, s53, 1024")
    a("buffer_load_dwordx4 v5, s[36:39], s52 offen lds")
    a("s_add_u32 s52, s52, 1024")
    a("s_add_u32 s41, s41, 1")
    a(f"s_waitcnt vmcnt({FFN_THR})")
    a("s_cmp_lt_u32 s41, 16")
    a("s_cbranch_scc1 FFN_DMA2")
    a.label("FFN_NB1")
    a("s_cmp_ge_u32 s2, 224")
    a("s_cbranch_scc1 FFN_B")
    a(f"s_mov_b32 s40, {WS_SELG}")
    poll(a, "FSEL", 2, [40], wide=True, sleep=8)
    a("s_lshl_b32 s40, s54, 7")
    a(f"s_add_u32 s40, s40, {WS_XSEL}")
    for sx in range(4):
        a(f"buffer_load_dwordx4 {vr(16+4*sx,4)}, v7, s[24:27], s40 offen offset:{32*sx} sc1")
    a("v_mul_u32_u24 v6, 7168, v14")
    a("v_lshl_add_u32 v6, v4, 2, v6")
    a(f"s_mul_i32 s40, s54, {4*7168}")
    a("s_lshl_b32 s41, s55, 8")
    a("s_add_u32 s40, s40, s41")
    a(f"s_add_u32 s40, s40, {WS_GP}")
    a(f"s_add_u32 s41, s40, {2*7168}")
    a("s_waitcnt vmcnt(0)")
    for mat in range(2):
        for ct in range(2):
            for sx in range(4):
                a(f"ds_read_b64_tr_b16 {vr(96+16*ct+4*sx,2)}, v{13+2*ct} offset:{mat*8192+sx*2048}")
                a(f"ds_read_b64_tr_b16 {vr(98+16*ct+4*sx,2)}, v{13+2*ct} offset:{mat*8192+sx*2048+512}")
        a("s_waitcnt lgkmcnt(0)")
        for ct in range(2):
            acc = 32 + 32 * mat + 16 * ct
            for sx in range(4):
                cc = "0" if sx == 0 else vr(acc, 16)
                a(f"v_mfma_f32_32x32x16_bf16 {vr(acc,16)}, {vr(16+4*sx,4)}, {vr(96+16*ct+4*sx,4)}, {cc}")
    a("s_nop 15")
    for mat in range(2):
        for ct in range(2):
            a(f"buffer_store_dword v{32+32*mat+16*ct}, v6, s[24:27], s{40+mat} offen offset:{128*ct} sc1")
    a("s_lshl_b32 s40, s55, 3")
    a("s_add_u32 s40, s40, s54")
    a("s_lshl_b32 s40, s40, 7")
    a(f"s_add_u32 s40, s40, {WS_FLAGA}")
    a("v_mov_b32 v3, s60")
    a("s_waitcnt vmcnt(0)")
    a("s_mov_b64 exec, 1")
    a("buffer_store_dword v3, v2, s[24:27], s40 offen sc1")
    a("s_mov_b64 exec, -1")
    a("s_cmp_lt_u32 s2, 144")
    a("s_cbranch_scc1 FFN_EXIT")
    a.label("FFN_B")
    a("s_sub_u32 s56, s2, 144")
    a("s_lshr_b32 s40, s56, 2")
    a("s_lshl_b32 s40, s40, 10")
    a(f"s_add_u32 s40, s40, {WS_FLAGA}")
    a("v_and_b32 v6, 7, v1")
    a("v_lshlrev_b32 v6, 7, v6")
    poll(a, "FA", 6, [40], sleep=8)
    a("v_and_b32 v6, 3, v1")
    a("v_and_b32 v7, 8, v1")
    a("v_lshrrev_b32 v7, 1, v7")
    a("v_or_b32 v6, v6, v7")
    a("v_lshlrev_b32 v6, 2, v6")
    a("v_lshrrev_b32 v7, 3, v4")
    a("v_and_b32 v7, 2, v7")
    a("v_add_u32 v6, v6, v7")
    a("v_lshrrev_b32 v7, 2, v1")
    a("v_and_b32 v7, 1, v7")
    a("v_add_u32 v6, v6, v7")
    a("v_mul_u32_u24 v6, 7168, v6")
    a("v_lshl_add_u32 v6, v14, 5, v6")
    a("s_lshl_b32 s40, s56, 6")
    a(f"s_add_u32 s40, s40, {WS_GP}")
    a("buffer_load_dwordx4 v[16:19], v6, s[24:27], s40 offen sc1")
    a("buffer_load_dwordx4 v[20:23], v6, s[24:27], s40 offen offset:16 sc1")
    a("v_lshlrev_b32 v14, 11, v14")
    a("v_lshl_add_u32 v14, v4, 2, v14")
    a("s_lshl_b32 s52, s56, 12")
    a("s_waitcnt vmcnt(0)")
    for st in ("quad_perm:[1,0,3,2]", "quad_perm:[2,3,0,1]", "row_ror:8"):
        for i in range(8):
            a(f"v_add_f32_dpp v{16+i}, v{16+i}, v{16+i} {st} row_mask:0xf bank_mask:0xf")
    for i in range(4):
        a(f"v_cvt_pk_bf16_f32 v{24+i}, v{16+2*i}, v{17+2*i}")
    for i in range(4):
        a(f"v_mov_b32 v{28+i}, v{24+i}")
    a("s_nop 1")
    for i in range(4):
        a(f"v_permlane16_swap_b32 v{24+i}, v{28+i}")
    a("s_nop 1")
    for i in range(4):
        a(f"v_lshlrev_b32 v{16+2*i}, 16, v{24+i}")
        a(f"v_and_b32 v{17+2*i}, s42, v{24+i}")
    for i in range(8):
        a(f"v_mul_f32 v{32+i}, 0x{f2u(NLOG2E):08x}, v{16+i}")
    for i in range(8):
        a(f"v_exp_f32 v{32+i}, v{32+i}")
    for i in range(8):
        a(f"v_add_f32 v{32+i}, 1.0, v{32+i}")
    for i in range(8):
        a(f"v_rcp_f32 v{32+i}, v{32+i}")
    a("s_nop 0")
    for i in range(0, 8, 2):
        a(f"v_pk_mul_f32 {vr(16+i,2)}, {vr(16+i,2)}, {vr(32+i,2)}")
    for i in range(4):
        a(f"v_cvt_pk_bf16_f32 v{24+i}, v{16+2*i}, v{17+2*i}")
    for i in range(4):
        a(f"v_lshlrev_b32 v{16+2*i}, 16, v{24+i}")
        a(f"v_and_b32 v{17+2*i}, s42, v{24+i}")
        a(f"v_lshlrev_b32 v{32+2*i}, 16, v{28+i}")
        a(f"v_and_b32 v{33+2*i}, s42, v{28+i}")
    for i in range(0, 8, 2):
        a(f"v_pk_mul_f32 {vr(16+i,2)}, {vr(16+i,2)}, {vr(32+i,2)}")
    for i in range(4):
        a(f"v_cvt_pk_bf16_f32 v{24+i}, v{16+2*i}, v{17+2*i}")
    a("s_mov_b32 s41, 0")
    a.label("FFN_DOWN")
    for tl in range(4):
        a(f"ds_read_b64_tr_b16 {vr(96+4*tl,2)}, v12 offset:{64*tl}")
        a(f"ds_read_b64_tr_b16 {vr(98+4*tl,2)}, v12 offset:{64*tl+4096}")
    a("s_waitcnt lgkmcnt(0)")
    for tl in range(4):
        a(f"v_mfma_f32_32x32x16_bf16 {vr(32+16*tl,16)}, v[24:27], {vr(96+4*tl,4)}, 0")
    a("v_add_u32 v12, 256, v12")
    a("s_add_u32 s41, s41, 1")
    a("s_nop 11")
    for tl in range(4):
        a(f"buffer_store_dword v{32+16*tl}, v14, s[44:47], s52 offen offset:{128*tl} sc1")
    a("s_add_u32 s52, s52, 512")
    a("s_cmp_lt_u32 s41, 4")
    a("s_cbranch_scc1 FFN_DOWN")
    a("v_mov_b32 v3, s60")
    a("s_lshl_b32 s40, s56, 7")
    a(f"s_add_u32 s40, s40, {WS_FLAGF}")
    a("s_waitcnt vmcnt(0)")
    a("s_mov_b64 exec, 1")
    a("buffer_store_dword v3, v2, s[24:27], s40 offen sc1")
    a.label("FFN_EXIT")
    stamp_flush(a)
    a("s_endpgm")

    a.label("SELECT")
    a(f"s_mov_b32 s40, {WS_TOPC}")
    a("buffer_load_dwordx4 v[64:67], v5, s[24:27], s40 offen sc1")
    a("buffer_load_dwordx4 v[68:71], v5, s[24:27], s40 offen offset:1024 sc1")
    a("s_barrier")
    a("s_setprio 3")
    a("s_waitcnt vmcnt(0)")
    for rnd in range(2):
        a("v_max3_u32 v16, v64, v65, v66")
        a("v_max3_u32 v17, v67, v68, v69")
        a("v_max3_u32 v16, v70, v71, v16")
        a("v_max_u32 v16, v16, v17")
        wave_reduce_rows(a, [16], op="v_max_u32")
        a("s_nop 0")
        a(f"v_readlane_b32 s{48+rnd}, v16, 63")
        a("s_nop 1")
        if rnd == 0:
            for i in range(8):
                a(f"v_cmp_eq_u32 vcc, s48, v{64+i}")
                a("s_nop 1")
                a(f"v_cndmask_b32 v{64+i}, v{64+i}, 0, vcc")
    for t in range(2):
        a(f"s_and_b32 s{50+t}, s{48+t}, 0xffff")
        a(f"s_sub_u32 s{50+t}, 2047, s{50+t}")
        a(f"s_lshl_b32 s52, s{50+t}, 10")
        a(f"buffer_load_dwordx4 {vr(64+4*t,4)}, v5, s[20:23], s52 offen")
        a(f"s_lshl_b32 s52, s{50+t}, 4")
        a(f"s_add_u32 s52, s52, {WS_STATS}")
        a(f"buffer_load_dwordx2 {vr(16+2*t,2)}, v2, s[24:27], s52 offen sc1")
    a("s_waitcnt vmcnt(0)")
    for t in range(2):
        for j in range(4):
            a(f"v_lshlrev_b32 v{32+8*t+2*j}, 16, v{64+4*t+j}")
            a(f"v_and_b32 v{33+8*t+2*j}, s42, v{64+4*t+j}")
        a(f"v_sub_f32 v{20+4*t}, 0, v{16+2*t}")
        a(f"v_sub_f32 v{21+4*t}, 0, v{16+2*t}")
        a(f"v_mov_b32 v{22+4*t}, v{17+2*t}")
        a(f"v_mov_b32 v{23+4*t}, v{17+2*t}")
    ln_normalize(a, [64, 68], 32, 48, [20, 24], [22, 26], 42)
    a(f"s_mov_b32 s40, {WS_XSEL}")
    a("buffer_store_dwordx4 v[64:67], v5, s[24:27], s40 offen sc1")
    a("buffer_store_dwordx4 v[68:71], v5, s[24:27], s40 offen offset:1024 sc1")
    a("v_mov_b32 v16, s60")
    a("v_mov_b32 v17, s48")
    a("v_mov_b32 v18, s49")
    a("v_mov_b32 v19, s60")
    a(f"s_mov_b32 s40, {WS_SELG}")
    a("s_waitcnt vmcnt(0)")
    a("s_mov_b64 exec, 1")
    a("buffer_store_dwordx4 v[16:19], v2, s[24:27], s40 offen sc1")
    a("s_mov_b64 exec, -1")
    a("s_branch FFN_GO")
    a.label("R_LN")

    a("s_lshl_b32 s43, s19, 3")
    a("s_add_u32 s43, s43, s17")
    a("s_lshl_b32 s44, s16, 1")
    a("s_add_u32 s44, s44, s43")
    a("s_lshl_b32 s45, s44, 10")
    NR = 2
    R = range(NR)
    XU, D = 32, 48
    STV = 96
    a(f"s_mul_i32 s40, s16, {NR*1040}")
    a(f"s_add_u32 s40, s40, {L_XN}")
    a("v_add_u32 v3, s40, v5")
    a(f"v_add_u32 v4, 0x{P1_WR:x}, v5")
    a("s_barrier")
    lds_wait(a, "LN0", need_imm=1, vt=84)
    stamp(a, 1)
    a("v_mov_b32 v104, 0")
    for i in R:
        a(f"ds_read_b128 {vr(8+4*i,4)}, v3 offset:{1040*i}")
    a(f"ds_read_b128 {vr(24,4)}, v4")
    for i in R:
        a(f"s_waitcnt lgkmcnt({NR - i})")
        for j in range(4):
            a(f"v_lshlrev_b32 v{XU+8*i+2*j}, 16, v{8+4*i+j}")
            a(f"v_and_b32 v{XU+8*i+2*j+1}, s42, v{8+4*i+j}")
    for i in R:
        a(f"v_pk_add_f32 {vr(72+2*i,2)}, {vr(XU+8*i,2)}, {vr(XU+8*i+2,2)}")
        a(f"v_pk_add_f32 {vr(80+2*i,2)}, {vr(XU+8*i+4,2)}, {vr(XU+8*i+6,2)}")
    for i in R:
        a(f"v_pk_add_f32 {vr(72+2*i,2)}, {vr(72+2*i,2)}, {vr(80+2*i,2)}")
    for i in R:
        a(f"v_add_f32 v{64+i}, v{72+2*i}, v{73+2*i}")
    wave_reduce_rows(a, [64 + i for i in R])
    a("s_nop 0")
    for i in R:
        a(f"v_readlane_b32 s{48+i}, v{64+i}, 63")
    a("v_mov_b32 v68, 0xbb000000")
    a("s_nop 1")
    for i in R:
        a(f"v_mul_f32 v{72+2*i}, s{48+i}, v68")
        a(f"v_mul_f32 v{73+2*i}, s{48+i}, v68")
    for i in R:
        for j in range(4):
            a(f"v_pk_add_f32 {vr(D+8*i+2*j,2)}, {vr(XU+8*i+2*j,2)}, {vr(72+2*i,2)}")
    for i in R:
        a(f"v_pk_mul_f32 {vr(80+2*i,2)}, {vr(D+8*i,2)}, {vr(D+8*i,2)}")
    for j in range(1, 4):
        for i in R:
            a(f"v_pk_fma_f32 {vr(80+2*i,2)}, {vr(D+8*i+2*j,2)}, {vr(D+8*i+2*j,2)}, {vr(80+2*i,2)}")
    for i in R:
        a(f"v_add_f32 v{64+i}, v{80+2*i}, v{81+2*i}")
    wave_reduce_rows(a, [64 + i for i in R])
    a("s_nop 0")
    for i in R:
        a(f"v_readlane_b32 s{52+i}, v{64+i}, 63")
    a("s_nop 1")
    for i in R:
        a(f"v_cvt_pk_bf16_f32 v{72+2*i}, v{72+2*i}, v{72+2*i}")
    for i in R:
        a(f"v_and_b32 v{73+2*i}, s42, v{72+2*i}")
        a(f"v_lshlrev_b32 v{72+2*i}, 16, v{72+2*i}")
    for i in R:
        a(f"v_mul_f32 v{64+i}, s{52+i}, -v68")
    for op in ("add", "sqrt", "rcp"):
        a("v_cvt_pk_bf16_f32 v66, v64, v65")
        a("v_lshlrev_b32 v64, 16, v66")
        a("v_and_b32 v65, s42, v66")
        for i in R:
            if op == "add":
                a(f"v_add_f32 v{64+i}, 0x{f2u(1e-5):08x}, v{64+i}")
            elif op == "sqrt":
                a(f"v_sqrt_f32 v{64+i}, v{64+i}")
            else:
                a(f"v_rcp_f32 v{80+2*i}, v{64+i}")
        if op == "sqrt":
            a("s_nop 0")
    a("s_nop 1")
    for i in R:
        a(f"v_mov_b32 v{81+2*i}, v{80+2*i}")
    ln_normalize(a, [8, 12], XU, D, [72, 74], [80, 82], 42)
    a("s_waitcnt lgkmcnt(0)")
    for i in R:
        a(f"v_mov_b32 v{64+i}, 0")
    for j in range(4):
        for i in R:
            a(f"v_dot2c_f32_bf16 v{64+i}, v{8+4*i+j}, v{24+j}")
    for i in R:
        a(f"v_sub_f32 v{STV+4*i}, 0, v{72+2*i}")
        a(f"v_mov_b32 v{STV+4*i+1}, v{80+2*i}")
    wave_reduce_rows(a, [64 + i for i in R])
    a("v_cvt_pk_bf16_f32 v66, v64, v65")
    a("v_lshlrev_b32 v64, 16, v66")
    a("v_and_b32 v65, s42, v66")
    for i in R:
        a(f"v_ashrrev_i32 v{68+i}, 31, v{64+i}")
    for i in R:
        a(f"v_or_b32 v{68+i}, 0x80000000, v{68+i}")
    for i in R:
        a(f"v_xor_b32 v{64+i}, v{64+i}, v{68+i}")
        a(f"s_sub_u32 s{48+i}, {2047-i}, s44")
    for i in R:
        a(f"v_and_b32 v{64+i}, s42, v{64+i}")
    for i in R:
        a(f"v_or_b32 v{64+i}, s{48+i}, v{64+i}")
    a("s_lshl_b32 s40, s16, 3")
    a(f"s_add_u32 s40, s40, {L_KEY}")
    a("v_mov_b32 v4, s40")
    a("v_cmp_eq_u32 vcc, 63, v1")
    for i in R:
        a(f"ds_write_b128 v3, {vr(8+4*i,4)} offset:{1040*i}")
    a("s_and_saveexec_b64 s[56:57], vcc")
    a("ds_write_b64 v4, v[64:65]")
    a("s_mov_b64 exec, s[56:57]")
    a("v_and_b32 v3, 15, v1")
    a("v_lshrrev_b32 v4, 4, v1")
    a("s_waitcnt lgkmcnt(0)")
    a("v_mov_b32 v6, 1")
    lds_add(a, 86, 6, 12)
    stamp(a, 2)
    lds_tag(a, "LN", 84)
    for i in R:
        a(f"v_mov_b32 v{STV+4*i+2}, s60")
        a(f"v_mov_b32 v{STV+4*i+3}, s60")
    a("s_lshl_b32 s40, s44, 4")
    a(f"s_add_u32 s40, s40, {WS_STATS}")
    a("s_mov_b64 exec, 1")
    for i in R:
        a(f"buffer_store_dwordx4 {vr(STV+4*i,4)}, v104, s[24:27], s40 offen offset:{16*i} sc1")
    a("s_mov_b64 exec, -1")
    lds_wait(a, "LN1", need_imm=4, off=12, two=False, vt=84)
    lds_wait(a, "LN2", need_imm=2, vt=84)
    a("s_cmp_ge_u32 s16, 2")
    a("s_cbranch_scc1 LN_MISC")
    a("v_and_b32 v6, 7, v1")
    a("v_mul_u32_u24 v6, 1040, v6")
    a("v_lshl_add_u32 v6, v4, 4, v6")
    a(f"v_add_u32 v6, {L_XN}, v6")
    a("v_lshlrev_b32 v7, 8, v4")
    a("v_lshl_add_u32 v7, v3, 3, v7")
    a("s_lshl_b32 s40, s16, 14")
    a(f"s_add_u32 s40, s40, {P1_KV}")
    a("v_add_u32 v7, s40, v7")
    a("s_cmp_eq_u32 s16, 1")
    a("s_cbranch_scc1 LN_V")
    for part in ("K", "V"):
        if part == "V":
            a.label("LN_V")
        for half in range(2):
            for s in range(8 * half, 8 * half + 8):
                a(f"ds_read_b128 {vr(32+4*(s&7),4)}, v6 offset:{64*s}")
                a(f"ds_read_b64_tr_b16 {vr(64+4*(s&7),2)}, v7 offset:{1024*s}")
                a(f"ds_read_b64_tr_b16 {vr(64+4*(s&7)+2,2)}, v7 offset:{1024*s+128}")
            for s in range(8 * half, 8 * half + 8):
                k = s & 7
                if k in (0, 4):
                    a(f"s_waitcnt lgkmcnt({12 if k == 0 else 0})")
                cc = "0" if s == 0 else vr(8, 4)
                if part == "K":
                    a(f"v_mfma_f32_16x16x32_bf16 {vr(8,4)}, {vr(64+4*k,4)}, {vr(32+4*k,4)}, {cc}")
                else:
                    a(f"v_mfma_f32_16x16x32_bf16 {vr(8,4)}, {vr(32+4*k,4)}, {vr(64+4*k,4)}, {cc}")
            a("s_nop 7")
        if part == "K":
            a("v_lshrrev_b32 v7, 1, v4")
            a("v_lshl_add_u32 v7, v7, 5, v3")
            a("v_lshlrev_b32 v7, 4, v7")
            a("v_and_b32 v14, 1, v4")
            a("v_lshl_add_u32 v7, v14, 3, v7")
            a("s_lshr_b32 s40, s43, 5")
            a("s_lshl_b32 s40, s40, 10")
            a("s_and_b32 s41, s43, 31")
            a("s_lshl_b32 s41, s41, 4")
            a("s_add_u32 s40, s40, s41")
            a("v_cmp_gt_u32 vcc, 8, v3")
        else:
            a("v_and_b32 v7, 3, v3")
            a("v_and_b32 v14, 4, v3")
            a("v_lshl_add_u32 v7, v14, 1, v7")
            a("v_lshrrev_b32 v14, 3, v3")
            a("v_lshl_add_u32 v7, v14, 2, v7")
            a("v_lshlrev_b32 v7, 4, v7")
            a("v_lshl_add_u32 v7, v4, 3, v7")
            a("s_lshr_b32 s40, s43, 4")
            a("s_lshl_b32 s40, s40, 10")
            a("s_and_b32 s41, s43, 8")
            a("s_lshl_b32 s41, s41, 6")
            a("s_add_u32 s40, s40, s41")
            a(f"s_add_u32 s40, s40, {WS_VFRAG}")
            a("v_cmp_gt_u32 vcc, 32, v1")
        a("v_cvt_pk_bf16_f32 v12, v8, v9")
        a("v_cvt_pk_bf16_f32 v13, v10, v11")
        a("s_and_saveexec_b64 s[56:57], vcc")
        a("buffer_store_dwordx2 v[12:13], v7, s[24:27], s40 offen sc1")
        a("s_mov_b64 exec, s[56:57]")
        a("s_branch LN_DONE")
    a.label("LN_MISC")
    a("s_cmp_eq_u32 s16, 2")
    a("s_cbranch_scc1 LN_TOP")
    a("v_add_u32 v6, 16, v1")
    a("v_lshlrev_b32 v6, 4, v6")
    a("v_and_b32 v7, 11, v1")
    a("v_mov_b32 v8, 0x3f803f80")
    a("v_cmp_eq_u32 vcc, 0, v7")
    a("s_lshr_b32 s40, s43, 4")
    a("s_lshl_b32 s40, s40, 10")
    a("v_cndmask_b32 v8, 0, v8, vcc")
    a("v_mov_b32 v9, v8")
    a("v_mov_b32 v10, v8")
    a("v_mov_b32 v11, v8")
    a("s_and_b32 s41, s43, 8")
    a("s_lshl_b32 s41, s41, 6")
    a("s_add_u32 s40, s40, s41")
    a(f"s_add_u32 s40, s40, {WS_VFRAG}")
    a("v_cmp_gt_u32 vcc, 16, v1")
    a("s_and_saveexec_b64 s[56:57], vcc")
    a("buffer_store_dwordx4 v[8:11], v6, s[24:27], s40 offen sc1")
    a("s_mov_b64 exec, s[56:57]")
    a("s_branch LN_MISC2")
    a.label("LN_TOP")
    a("v_and_b32 v3, 7, v1")
    a("v_lshlrev_b32 v3, 2, v3")
    a(f"v_add_u32 v3, 0x{L_KEY:x}, v3")
    a("ds_read_b32 v8, v3")
    a("s_waitcnt lgkmcnt(0)")
    a("v_mov_b32 v10, v8")
    wave_reduce_rows(a, [10], op="v_max_u32", nsteps=3)
    a("v_cmp_eq_u32 vcc, v8, v10")
    a("s_nop 1")
    a("v_cndmask_b32 v11, v8, 0, vcc")
    wave_reduce_rows(a, [11], op="v_max_u32", nsteps=3)
    a("s_lshl_b32 s40, s2, 3")
    a(f"s_add_u32 s40, s40, {WS_TOPC}")
    a("v_mov_b32 v3, 0")
    a("v_cmp_eq_u32 vcc, 0, v1")
    a("s_and_saveexec_b64 s[56:57], vcc")
    a("buffer_store_dwordx2 v[10:11], v3, s[24:27], s40 offen sc1")
    a("s_mov_b64 exec, s[56:57]")
    a.label("LN_MISC2")
    a.label("LN_DONE")
    a("s_getreg_b32 s59, hwreg(HW_REG_XCC_ID)")
    a("v_mov_b32 v8, s60")
    a("v_mov_b32 v9, s59")
    a(f"v_mov_b32 v6, 0x{P1_FL:x}")
    a("v_mov_b32 v7, 1")
    a("s_lshl_b32 s40, s2, 7")
    a(f"s_add_u32 s40, s40, {WS_FLAG1}")
    a("s_waitcnt vmcnt(0) lgkmcnt(0)")
    a("s_mov_b64 exec, 1")
    a("ds_add_rtn_u32 v7, v6, v7 offset:16")
    a("s_waitcnt lgkmcnt(0)")
    a("v_readfirstlane_b32 s41, v7")
    a("s_cmp_lg_u32 s41, 3")
    a("s_cbranch_scc1 LN_NOFLAG")
    a("buffer_store_dwordx2 v[8:9], v104, s[24:27], s40 offen sc1")
    a.label("LN_NOFLAG")
    a("s_mov_b64 exec, -1")
    stamp(a, 3)
    a("s_mov_b32 s46, 0")
    a("s_branch ATT")

    a.label("R_GEMM")
    gemm_addr(a, P1_W)
    stamp(a, 1)
    gemm_loop_p1(a)
    stamp(a, 3)
    lds_tag(a, "G", 84)
    a("s_lshr_b32 s40, s16, 1")
    a("s_lshl_b32 s40, s40, 5")
    a("s_add_u32 s40, s40, s17")
    a("s_lshl_b32 s40, s40, 4")
    a(f"s_add_u32 s40, s40, {WS_STATS}")
    a("v_and_b32 v2, 31, v1")
    a("v_lshlrev_b32 v2, 4, v2")
    a("s_lshl_b32 s41, s16, 11")
    a(f"s_add_u32 s41, s41, {L_Q}")
    a("v_lshlrev_b32 v5, 4, v1")
    a("v_add_u32 v3, s41, v5")
    poll(a, "ST", 2, [40], wide=True, cmpw=(22, 23))
    lds_wait(a, "GQ", need_imm=4, off=16, two=False, vt=84)
    a(f"v_mul_f32 v6, 0x{f2u(SCALE):08x}, v21")
    a("v_mul_f32 v7, v20, v6")
    for i in range(16):
        a(f"v_mul_f32 v{ACC+i}, v{ACC+i}, v6")
    for i in range(16):
        a(f"v_fma_f32 v{ACC+i}, -v{ACC2+i}, v7, v{ACC+i}")
    for i in range(8):
        a(f"v_cvt_pk_bf16_f32 v{FR+i}, v{ACC+2*i}, v{ACC+2*i+1}")
    a(f"ds_write_b128 v3, {vr(FR,4)}")
    a(f"ds_write_b128 v3, {vr(FR+4,4)} offset:1024")
    a("s_mov_b32 s46, 1")

    a.label("ATT")
    a("s_lshl_b32 s44, s16, 14")
    a("s_lshl_b32 s45, s16, 15")
    a(f"s_add_u32 s45, s45, {WS_VFRAG}")
    a(f"v_mov_b32 v{IDX}, 0xdddddddd")
    for i in range(0, 64, 2):
        a(f"v_mov_b64 {vr(O0+i,2)}, 0")
    for i in range(0, 4, 2):
        a(f"v_mov_b64 {vr(VB+12+i,2)}, 0")
    for i in range(0, 8, 2):
        a(f"v_mov_b64 {vr(S0+24+i,2)}, 0")
    a("s_lshl_b32 s40, s46, 12")
    a(f"s_add_u32 s40, s40, {L_Q}")
    for i in range(4):
        a(f"s_add_u32 s41, s16, {i}")
        a("s_and_b32 s41, s41, 3")
        a("s_lshl_b32 s41, s41, 10")
        a("s_add_u32 s41, s41, s40")
        a(f"v_add_u32 v{10+i}, s41, v5")
    a("s_waitcnt lgkmcnt(0)")
    a("s_barrier")
    stamp(a, 4)
    a(f"buffer_load_dwordx4 {vr(KB,4)}, v5, s[24:27], s44 offen")
    a(f"buffer_load_dwordx4 {vr(VB,4)}, v5, s[24:27], s45 offen")
    a(f"buffer_load_dwordx4 {vr(VB+4,4)}, v5, s[24:27], s45 offen offset:1024")
    a(f"buffer_load_dwordx4 {vr(KB+4,4)}, v5, s[24:27], s44 offen offset:1024")
    a(f"buffer_load_dwordx4 {vr(VB+8,4)}, v5, s[24:27], s45 offen offset:2048")
    a("s_add_u32 s44, s44, 2048")
    a("s_add_u32 s45, s45, 3072")
    for i in range(4):
        a(f"ds_read_b128 {vr(Q0+4*i,4)}, v{10+i}")
    a("s_waitcnt lgkmcnt(0)")
    a("s_barrier")
    a("s_waitcnt vmcnt(4)")
    a(f"v_mfma_f32_32x32x16_bf16 {vr(S0,16)}, {vr(KB,4)}, {vr(Q0,4)}, 0")
    a("s_mov_b32 s47, 0")
    stamp(a, 5)
    a("s_nop 15")
    a.raw(".p2align 6")
    a.label("ATT_LOOP")
    for X in range(8):
        t = X >> 2
        c = X & 3
        Sx = S0 + 16 * (X & 1)
        Sp = S0 + 16 * ((X + 1) & 1)
        cp = (c - 1) & 3
        tp = ((X - 1) >> 2) & 1
        cn = (c + 1) & 3
        tn = ((X + 1) >> 2) & 1
        for e in range(16):
            a(f"v_exp_f32 v{Sx+e}, v{Sx+e}")
            if e == 1:
                if c == 1:
                    a("s_waitcnt vmcnt(3)")
                a(f"v_smfmac_f32_32x32x32_bf16 {vr(O0+16*cp,16)}, {vr(VB+8*tp+4,4)}, {vr(Sp+8,8)}, v{IDX}")
                if c == 0:
                    a(f"buffer_load_dwordx4 {vr(VB+8*tp+4,4)}, v5, s[24:27], s45 offen")
                    a("s_add_u32 s45, s45, 1024")
            if e == 4:
                if c == 3:
                    a("s_waitcnt vmcnt(3)")
                a(f"v_mfma_f32_32x32x16_bf16 {vr(Sp,16)}, {vr(KB+4*tn,4)}, {vr(Q0+4*cn,4)}, 0")
                if c == 2:
                    a(f"buffer_load_dwordx4 {vr(KB+4*t,4)}, v5, s[24:27], s44 offen")
                    a("s_add_u32 s44, s44, 1024")
            if e == 14:
                if c == 0:
                    a("s_waitcnt vmcnt(4)")
                a(f"v_smfmac_f32_32x32x32_bf16 {vr(O0+16*c,16)}, {vr(VB+8*t,4)}, {vr(Sx,8)}, v{IDX}")
                if c == 3:
                    a(f"buffer_load_dwordx4 {vr(VB+8*t,4)}, v5, s[24:27], s45 offen")
                    a("s_add_u32 s45, s45, 1024")
    a("s_add_u32 s47, s47, 1")
    a("s_cmp_lt_u32 s47, 8")
    a("s_cbranch_scc1 ATT_LOOP")
    stamp(a, 6)
    a("s_nop 1")
    a(f"v_smfmac_f32_32x32x32_bf16 {vr(O0+48,16)}, {vr(VB+8+4,4)}, {vr(S0+16+8,8)}, v{IDX}")
    a("s_mul_i32 s40, s46, 27648")
    a("v_lshlrev_b32 v9, 2, v1")
    for i in range(1, 4):
        a(f"s_add_u32 s41, s16, {i}")
        a("s_and_b32 s41, s41, 3")
        a("s_mul_i32 s41, s41, 6912")
        a("s_add_u32 s41, s41, s40")
        a(f"v_add_u32 v{9+i}, s41, v5")
        a(f"v_add_u32 v{12+i}, s41, v9")
    a("s_mul_i32 s41, s16, 6912")
    a("s_add_u32 s41, s41, s40")
    a("v_add_u32 v6, s41, v5")
    a("v_add_u32 v7, s41, v9")
    for i in range(1, 4):
        a(f"ds_write_b128 v{9+i}, {vr(O0+16*i,4)} offset:{2304*(i-1)}")
        a(f"ds_write_b128 v{9+i}, {vr(O0+16*i+4,4)} offset:{2304*(i-1)+1024}")
        a(f"ds_write_b32 v{12+i}, v{O0+16*i+8} offset:{2304*(i-1)+2048}")
    srd(a, 32, 14, 15, WS_O, 2048 * 1024)
    a("s_mov_b32 s67, 0")
    a("s_waitcnt lgkmcnt(0)")
    a("s_cmp_eq_u32 s46, 1")
    a("s_cbranch_scc1 ATT_BR")
    a("s_load_dwordx2 s[68:69], s[0:1], 80")
    a("s_lshr_b32 s64, s16, 1")
    a("s_lshl_b32 s64, s64, 5")
    a("s_add_u32 s64, s64, s17")
    a("s_and_b32 s40, s16, 1")
    a("s_lshl_b32 s40, s40, 5")
    a("s_add_u32 s40, s40, s18")
    a("s_lshl_b32 s65, s64, 10")
    a("s_lshl_b32 s40, s40, 1")
    a("s_add_u32 s65, s65, s40")
    a("s_add_u32 s66, s65, 16384")
    a(f"v_mov_b32 v2, 0x{L_SEL:x}")
    a.label("SELW")
    a("ds_read_b128 v[48:51], v2")
    a("s_waitcnt vmcnt(0) lgkmcnt(0)")
    a("v_readfirstlane_b32 s40, v48")
    a("v_readfirstlane_b32 s76, v49")
    a("v_readfirstlane_b32 s77, v50")
    a("s_cmp_eq_u32 s40, 0")
    a("s_cbranch_scc1 SELW")
    p3_pre(a, "A", *PRE_A)
    a("s_waitcnt lgkmcnt(0)")
    a.label("ATT_BR")
    a("s_barrier")
    stamp(a, 7)
    Rr = O0
    for i in range(1, 4):
        a(f"ds_read_b128 {vr(Rr+16*i,4)}, v6 offset:{2304*(i-1)}")
        a(f"ds_read_b128 {vr(Rr+16*i+4,4)}, v6 offset:{2304*(i-1)+1024}")
        a(f"ds_read_b32 v{Rr+16*i+8}, v7 offset:{2304*(i-1)+2048}")
    a(f"v_mov_b32 v2, 0x{L_SEL:x}")
    a("ds_read_b32 v9, v2 offset:12")
    a("s_mov_b32 s48, 0x7f000000")
    a("s_mov_b32 s49, 0x1f800000")
    a("s_mov_b32 s50, 0x5f800000")
    a("v_and_b32 v2, 31, v1")
    a("v_lshrrev_b32 v3, 5, v1")
    a("v_mul_u32_u24 v4, 144, v2")
    a("v_lshl_add_u32 v4, v3, 4, v4")
    a("s_mul_i32 s40, s46, 4608")
    a("s_lshl_b32 s41, s16, 5")
    a("s_add_u32 s40, s40, s41")
    a(f"s_add_u32 s40, s40, {L_KV}")
    a("v_add_u32 v4, s40, v4")
    a("v_lshrrev_b32 v2, 3, v1")
    a("v_and_b32 v3, 7, v1")
    a("v_mul_u32_u24 v15, 144, v2")
    a("v_lshl_add_u32 v15, v3, 4, v15")
    a("s_mul_i32 s40, s78, 1152")
    a(f"s_add_u32 s40, s40, {L_KV - 4*1152}")
    a("v_add_u32 v15, s40, v15")
    a("v_lshlrev_b32 v2, 10, v2")
    a("v_lshl_add_u32 v2, v3, 4, v2")
    a("s_lshl_b32 s40, s78, 3")
    a("s_add_u32 s40, s40, s17")
    a("s_sub_u32 s40, s40, 32")
    a("s_lshl_b32 s40, s40, 10")
    a("s_lshl_b32 s41, s18, 1")
    a("s_add_u32 s51, s40, s41")
    for i in range(1, 4):
        a(f"s_waitcnt lgkmcnt({3*(3-i)+1})")
        for j in range(0, 8, 2):
            a(f"v_pk_add_f32 {vr(Rr+j,2)}, {vr(Rr+j,2)}, {vr(Rr+16*i+j,2)}")
        a(f"v_add_f32 v{Rr+8}, v{Rr+8}, v{Rr+16*i+8}")
    a("s_waitcnt lgkmcnt(0)")
    a("v_readfirstlane_b32 s57, v9")
    a(f"v_add_f32 v11, abs(v{Rr}), abs(v{Rr+1})")
    a(f"v_add_f32 v12, abs(v{Rr+2}), abs(v{Rr+3})")
    a(f"v_add_f32 v13, abs(v{Rr+4}), abs(v{Rr+5})")
    a(f"v_add_f32 v14, abs(v{Rr+6}), abs(v{Rr+7})")
    a("v_add_f32 v11, v11, v12")
    a("v_add_f32 v13, v13, v14")
    a("v_add_f32 v11, v11, v13")
    a("v_cmp_gt_f32 s[52:53], s48, v11")
    a(f"v_cmp_le_f32 s[54:55], s49, v{Rr+8}")
    a(f"v_cmp_ge_f32 vcc, s50, v{Rr+8}")
    a("s_and_b64 s[52:53], s[52:53], s[54:55]")
    a("s_and_b64 s[52:53], s[52:53], vcc")
    a("s_cmp_eq_u64 s[52:53], -1")
    if "forceslow" in EXP: a("s_branch ATT_SLOW")
    a("s_cbranch_scc0 ATT_SLOW")
    a.label("ATT_FIN")
    a(f"v_rcp_f32 v11, v{Rr+8}")
    a("s_nop 0")
    for i in range(8):
        a(f"v_mul_f32 v{Rr+i}, v{Rr+i}, v11")
    for i in range(4):
        a(f"v_cvt_pk_bf16_f32 v{Rr+12+i}, v{Rr+2*i}, v{Rr+2*i+1}")
    a(f"ds_write_b128 v4, {vr(Rr+12,4)}")
    a("s_waitcnt lgkmcnt(0)")
    a("s_barrier")
    a(f"ds_read_b128 {vr(Rr+12,4)}, v15")
    a("s_waitcnt lgkmcnt(0)")
    a("s_cmp_eq_u32 s57, 1")
    a("s_cbranch_scc1 ATT_ST1")
    a(f"buffer_store_dwordx4 {vr(Rr+12,4)}, v2, s[32:35], s51 offen sc1")
    a("s_branch ATT_ST2")
    a.label("ATT_ST1")
    a(f"buffer_store_dwordx4 {vr(Rr+12,4)}, v2, s[32:35], s51 offen")
    a.label("ATT_ST2")
    a(f"v_mov_b32 v4, 0x{L_MISC:x}")
    a("v_mov_b32 v3, 1")
    a("s_lshl_b32 s40, s17, 4")
    a("s_lshl_b32 s41, s19, 7")
    a("s_add_u32 s40, s40, s41")
    a(f"s_add_u32 s40, s40, {WS_FLAG2}")
    a("v_mov_b32 v9, s60")
    a("v_mov_b32 v10, 0")
    a("s_waitcnt vmcnt(0)")
    a("s_mov_b64 exec, 1")
    a("ds_add_rtn_u32 v3, v4, v3 offset:32")
    a("s_waitcnt lgkmcnt(0)")
    a("v_readfirstlane_b32 s41, v3")
    a("s_cmp_lg_u32 s41, 7")
    a("s_cbranch_scc1 ATT_NOFLAG")
    a("s_cmp_eq_u32 s57, 1")
    a("s_cbranch_scc1 ATT_FL1")
    a("buffer_store_dword v9, v10, s[24:27], s40 offen sc1")
    a("s_branch ATT_NOFLAG")
    a.label("ATT_FL1")
    a("buffer_store_dword v9, v10, s[24:27], s40 offen")
    a.label("ATT_NOFLAG")
    a("s_mov_b64 exec, -1")
    stamp(a, 8)
    a("s_cmp_eq_u32 s46, 0")
    a("s_cbranch_scc1 P3")
    stamp_flush(a)
    a.label("L_END")
    a("s_endpgm")

    a.label("ATT_SLOW")
    a("s_mov_b32 s67, 1")
    a("v_mov_b32 v11, 0xff7fffff")
    a("s_mov_b32 s44, 0")
    a.label("ATT_SLOW1")
    a(f"buffer_load_dwordx4 {vr(KB,4)}, v5, s[24:27], s44 offen")
    a("s_waitcnt vmcnt(0)")
    a(f"v_mfma_f32_32x32x16_bf16 {vr(S0,16)}, {vr(KB,4)}, {vr(Q0,4)}, 0")
    a("s_nop 15")
    a("s_nop 3")
    for i in range(0, 16, 2):
        a(f"v_max3_f32 v11, v{S0+i}, v{S0+i+1}, v11")
    a("s_add_u32 s44, s44, 1024")
    a("s_cmp_lt_u32 s44, 0x10000")
    a("s_cbranch_scc1 ATT_SLOW1")
    a("v_mov_b32 v9, v11")
    a("s_nop 1")
    a("v_permlane32_swap_b32 v11, v9")
    a("s_nop 1")
    a("v_max_f32 v11, v11, v9")
    for i in range(16):
        a(f"v_sub_f32 v{S0+16+i}, 0, v11")
    for i in range(0, 16, 2):
        a(f"v_mov_b64 {vr(Rr+i,2)}, 0")
    a("s_mov_b32 s44, 0")
    a(f"s_mov_b32 s45, {WS_VFRAG}")
    a.label("ATT_SLOW2")
    a(f"buffer_load_dwordx4 {vr(KB,4)}, v5, s[24:27], s44 offen")
    a(f"buffer_load_dwordx4 {vr(VB,4)}, v5, s[24:27], s45 offen")
    a(f"buffer_load_dwordx4 {vr(VB+4,4)}, v5, s[24:27], s45 offen offset:1024")
    a("s_waitcnt vmcnt(0)")
    a(f"v_mfma_f32_32x32x16_bf16 {vr(S0,16)}, {vr(KB,4)}, {vr(Q0,4)}, {vr(S0+16,16)}")
    a("s_nop 15")
    a("s_nop 3")
    for e in range(16):
        a(f"v_exp_f32 v{S0+e}, v{S0+e}")
    a("s_nop 1")
    a(f"v_smfmac_f32_32x32x32_bf16 {vr(Rr,16)}, {vr(VB,4)}, {vr(S0,8)}, v{IDX}")
    a(f"v_smfmac_f32_32x32x32_bf16 {vr(Rr,16)}, {vr(VB+4,4)}, {vr(S0+8,8)}, v{IDX}")
    a("s_nop 15")
    a("s_nop 3")
    a("s_add_u32 s44, s44, 1024")
    a("s_add_u32 s45, s45, 2048")
    a("s_cmp_lt_u32 s44, 0x10000")
    a("s_cbranch_scc1 ATT_SLOW2")
    a("s_branch ATT_FIN")

    a.label("P3")
    a("s_mov_b32 s70, 0x200000")
    a("s_mov_b32 s71, 0x00020000")
    a("s_cmp_lg_u32 s67, 0")
    a("s_cbranch_scc1 P3_REDO")
    a.label("P3_GO")
    gemm_addr(a, L_W)
    a("s_mul_i32 s40, s16, 4352")
    a(f"s_add_u32 s40, s40, {L_KV + 13312}")
    a("v_lshlrev_b32 v14, 4, v1")
    a("v_add_u32 v14, s40, v14")
    a(f"v_lshrrev_b32 v15, 1, v{PV+1}")
    a("v_mul_u32_u24 v15, 2176, v15")
    a(f"v_and_b32 v2, 1, v{PV+1}")
    a("v_lshl_add_u32 v15, v2, 9, v15")
    a(f"v_lshl_add_u32 v15, v{PV}, 4, v15")
    a("v_add_u32 v15, s40, v15")
    for i in range(0, 16, 2):
        a(f"v_mov_b64 {vr(ACC+i,2)}, 0")
    a("s_mov_b32 s41, 0")
    stamp(a, 9)
    a(f"v_mov_b32 v4, 0x{L_MISC:x}")
    a.label("P3_LOOP")
    a("ds_read_b64 v[2:3], v4 offset:16")
    a("s_waitcnt lgkmcnt(0)")
    a("v_and_b32 v2, v2, v3")
    a("s_nop 0")
    a("v_readfirstlane_b32 s40, v2")
    a("s_andn2_b32 s40, s40, s41")
    a("s_cbranch_scc0 P3_LOOP")
    FB = [16, 64]

    def pick(ab):
        a("s_ff1_i32_b32 s43, s40")
        a("s_bitset1_b32 s41, s43")
        a("s_bitset0_b32 s40, s43")
        a("s_lshl_b32 s43, s43, 13")
        a(f"v_add_u32 v{ab}, s43, v6")
        for i in range(4):
            a(f"v_add_u32 v{ab+1+i}, s43, v{10+i}")

    def rd(buf, ab):
        for sx in range(4):
            a(f"ds_read_b64_tr_b16 {vr(FB[buf]+8*sx,2)}, v{ab} offset:{sx*2048}")
            a(f"ds_read_b64_tr_b16 {vr(FB[buf]+8*sx+2,2)}, v{ab} offset:{sx*2048+512}")
            a(f"ds_read_b128 {vr(FB[buf]+8*sx+4,4)}, v{ab+1+sx}")

    def mm(buf, base):
        for sx in range(4):
            a(f"s_waitcnt lgkmcnt({base+3*(3-sx)})")
            a(f"v_mfma_f32_32x32x16_bf16 {vr(ACC,16)}, {vr(FB[buf]+8*sx,4)}, {vr(FB[buf]+8*sx+4,4)}, {vr(ACC,16)}")

    a.label("P3_CH")
    pick(128)
    rd(0, 128)
    a("s_cmp_eq_u32 s40, 0")
    a("s_cbranch_scc1 P3_ONE")
    pick(134)
    a("s_waitcnt lgkmcnt(3)")
    rd(1, 134)
    a("s_waitcnt lgkmcnt(12)")
    for sx in range(4):
        a(f"v_mfma_f32_32x32x16_bf16 {vr(ACC,16)}, {vr(FB[0]+8*sx,4)}, {vr(FB[0]+8*sx+4,4)}, {vr(ACC,16)}")
    mm(1, 0)
    a("s_branch P3_NXT")
    a.label("P3_ONE")
    mm(0, 0)
    a.label("P3_NXT")
    a("s_cmp_lg_u32 s40, 0")
    a("s_cbranch_scc1 P3_CH")
    a("s_cmp_lg_u32 s41, 0xff")
    a("s_cbranch_scc1 P3_LOOP")
    a("s_nop 15")
    stamp(a, 12)
    for ch in range(4):
        a(f"ds_write_b128 v14, {vr(ACC+4*ch,4)} offset:{1088*ch}")
    a("s_waitcnt lgkmcnt(0)")
    for j in range(2):
        for e in range(2):
            a(f"ds_read_b128 {vr(FR+8*j+4*e,4)}, v15 offset:{j*256+e*1088}")
    a("s_waitcnt lgkmcnt(0)")
    for i in range(8):
        a(f"v_pk_fma_f32 {vr(FR+2*i,2)}, {vr(FR+2*i,2)}, {vr(PG+2*i,2)}, {vr(PXF+2*i,2)}")
    for i in range(8):
        a(f"v_cvt_pk_bf16_f32 v{64+i}, v{FR+2*i}, v{FR+2*i+1}")
    a(f"buffer_store_dwordx4 {vr(64,4)}, v{PV+2}, s[68:71], s65 offen")
    a(f"buffer_store_dwordx4 {vr(68,4)}, v{PV+2}, s[68:71], s66 offen")
    stamp_flush(a)
    a("s_endpgm")
    a.label("P3_REDO")
    p3_pre(a, "B", *PRE_B)
    a("s_branch P3_GO")
    p3_upd(a, "A", *PRE_A)
    p3_upd(a, "B", *PRE_B)


def main(out):
    a = Asm()
    hdr = f"""; {NAME}: fused LN+QKV | MQA attention + routed FFN | out-proj + gate   (generated by gen/gen2.py)
; @launch grid=(256,1,1) block=(768,1,1) lds=163840
.amdgcn_target "amdgcn-amd-amdhsa--gfx950"
.text
"""
    kernel(a)
    vg = 152
    txt = hdr + a.text() + f""".section .rodata,"a"
.p2align 6
.amdhsa_kernel {NAME}_kernel
  .amdhsa_next_free_vgpr {vg}
  .amdhsa_next_free_sgpr {102 if PROF else 80}
  .amdhsa_accum_offset {vg}
  .amdhsa_group_segment_fixed_size 0
  .amdhsa_kernarg_size 104
  .amdhsa_user_sgpr_count 2
  .amdhsa_user_sgpr_kernarg_segment_ptr 1
  .amdhsa_system_sgpr_workgroup_id_x 1
.end_amdhsa_kernel
"""
    open(out, "w").write(txt)
    if POLL_IDS: print(POLL_IDS)


if __name__ == "__main__":
    PROF = os.environ.get("PROF", "0") == "1"
    main(sys.argv[1] if len(sys.argv) > 1 else f"fused.s")
```

```python
import sys, os, struct

NAME = "recurrent_scan__grouped_kv_mqa__moe_arch_mod__prompt"

WS_KMAT = 0x0
WS_VFRAG = 0x10000
WS_STATS = 0x30000
WS_TOPC = 0x38000
WS_SELG = 0x39000
WS_CLASS = 0x3A000
WS_XSEL = 0x39400
WS_FLAG1 = 0x40000
WS_FLAG2 = 0x48000
WS_FLAGF = 0x50000
WS_FLAGA = 0x58000
WS_GP = 0x60000
WS_SMALL = 0xA0000
WS_YPART = 0xA0000
WS_O = 0x200000
WS_PROF = 0xA00000

SCALE = 0.25 * 1.4426950408889634
NLOG2E = -1.4426950408889634
PROF = False
SPIN_MAX = int(os.environ.get('SPIN_MAX', 1 << 17))
POLL_IDS = {}
EXP = os.environ.get('EXP', '')
FFN_THR = int(os.environ.get('FFN_THR', '4'))

L_X = 0
L_W = 65536
L_KV = 131072
P1_X = 0
P1_W = 57344
P1_KV = 114688
L_XN = 147456
P1_WR = 155776
L_KEY = 156800
P1_FL = 156928
L_RED = 0
L_Q = 114688
L_MISC = L_KV + 12288
L_UPD = L_MISC + 64
L_SEL = 63488
L_FX = L_Q


def f2u(x):
    return struct.unpack("<I", struct.pack("<f", x))[0]


class Asm:
    def __init__(self):
        self.l = []
    def __call__(self, s):
        self.l.append("    " + s)
    def label(self, s):
        self.l.append(s + ":")
    def raw(self, s):
        self.l.append(s)
    def c(self, s):
        self.l.append("    ; " + s)
    def text(self):
        return "\n".join(self.l) + "\n"


def srd(a, d, base_lo, base_hi, off, size):
    if off:
        a(f"s_add_u32 s{d}, s{base_lo}, 0x{off:x}")
        a(f"s_addc_u32 s{d+1}, s{base_hi}, 0")
    else:
        a(f"s_mov_b32 s{d}, s{base_lo}")
        a(f"s_mov_b32 s{d+1}, s{base_hi}")
    a(f"s_mov_b32 s{d+2}, 0x{size:x}")
    a(f"s_mov_b32 s{d+3}, 0x00020000")


def stamp(a, i):
    if PROF:
        a("s_memtime s[96:97]")
        a("s_waitcnt lgkmcnt(0)")
        a(f"s_mov_b32 s{80+i}, s96")
        if "rt" in EXP and i in (5, 7):
            a("s_memrealtime s[96:97]")
            a("s_waitcnt lgkmcnt(0)")
            a(f"s_mov_b32 s{90 if i == 5 else 91}, s96")


def stamp_flush(a):
    if PROF:
        a("s_waitcnt vmcnt(0)")
        stamp(a, 13)
        a("s_memrealtime s[96:97]")
        a("s_waitcnt lgkmcnt(0)")
        a("s_mov_b32 s95, s96")
        a(f"s_add_u32 s96, s14, 0x{WS_PROF:x}")
        a("s_addc_u32 s97, s15, 0")
        a("s_mov_b32 s98, 0x100000")
        a("s_mov_b32 s99, 0x00020000")
        a("s_lshl_b32 s79, s2, 4")
        a("s_add_u32 s79, s79, s78")
        a("s_lshl_b32 s79, s79, 6")
        a("s_mov_b64 exec, 1")
        a("v_mov_b32 v0, 0")
        for q in range(4):
            for i in range(4):
                a(f"v_mov_b32 v{4+i}, s{80+4*q+i}")
            a(f"buffer_store_dwordx4 v[4:7], v0, s[96:99], s79 offen offset:{16*q}")
            a("s_waitcnt vmcnt(0)")


def vr(b, n):
    return f"v[{b}:{b+n-1}]"


DPP_STEPS = ["quad_perm:[1,0,3,2] row_mask:0xf bank_mask:0xf",
             "quad_perm:[2,3,0,1] row_mask:0xf bank_mask:0xf",
             "row_half_mirror row_mask:0xf bank_mask:0xf",
             "row_mirror row_mask:0xf bank_mask:0xf",
             "row_bcast:15 row_mask:0xa bank_mask:0xf",
             "row_bcast:31 row_mask:0xc bank_mask:0xf"]


def wave_reduce_rows(a, regs, op="v_add_f32", nsteps=6):
    for st in DPP_STEPS[:nsteps]:
        if len(regs) == 1:
            a("s_nop 1")
        elif len(regs) == 2:
            a("s_nop 0")
        for r in regs:
            a(f"{op}_dpp v{r}, v{r}, v{r} {st}")


FR = 16
ACC = 48
ACC2 = 64
ONES = 80
Q0, O0, S0, KB, VB, IDX = 16, 32, 96, 128, 136, 8


def lds_wait(a, name, need_s=None, need_imm=None, off=0, two=True, vt=14):
    a(f"v_mov_b32 v{vt+2}, 0x{P1_FL:x}")
    a.label(f"LW_{name}")
    if two:
        a(f"ds_read_b64 {vr(vt,2)}, v{vt+2} offset:{off}")
        a("s_waitcnt lgkmcnt(0)")
        a(f"v_min_u32 v{vt}, v{vt}, v{vt+1}")
        a("s_nop 0")
    else:
        a(f"ds_read_b32 v{vt}, v{vt+2} offset:{off}")
        a("s_waitcnt lgkmcnt(0)")
    a(f"v_readfirstlane_b32 s62, v{vt}")
    a(f"s_cmp_lt_u32 s62, " + (f"s{need_s}" if need_s is not None else str(need_imm)))
    a(f"s_cbranch_scc1 LW_{name}")


def lds_add(a, vaddr, vone, off):
    a("s_mov_b64 exec, 1")
    a(f"ds_add_u32 v{vaddr}, v{vone} offset:{off}")
    a("s_mov_b64 exec, -1")


def gemm_addr(a, wbase):
    a("v_lshrrev_b32 v3, 5, v1")
    a("v_lshrrev_b32 v5, 2, v1")
    a("v_and_b32 v5, 3, v5")
    a("v_lshl_add_u32 v6, v3, 3, v5")
    a("v_lshlrev_b32 v6, 7, v6")
    a("v_lshrrev_b32 v7, 1, v5")
    a("s_and_b32 s40, s16, 1")
    a("v_xor_b32 v7, s40, v7")
    a("v_lshl_add_u32 v6, v7, 6, v6")
    a("v_and_b32 v7, 16, v1")
    a("v_lshl_add_u32 v6, v7, 1, v6")
    a("v_and_b32 v7, 1, v1")
    a("v_lshl_add_u32 v6, v7, 4, v6")
    a("v_and_b32 v7, 2, v1")
    a("v_lshl_add_u32 v6, v7, 2, v6")
    a(f"v_add_u32 v6, 0x{wbase:x}, v6")
    a("v_and_b32 v2, 31, v1")
    a("v_lshrrev_b32 v5, 1, v2")
    a("v_and_b32 v5, 7, v5")
    a("v_xor_b32 v5, v5, v3")
    a("v_lshlrev_b32 v2, 7, v2")
    a("v_lshl_add_u32 v2, v5, 4, v2")
    a("s_lshr_b32 s40, s16, 1")
    a("s_lshl_b32 s40, s40, 12")
    a("v_add_u32 v10, s40, v2")
    a("v_xor_b32 v11, 32, v10")
    a("v_xor_b32 v12, 64, v10")
    a("v_xor_b32 v13, 96, v10")


def gemm_loop_p1(a):
    for i in range(0, 32, 2):
        a(f"v_mov_b64 {vr(ACC+i,2)}, 0")
    for i in range(4):
        a(f"v_mov_b32 v{ONES+i}, 0x3f803f80")
    a("v_mov_b32 v7, 1")
    a("s_mov_b32 s41, 3")
    a("s_barrier")
    FB = [FR, 88]

    def rd(buf):
        for sx in range(4):
            a(f"ds_read_b64_tr_b16 {vr(FB[buf]+8*sx,2)}, v6 offset:{sx*2048}")
            a(f"ds_read_b64_tr_b16 {vr(FB[buf]+8*sx+2,2)}, v6 offset:{sx*2048+512}")
            a(f"ds_read_b128 {vr(FB[buf]+8*sx+4,4)}, v{10+sx}")
        a("s_movk_i32 s40, 0x2000")
        a("s_cmp_eq_u32 s41, 9")
        a(f"s_cselect_b32 s40, {(-6*8192) & 0xffffffff}, s40")
        a("v_add_u32 v6, s40, v6")
        for i in range(4):
            a(f"v_add_u32 v{10+i}, s40, v{10+i}")
        a("s_add_u32 s41, s41, 1")

    def mm(buf):
        for sx in range(4):
            a(f"v_mfma_f32_32x32x16_bf16 {vr(ACC,16)}, {vr(FB[buf]+8*sx,4)}, {vr(FB[buf]+8*sx+4,4)}, {vr(ACC,16)}")
            a(f"v_mfma_f32_32x32x16_bf16 {vr(ACC2,16)}, {vr(FB[buf]+8*sx,4)}, {vr(ONES,4)}, {vr(ACC2,16)}")

    lds_wait(a, "G0", need_s=41, vt=84)
    rd(0)
    a.label("GL_P1")
    a("s_cmp_ge_u32 s62, s41")
    a("s_cbranch_scc1 GL_S1")
    lds_wait(a, "G1", need_s=41, vt=84)
    a.label("GL_S1")
    rd(1)
    a("s_waitcnt lgkmcnt(12)")
    a("s_cmp_lg_u32 s41, 5")
    a("s_cbranch_scc1 GL_NOSIG")
    lds_add(a, 86, 7, 8)
    a.label("GL_NOSIG")
    mm(0)
    a("s_cmp_eq_u32 s41, 11")
    a("s_cbranch_scc1 GL_END")
    a("s_cmp_ge_u32 s62, s41")
    a("s_cbranch_scc1 GL_S2")
    lds_wait(a, "G2", need_s=41, vt=84)
    a.label("GL_S2")
    rd(0)
    a("s_waitcnt lgkmcnt(12)")
    mm(1)
    a("s_branch GL_P1")
    a.label("GL_END")
    a("s_waitcnt lgkmcnt(0)")
    mm(1)


def dbg_timeout(a, tag):
    if "dbgspin" in EXP:
        pid = POLL_IDS.setdefault(tag, len(POLL_IDS) + 1)
        a(f"s_cmp_lt_u32 s61, {SPIN_MAX}")
        a(f"s_cbranch_scc1 DBGT_{tag}")
        a(f"v_mov_b32 v150, {4*pid}")
        a("v_mov_b32 v151, 1")
        a("s_mov_b64 exec, 1")
        a("buffer_atomic_add v151, v150, s[72:75], 0 offen")
        a("s_mov_b64 exec, -1")
        a.label(f"DBGT_{tag}")


def poll(a, tag, voff, soffs, wide=False, sleep=2, cmpw=(20, 23), dst=20):
    a("s_mov_b32 s61, 0")
    a.label(f"POLL_{tag}")
    if wide:
        a(f"buffer_load_dwordx4 v[20:23], v{voff}, s[24:27], s{soffs[0]} offen sc1")
        regs = list(cmpw)
    else:
        for i, so in enumerate(soffs):
            a(f"buffer_load_dword v{dst+i}, v{voff}, s[24:27], s{so} offen sc1")
        regs = [dst + i for i in range(len(soffs))]
    a("s_add_u32 s61, s61, 1")
    a("s_waitcnt vmcnt(0)")
    for i, r in enumerate(regs):
        if i == 0:
            a(f"v_cmp_ne_u32 vcc, s60, v{r}")
        else:
            a(f"v_cmp_ne_u32 s[62:63], s60, v{r}")
            a("s_or_b64 vcc, vcc, s[62:63]")
    a(f"s_cmp_ge_u32 s61, {SPIN_MAX}")
    a(f"s_cbranch_scc1 POLLX_{tag}")
    a("s_cmp_eq_u64 vcc, 0")
    a(f"s_cbranch_scc1 POLLX_{tag}")
    a(f"s_sleep {sleep}")
    a(f"s_branch POLL_{tag}")
    a.label(f"POLLX_{tag}")
    dbg_timeout(a, tag)


def get_tag(a, name, vt):
    a("s_mov_b32 s61, 0")
    a(f"v_mov_b32 v{vt}, 0")
    a.label(f"TAG_{name}")
    a(f"buffer_load_dword v{vt+1}, v{vt}, s[72:75], 0 offen sc1")
    a("s_add_u32 s61, s61, 1")
    a("s_waitcnt vmcnt(0)")
    a(f"v_readfirstlane_b32 s60, v{vt+1}")
    a(f"s_cmp_ge_u32 s61, {SPIN_MAX}")
    a(f"s_cbranch_scc1 TAGX_{name}")
    a("s_cmp_eq_u32 s60, 0")
    a(f"s_cbranch_scc1 TAG_{name}")
    a.label(f"TAGX_{name}")


def lds_tag(a, name, vt):
    lds_wait(a, f"T{name}", need_imm=1, off=20, two=False, vt=vt)
    a("s_mov_b32 s60, s62")


def ln_normalize(a, rows_packed, XU, D, negm_pairs, rinv_pairs, mask_s):
    R = range(len(rows_packed))
    for i in R:
        for j in range(4):
            a(f"v_pk_add_f32 {vr(D+8*i+2*j,2)}, {vr(XU+8*i+2*j,2)}, {vr(negm_pairs[i],2)}")
    for i in R:
        for j in range(4):
            a(f"v_cvt_pk_bf16_f32 v{rows_packed[i]+j}, v{D+8*i+2*j}, v{D+8*i+2*j+1}")
    for i in R:
        for j in range(4):
            a(f"v_lshlrev_b32 v{D+8*i+2*j}, 16, v{rows_packed[i]+j}")
            a(f"v_and_b32 v{D+8*i+2*j+1}, s{mask_s}, v{rows_packed[i]+j}")
    for i in R:
        for j in range(4):
            a(f"v_pk_mul_f32 {vr(D+8*i+2*j,2)}, {vr(D+8*i+2*j,2)}, {vr(rinv_pairs[i],2)}")
    for i in R:
        for j in range(4):
            a(f"v_cvt_pk_bf16_f32 v{rows_packed[i]+j}, v{D+8*i+2*j}, v{D+8*i+2*j+1}")


PG, PXF = 96, 112
PRE_A = (128, 48, 136, 64)
PRE_B = (128, 16, 136, 64)
PV = 144


GPK, XPK = 152, 160


def p3_pre(a, sfx, EX, T, PR, YL, front=False):
    G, XF = PG, PXF
    SV = 148
    a(f"v_lshrrev_b32 v{PV}, 2, v1")
    a(f"v_and_b32 v{PV+1}, 3, v1")
    a(f"v_lshlrev_b32 v{PV+2}, 10, v{PV}")
    a(f"v_lshl_add_u32 v{PV+2}, v{PV+1}, 4, v{PV+2}")
    a(f"buffer_load_dwordx4 {vr(EX,4)}, v{PV+2}, s[20:23], s65 offen")
    a(f"buffer_load_dwordx4 {vr(EX+4,4)}, v{PV+2}, s[20:23], s66 offen")
    a(f"v_lshlrev_b32 v{T}, 4, v{PV}")
    a("s_lshl_b32 s40, s64, 4")
    a(f"s_add_u32 s40, s40, {WS_STATS}")
    if front:
        for j in range(2):
            poll(a, f"PS{j}", T, [40], wide=True, cmpw=(22, 23))
            a(f"v_mov_b64 {vr(SV+2*j,2)}, v[20:21]")
            a("s_add_u32 s40, s40, 256")
        for i in range(0, 8, 2):
            a(f"v_mov_b64 {vr(XPK+i,2)}, {vr(EX+i,2)}")
    else:
        a(f"buffer_load_dwordx2 {vr(SV,2)}, v{T}, s[24:27], s40 offen sc1")
        a(f"buffer_load_dwordx2 {vr(SV+2,2)}, v{T}, s[24:27], s40 offen offset:256 sc1")
        a("s_waitcnt vmcnt(0)")
    for i in range(8):
        a(f"v_lshlrev_b32 v{XF+2*i}, 16, v{EX+i}")
        a(f"v_and_b32 v{XF+2*i+1}, s42, v{EX+i}")
    for j in range(2):
        a(f"v_sub_f32 v{PR+4*j}, 0, v{SV+2*j}")
        a(f"v_sub_f32 v{PR+1+4*j}, 0, v{SV+2*j}")
        a(f"v_mov_b32 v{PR+2+4*j}, v{SV+1+2*j}")
        a(f"v_mov_b32 v{PR+3+4*j}, v{SV+1+2*j}")
    ln_normalize(a, [EX, EX + 4], XF, G, [PR, PR + 4], [PR + 2, PR + 6], 42)
    for i in range(8):
        a(f"v_lshlrev_b32 v{G+2*i}, 16, v{EX+i}")
        a(f"v_and_b32 v{G+2*i+1}, s42, v{EX+i}")
    if not front:
        a("s_mov_b32 s58, s76")
        a("s_mov_b32 s47, 0")
        a.label(f"PU_{sfx}")
        a("s_and_b32 s59, s58, 0xffff")
        a("s_sub_u32 s59, 2047, s59")
        a("s_sub_u32 s59, s59, s64")
        a("s_cmp_lt_u32 s59, 32")
        a(f"s_cbranch_scc1 PUY_{sfx}")
        a.label(f"PUN_{sfx}")
        a("s_mov_b32 s58, s77")
        a("s_add_u32 s47, s47, 2048")
        a("s_cmp_lt_u32 s47, 4096")
        a(f"s_cbranch_scc1 PU_{sfx}")
    for i in range(16):
        a(f"v_mul_f32 v{T+i}, 0x{f2u(NLOG2E):08x}, v{G+i}")
    for i in range(16):
        a(f"v_exp_f32 v{T+i}, v{T+i}")
    for i in range(16):
        a(f"v_add_f32 v{T+i}, 1.0, v{T+i}")
    for i in range(16):
        a(f"v_rcp_f32 v{T+i}, v{T+i}")
    for i in range(0, 16, 2):
        a(f"v_pk_mul_f32 {vr(G+i,2)}, {vr(G+i,2)}, {vr(T+i,2)}")
    for i in range(8):
        a(f"v_cvt_pk_bf16_f32 v{GPK+i}, v{G+2*i}, v{G+2*i+1}")


def p3_upd(a, sfx, EX, T, PR, YL):
    G = PG
    a.label(f"PUY_{sfx}")
    a(f"v_min_u32 v{PR}, 55, v1")
    a(f"v_lshlrev_b32 v{PR}, 7, v{PR}")
    a(f"s_mov_b32 s44, {WS_FLAGF}")
    a(f"s_mov_b32 s45, {WS_FLAGF + 56*128}")
    poll(a, f"FF{sfx}", PR, [44, 45], sleep=4, dst=EX)
    srd(a, 48, 14, 15, WS_YPART, 112 * 4096)
    a(f"v_mul_u32_u24 v{PR}, 0x7000, v{PV}")
    a(f"v_lshl_add_u32 v{PR}, v{PV+1}, 5, v{PR}")
    a("s_and_b32 s40, s16, 1")
    a("s_lshl_b32 s40, s40, 5")
    a("s_add_u32 s40, s40, s18")
    a("s_lshl_b32 s40, s40, 2")
    a("s_add_u32 s40, s40, s47")
    for i in range(0, 8, 2):
        a(f"v_mov_b64 {vr(T+i,2)}, 0")
    for cnt in (4, 3):
        for p in range(cnt):
            a(f"buffer_load_dwordx4 {vr(YL+8*p,4)}, v{PR}, s[48:51], s40 offen sc1")
            a(f"buffer_load_dwordx4 {vr(YL+8*p+4,4)}, v{PR}, s[48:51], s40 offen offset:16 sc1")
            a("s_add_u32 s40, s40, 4096")
        a("s_waitcnt vmcnt(0)")
        for p in range(cnt):
            for i in range(0, 8, 2):
                a(f"v_pk_add_f32 {vr(T+i,2)}, {vr(T+i,2)}, {vr(YL+8*p+i,2)}")
    for ror in (4, 8):
        a("s_nop 1")
        for i in range(8):
            a(f"v_add_f32_dpp v{T+i}, v{T+i}, v{T+i} row_ror:{ror} row_mask:0xf bank_mask:0xf")
    for swap in ("v_permlane16_swap_b32", "v_permlane32_swap_b32"):
        for i in range(8):
            a(f"v_mov_b32 v{T+8+i}, v{T+i}")
        a("s_nop 1")
        for i in range(8):
            a(f"{swap} v{T+i}, v{T+8+i}")
        a("s_nop 1")
        for i in range(8):
            a(f"v_add_f32 v{T+i}, v{T+i}, v{T+8+i}")
    a("s_and_b32 s40, s58, 0xffff0000")
    a("s_ashr_i32 s41, s40, 31")
    a("s_not_b32 s41, s41")
    a("s_or_b32 s41, s41, 0x80000000")
    a("s_xor_b32 s40, s40, s41")
    a("s_and_b32 s40, s40, 0xffff0000")
    a(f"v_mov_b32 v{PR}, s40")
    a(f"v_mul_f32 v{PR}, 0x{f2u(NLOG2E):08x}, v{PR}")
    a(f"v_exp_f32 v{PR}, v{PR}")
    a("s_nop 0")
    a(f"v_add_f32 v{PR}, 1.0, v{PR}")
    a(f"v_rcp_f32 v{PR}, v{PR}")
    a("s_nop 0")
    a(f"v_cvt_pk_bf16_f32 v{PR}, v{PR}, v{PR}")
    a(f"v_lshlrev_b32 v{PR}, 16, v{PR}")
    for rp in range(2):
        for i in range(4):
            a(f"v_cvt_pk_bf16_f32 v{T+8+i}, v{T+2*i}, v{T+2*i+1}")
        for i in range(4):
            a(f"v_lshlrev_b32 v{T+2*i}, 16, v{T+8+i}")
            a(f"v_and_b32 v{T+2*i+1}, s42, v{T+8+i}")
        if rp == 0:
            for i in range(8):
                a(f"v_mul_f32 v{T+i}, v{T+i}, v{PR}")
    for j in range(2):
        a(f"v_add_u32 v{PR}, {16*j}, v{PV}")
        a(f"v_cmp_eq_u32 vcc, s59, v{PR}")
        for i in range(8):
            a(f"v_add_f32 v{T+8+i}, v{T+i}, v{G+8*j+i}")
        for i in range(4):
            a(f"v_cvt_pk_bf16_f32 v{T+8+i}, v{T+8+2*i}, v{T+9+2*i}")
        for i in range(3, -1, -1):
            a(f"v_and_b32 v{T+9+2*i}, s42, v{T+8+i}")
            a(f"v_lshlrev_b32 v{T+8+2*i}, 16, v{T+8+i}")
        for i in range(8):
            a(f"v_cndmask_b32 v{G+8*j+i}, v{G+8*j+i}, v{T+8+i}, vcc")
    a(f"s_branch PUN_{sfx}")


def kernel(a):
    K = NAME + "_kernel"
    a.raw(f".globl {K}")
    a.raw(".p2align 8")
    a.raw(f".type {K},@function")
    a.label(K)
    a("s_cmp_ge_u32 s2, 256")
    a("s_cbranch_scc1 L_END")
    if PROF:
        a("s_memrealtime s[96:97]")
        a("s_waitcnt lgkmcnt(0)")
        a("s_mov_b32 s94, s96")
    stamp(a, 0)
    a("s_load_dwordx8 s[4:11], s[0:1], 0")
    a("s_load_dwordx2 s[12:13], s[0:1], 32")
    a("s_load_dwordx2 s[14:15], s[0:1], 96")
    a("s_load_dwordx2 s[28:29], s[0:1], 48")
    a("s_load_dwordx2 s[72:73], s[0:1], 88")
    a("v_and_b32 v1, 63, v0")
    a("v_lshrrev_b32 v2, 6, v0")
    a("s_nop 0")
    a("v_readfirstlane_b32 s78, v2")
    a("s_and_b32 s17, s2, 7")
    a("s_lshr_b32 s18, s2, 3")
    a("s_and_b32 s19, s18, 3")
    a("s_lshl_b32 s17, s17, 2")
    a("s_add_u32 s17, s17, s19")
    a("s_lshl_b32 s17, s17, 6")
    a("s_lshr_b32 s19, s18, 2")
    a("s_lshl_b32 s18, s19, 6")
    a("s_and_b32 s16, s78, 3")
    a("s_mov_b32 s42, 0xffff0000")
    a("v_lshlrev_b32 v5, 4, v1")
    a("s_waitcnt lgkmcnt(0)")
    srd(a, 20, 4, 5, 0, 2048 * 1024)
    srd(a, 24, 14, 15, 0, WS_SMALL)
    a("s_mov_b32 s74, 256")
    a("s_mov_b32 s75, 0x00020000")
    a("s_cmp_ge_u32 s78, 8")
    a("s_cbranch_scc1 R_GEMM")
    a("s_cmp_ge_u32 s78, 4")
    a("s_cbranch_scc1 R_LN")
    a.label("R_AUX")
    a("s_cmp_ge_u32 s16, 2")
    a("s_cbranch_scc1 R_AUX2")
    srd(a, 52, 28, 29, 0, 1024)
    srd(a, 28, 6, 7, 0, 512 * 1024)
    a("v_lshrrev_b32 v2, 3, v1")
    a("v_lshlrev_b32 v2, 10, v2")
    a("v_lshrrev_b32 v3, 4, v1")
    a("v_xor_b32 v6, v3, v1")
    a("v_and_b32 v6, 7, v6")
    a("v_lshl_add_u32 v8, v6, 4, v2")
    a("v_xor_b32 v9, 64, v8")
    a("v_and_b32 v6, 1, v3")
    a("v_lshlrev_b32 v6, 2, v6")
    a("v_xor_b32 v6, v6, v1")
    a("v_and_b32 v6, 7, v6")
    a("v_lshl_add_u32 v4, v6, 4, v2")
    a("s_lshl_b32 s43, s16, 15")
    a("s_lshl_b32 s44, s17, 10")
    a("s_add_u32 s44, s44, s43")
    a("s_lshl_b32 s45, s18, 1")
    a("s_add_u32 s45, s45, s43")
    a("s_lshl_b32 s46, s16, 12")

    a("s_lshl_b32 s47, s19, 3")
    a("s_add_u32 s47, s47, s17")
    a("s_lshl_b32 s48, s16, 2")
    a("s_add_u32 s47, s47, s48")
    a("s_lshl_b32 s47, s47, 10")
    a("s_mul_i32 s48, s16, 4160")
    for j in range(4):
        a(f"s_add_u32 m0, s48, {L_XN + j*1040}")
        a(f"s_add_u32 s40, s47, {j*1024}")
        a("buffer_load_dwordx4 v5, s[20:23], s40 offen lds")
    a(f"s_mov_b32 m0, {P1_WR}")
    a("s_lshl_b32 s47, s16, 13")
    a("buffer_load_dwordx4 v5, s[52:55], 0 offen lds")
    srd(a, 32, 8, 9, 0, 16384)
    srd(a, 36, 10, 11, 0, 16384)
    a("s_lshl_b32 s40, s16, 2")
    a(f"s_add_u32 s40, s40, {P1_FL}")
    a("v_mov_b32 v10, s40")
    a("v_mov_b32 v11, 1")
    for which in range(2):
        for j in range(8):
            a(f"s_add_u32 m0, s47, {P1_KV + which*16384 + j*1024}")
            a(f"s_add_u32 s40, s47, {j*1024}")
            a(f"buffer_load_dwordx4 v5, s[{32+4*which}:{35+4*which}], s40 offen lds")
        if which == 0:
            a("s_barrier")
            a("s_waitcnt vmcnt(8)")
            lds_add(a, 10, 11, 0)
            stamp(a, 1)
    a("s_mov_b32 s47, s46")
    a("s_mov_b32 s51, s19")
    a("s_mov_b32 s50, 0")
    a.label("LD_P1")
    a("s_cmp_lg_u32 s50, 7")
    a("s_cbranch_scc1 LD_NOWRAP")
    a("s_mov_b32 s47, s46")
    lds_wait(a, "L", need_imm=4, off=8, two=False)
    a.label("LD_NOWRAP")
    a("s_lshl_b32 s48, s51, 16")
    a("s_add_u32 s48, s48, s45")
    a("s_lshl_b32 s49, s51, 7")
    a("s_add_u32 s49, s49, s44")
    a("s_add_u32 s51, s51, 1")
    a("s_and_b32 s51, s51, 7")
    for j in range(4):
        a(f"s_add_u32 m0, s47, {P1_W + j*1024}")
        a(f"s_add_u32 s40, s48, {j*8192}")
        a("buffer_load_dwordx4 v4, s[28:31], s40 offen lds")
    for j in range(4):
        a(f"s_add_u32 m0, s47, {P1_X + j*1024}")
        a(f"s_add_u32 s40, s49, {j*8192}")
        a(f"buffer_load_dwordx4 v{8+(j&1)}, s[20:23], s40 offen lds")
    a("s_add_u32 s47, s47, 8192")
    a("s_add_u32 s50, s50, 1")
    a("s_cmp_lt_u32 s50, 2")
    a("s_cbranch_scc1 LD_P1")
    a("s_waitcnt vmcnt(16)")
    lds_add(a, 10, 11, 0)
    a("s_cmp_lt_u32 s50, 8")
    a("s_cbranch_scc1 LD_P1")
    a("s_waitcnt vmcnt(8)")
    lds_add(a, 10, 11, 0)
    a("s_waitcnt vmcnt(0)")
    lds_add(a, 10, 11, 0)
    stamp(a, 2)
    a("s_barrier")
    a("s_barrier")
    srd(a, 28, 12, 13, 0, 512 * 1024)
    a(f"s_add_u32 s47, s46, {L_W}")
    a("s_mov_b32 s48, s45")
    a("s_mov_b32 s49, 0")
    a.label("LD_WO")
    for j in range(4):
        a(f"s_add_u32 m0, s47, {j*1024}")
        a(f"s_add_u32 s40, s48, {j*8192}")
        a("buffer_load_dwordx4 v4, s[28:31], s40 offen lds")
        if j & 1:
            a("s_waitcnt vmcnt(0)")
    a("s_add_u32 s47, s47, 8192")
    a("s_add_u32 s48, s48, 65536")
    a("s_add_u32 s49, s49, 1")
    a("s_cmp_lt_u32 s49, 8")
    a("s_cbranch_scc1 LD_WO")
    srd(a, 32, 14, 15, WS_O, 2048 * 1024)
    a("s_barrier")
    a("s_barrier")
    stamp(a, 10)
    a.label("P3LOAD")
    a("v_lshrrev_b32 v2, 3, v1")
    a("v_lshrrev_b32 v3, 4, v1")
    a("v_xor_b32 v3, v3, v1")
    a("v_and_b32 v3, 7, v3")
    a("v_lshlrev_b32 v8, 7, v2")
    a("v_lshl_add_u32 v8, v3, 4, v8")
    a("v_xor_b32 v9, 64, v8")
    a(f"v_mov_b32 v6, 0x{L_MISC:x}")
    a("s_lshl_b32 s44, s17, 10")
    a.label("PL_LOOP")
    a("ds_read2_b32 v[12:13], v6 offset0:5 offset1:7")
    a("s_waitcnt lgkmcnt(0)")
    a("v_readfirstlane_b32 s50, v12")
    a("v_readfirstlane_b32 s51, v13")
    a("s_cmp_eq_u32 s50, 0xff")
    a("s_cbranch_scc1 PL_END")
    a("s_andn2_b32 s51, s51, s50")
    a("s_cbranch_scc0 PL_LOOP")
    a("s_ff1_i32_b32 s52, s51")
    a("s_lshl_b32 s53, 1, s52")
    a("v_mov_b32 v11, s53")
    a("s_mov_b64 exec, 1")
    a("ds_or_rtn_b32 v12, v6, v11 offset:20")
    a("s_waitcnt lgkmcnt(0)")
    a("s_mov_b64 exec, -1")
    a("v_readfirstlane_b32 s50, v12")
    a("s_and_b32 s50, s50, s53")
    a("s_cbranch_scc1 PL_LOOP")
    a("s_lshl_b32 s47, s52, 13")
    a("s_add_u32 s49, s47, s44")
    for j in range(8):
        a(f"s_add_u32 m0, s47, {L_X + j*1024}")
        a(f"s_add_u32 s40, s49, {j*1024}")
        a(f"buffer_load_dwordx4 v{8+(j&1)}, s[32:35], s40 offen lds")
    a("s_waitcnt vmcnt(0)")
    a("s_mov_b64 exec, 1")
    a("ds_or_b32 v6, v11 offset:16")
    a("s_mov_b64 exec, -1")
    a("s_branch PL_LOOP")
    a.label("PL_END")
    a("s_waitcnt lgkmcnt(0)")
    stamp(a, 12)
    stamp_flush(a)
    a("s_endpgm")

    a.label("R_AUX2")
    a("s_and_b32 s16, s16, 1")
    a("v_mov_b32 v2, 0")
    a("s_cmp_eq_u32 s16, 0")
    a("s_cbranch_scc1 AUX_NOTAG")
    a("s_cmp_lg_u32 s2, 0")
    a("s_cbranch_scc1 AUX_NOTAG")
    a("s_memrealtime s[48:49]")
    a("s_waitcnt lgkmcnt(0)")
    a("s_or_b32 s48, s48, 1")
    a("v_mov_b32 v3, s48")
    a("s_mov_b64 exec, 1")
    a("buffer_store_dword v3, v2, s[72:75], 0 offen sc1")
    a("s_mov_b64 exec, -1")
    a.label("AUX_NOTAG")
    a(f"v_mov_b32 v6, 0x{P1_FL:x}")
    a("v_mov_b64 v[8:9], 0")
    a("v_mov_b64 v[10:11], 0")
    a("ds_write_b128 v6, v[8:11]")
    a("ds_write_b128 v6, v[8:11] offset:16")
    a("s_waitcnt lgkmcnt(0)")
    a("s_barrier")
    a("s_cmp_eq_u32 s16, 0")
    a("s_cbranch_scc1 AUX_FFN0")
    get_tag(a, "AUX", 2)
    a("s_or_b32 s60, s60, 1")
    a("v_mov_b32 v3, s60")
    a("ds_write_b32 v6, v3 offset:20")
    a("v_mov_b32 v3, s60")
    a("s_lshl_b32 s40, s2, 7")
    a(f"s_add_u32 s40, s40, {WS_FLAG1}")
    a("v_and_b32 v7, 31, v1")
    a("v_lshlrev_b32 v7, 10, v7")
    a("v_and_b32 v8, 7, v1")
    a("v_lshlrev_b32 v8, 7, v8")
    a(f"s_mov_b32 s44, {WS_CLASS}")
    a("s_lshl_b32 s45, s2, 7")
    a("s_add_u32 s45, s45, s44")
    a("s_getreg_b32 s59, hwreg(HW_REG_XCC_ID)")
    stamp(a, 3)
    a(f"v_mov_b32 v11, 0x{L_SEL:x}")
    lds_wait(a, "SY", need_imm=4, off=16, two=False, vt=84)
    if "lnstamp" in EXP: stamp(a, 9)
    a("s_cmp_ge_u32 s2, 8")
    a("s_cbranch_scc1 SYNC_NC")
    poll(a, "S0", 7, [40], sleep=1)
    a("s_mov_b64 exec, 1")
    a("buffer_store_dword v3, v2, s[24:27], s45 offen sc1")
    a("s_mov_b64 exec, -1")
    a.label("SYNC_NC")
    poll(a, "S1", 8, [44], sleep=2)
    if "lnstamp" in EXP: a("s_mov_b32 s90, s61")
    a("s_cmp_lg_u32 s2, 0")
    a("s_cbranch_scc1 SYNC_NORST")
    a("s_mov_b64 exec, 1")
    a("buffer_store_dword v2, v2, s[72:75], 0 offen sc1")
    a("s_mov_b64 exec, -1")
    a.label("SYNC_NORST")
    stamp(a, 4)
    a("s_barrier")
    a("ds_write_b32 v11, v2")
    a("s_waitcnt lgkmcnt(0)")
    a("s_barrier")
    a("s_setprio 3")
    a("s_cmp_lt_u32 s2, 144")
    a("s_cbranch_scc1 SYNC_NB0")
    a("s_load_dwordx2 s[8:9], s[0:1], 72")
    a("s_sub_u32 s56, s2, 144")
    a("s_lshl_b32 s52, s56, 14")
    a(f"s_mov_b32 s53, {L_KV + 16384}")
    a("s_mov_b32 s41, 0")
    a("s_waitcnt lgkmcnt(0)")
    srd(a, 36, 8, 9, 0, 1792 * 1024)
    a.label("FFN_DMA2")
    a("s_mov_b32 m0, s53")
    a("s_add_u32 s53, s53, 1024")
    a("buffer_load_dwordx4 v5, s[36:39], s52 offen lds")
    a("s_add_u32 s52, s52, 1024")
    a("s_add_u32 s41, s41, 1")
    a(f"s_waitcnt vmcnt({FFN_THR})")
    a("s_cmp_lt_u32 s41, 16")
    a("s_cbranch_scc1 FFN_DMA2")
    a.label("SYNC_NB0")
    a("s_lshl_b32 s40, s17, 4")
    a(f"s_add_u32 s41, s40, {WS_FLAG2}")
    a("s_lshl_b32 s40, s19, 7")
    a("s_add_u32 s40, s40, s41")
    a("v_and_b32 v6, 7, v1")
    a("v_lshlrev_b32 v6, 7, v6")
    a("s_and_b32 s44, s2, 31")
    a("s_lshl_b32 s44, s44, 7")
    a(f"s_add_u32 s44, s44, {WS_FLAG1 + 4}")
    a("v_lshlrev_b32 v14, 5, v6")
    a("buffer_load_dword v15, v14, s[24:27], s44 offen sc1")
    a("s_waitcnt vmcnt(0)")
    a("v_cmp_ne_u32 vcc, s59, v15")
    a("s_cmp_eq_u64 vcc, 0")
    a("s_cselect_b32 s59, 1, 0")
    if "noxcd" in EXP: a("s_mov_b32 s59, 0")
    a(f"s_mov_b32 s44, {WS_SELG}")
    poll(a, "SEL", 2, [44], wide=True, sleep=32)
    a("v_readfirstlane_b32 s56, v21")
    a("v_readfirstlane_b32 s57, v22")
    a("v_mov_b32 v23, s59")
    a("ds_write_b128 v11, v[20:23]")
    a("s_waitcnt lgkmcnt(0)")
    a("s_cmp_lt_u32 s2, 144")
    a("s_cbranch_scc1 SYNC_NB1")
    a("s_sub_u32 s56, s2, 144")
    a("s_lshr_b32 s44, s56, 2")
    a("s_lshl_b32 s44, s44, 10")
    a(f"s_add_u32 s44, s44, {WS_FLAGA}")
    poll(a, "FA", 6, [44], sleep=8)
    a("v_lshrrev_b32 v7, 4, v1")
    a("v_mul_u32_u24 v7, 7168, v7")
    a("v_and_b32 v8, 15, v1")
    a("v_lshl_add_u32 v7, v8, 2, v7")
    a("s_lshl_b32 s44, s56, 6")
    a(f"s_add_u32 s44, s44, {WS_GP}")
    for ke in range(8):
        a(f"buffer_load_dword v{16+ke}, v7, s[24:27], s44 offen sc1")
        a(f"s_add_u32 s44, s44, {4*7168}")
    srd(a, 44, 14, 15, WS_YPART, 112 * 4096)
    a("v_lshrrev_b32 v14, 5, v1")
    a("v_lshrrev_b32 v8, 2, v1")
    a("v_and_b32 v9, 3, v8")
    a("v_lshl_add_u32 v12, v14, 3, v9")
    a("v_lshlrev_b32 v12, 10, v12")
    a("v_and_b32 v9, 16, v1")
    a("v_lshl_add_u32 v12, v9, 1, v12")
    a("v_and_b32 v9, 3, v1")
    a("v_lshl_add_u32 v12, v9, 3, v12")
    a(f"v_add_u32 v12, 0x{L_KV+16384:x}, v12")
    a("v_and_b32 v8, 1, v8")
    a("v_lshlrev_b32 v8, 5, v8")
    a("v_lshl_add_u32 v8, v14, 4, v8")
    a("v_add_u32 v8, v8, v11")
    a("v_and_b32 v9, 31, v1")
    a("v_lshl_add_u32 v13, v9, 1, v11")
    a("v_lshlrev_b32 v14, 11, v14")
    a("v_lshl_add_u32 v14, v9, 2, v14")
    a("s_lshl_b32 s52, s56, 12")
    a("s_waitcnt vmcnt(0)")
    a("v_add_f32 v16, v16, v17")
    a("v_add_f32 v18, v18, v19")
    a("v_add_f32 v20, v20, v21")
    a("v_add_f32 v22, v22, v23")
    a("v_add_f32 v16, v16, v18")
    a("v_add_f32 v20, v20, v22")
    a("v_add_f32 v16, v16, v20")
    a("v_cvt_pk_bf16_f32 v16, v16, v16")
    a("v_lshlrev_b32 v16, 16, v16")
    a("v_mov_b32 v17, v16")
    a("s_nop 1")
    a("v_permlane32_swap_b32 v16, v17")
    a("s_nop 1")
    a(f"v_mul_f32 v18, 0x{f2u(NLOG2E):08x}, v16")
    a("v_exp_f32 v18, v18")
    a("s_nop 0")
    a("v_add_f32 v18, 1.0, v18")
    a("v_rcp_f32 v18, v18")
    a("s_nop 0")
    a("v_mul_f32 v16, v16, v18")
    a("v_cvt_pk_bf16_f32 v16, v16, v16")
    a("v_lshlrev_b32 v16, 16, v16")
    a("v_mul_f32 v16, v16, v17")
    a("v_cvt_pk_bf16_f32 v16, v16, v16")
    a("ds_write_b16 v13, v16 offset:64")
    a("s_waitcnt lgkmcnt(0)")
    a("ds_read_b128 v[24:27], v8 offset:64")
    a("s_mov_b32 s53, 0")
    a.label("FFN_DOWN")
    for tl in range(4):
        a(f"ds_read_b64_tr_b16 {vr(96+4*tl,2)}, v12 offset:{64*tl}")
        a(f"ds_read_b64_tr_b16 {vr(98+4*tl,2)}, v12 offset:{64*tl+4096}")
    a("s_waitcnt lgkmcnt(0)")
    for tl in range(4):
        a(f"v_mfma_f32_32x32x16_bf16 {vr(32+16*tl,16)}, v[24:27], {vr(96+4*tl,4)}, 0")
    a("v_add_u32 v12, 256, v12")
    a("s_add_u32 s53, s53, 1")
    a("s_nop 11")
    for tl in range(4):
        a(f"buffer_store_dword v{32+16*tl}, v14, s[44:47], s52 offen offset:{128*tl} sc1")
    a("s_add_u32 s52, s52, 512")
    a("s_cmp_lt_u32 s53, 4")
    a("s_cbranch_scc1 FFN_DOWN")
    a("s_lshl_b32 s52, s56, 7")
    a(f"s_add_u32 s52, s52, {WS_FLAGF}")
    a("s_waitcnt vmcnt(0)")
    a("s_mov_b64 exec, 1")
    a("buffer_store_dword v3, v2, s[24:27], s52 offen sc1")
    a("s_mov_b64 exec, -1")
    a.label("SYNC_NB1")
    a("s_barrier")
    a(f"v_mov_b32 v11, 0x{L_MISC:x}")
    a("v_mov_b64 v[102:103], 0")
    a("ds_write_b64 v11, v[102:103] offset:16")
    a("ds_write_b64 v11, v[102:103] offset:24")
    a("ds_write_b32 v11, v102 offset:32")
    a("s_waitcnt lgkmcnt(0)")
    a("buffer_load_dword v12, v6, s[24:27], s41 offen sc1")
    a("s_barrier")
    a("s_mov_b32 s61, 0")
    a("s_mov_b32 s52, 0")
    a.label("SYNC_P")
    a("ds_read_b32 v13, v11 offset:32")
    a("s_add_u32 s61, s61, 1")
    a("s_waitcnt vmcnt(0) lgkmcnt(0)")
    a("v_cmp_eq_u32 vcc, s60, v12")
    a("v_readfirstlane_b32 s53, v13")
    a(f"s_cmp_ge_u32 s61, {SPIN_MAX}")
    a("s_cselect_b32 s51, 0xff, vcc_lo")
    a("s_and_b32 s51, s51, 0xff")
    a("s_cmp_lg_u32 s52, 0")
    a("s_cbranch_scc1 SYNC_Q")
    a("s_cmp_lt_u32 s53, 8")
    a("s_cbranch_scc1 SYNC_Q")
    stamp(a, 8)
    a("s_lshl_b32 s52, 1, s19")
    a.label("SYNC_Q")
    a("s_or_b32 s51, s51, s52")
    if PROF and "p3stamp" in EXP:
        a("s_bcnt1_i32_b32 s56, s51")
        a("s_memtime s[96:97]")
        a("s_waitcnt lgkmcnt(0)")
        for k in range(1, 8):
            a(f"s_cmp_lt_u32 s56, {k+1}")
            a(f"s_cselect_b32 s{80+k}, s96, s{80+k}")
        a("s_mov_b32 s89, s61")
    a("v_mov_b32 v12, s51")
    a("ds_write_b32 v11, v12 offset:28")
    a("s_cmp_eq_u32 s51, 0xff")
    a("s_cbranch_scc1 SYNC_X")
    a("buffer_load_dword v12, v6, s[24:27], s41 offen sc1")
    a("s_branch SYNC_P")
    a.label("SYNC_X")
    dbg_timeout(a, "SYNCP")
    a("s_waitcnt lgkmcnt(0)")
    stamp_flush(a)
    a("s_endpgm")

    a.label("AUX_FFN0")
    lds_tag(a, "F", 84)
    a("s_load_dwordx4 s[4:7], s[0:1], 56")
    a("s_load_dwordx2 s[8:9], s[0:1], 72")
    a("s_mul_i32 s54, s2, 2341")
    a("s_lshr_b32 s54, s54, 16")
    a("s_mul_i32 s55, s54, 28")
    a("s_sub_u32 s55, s2, s55")
    a("v_lshrrev_b32 v28, 3, v1")
    a("v_mul_u32_u24 v28, 3584, v28")
    a("v_lshrrev_b32 v6, 2, v1")
    a("v_and_b32 v6, 4, v6")
    a("v_xor_b32 v6, v6, v1")
    a("v_and_b32 v6, 7, v6")
    a("v_lshl_add_u32 v28, v6, 4, v28")
    a("v_lshrrev_b32 v14, 5, v1")
    a("v_lshrrev_b32 v6, 2, v1")
    a("v_and_b32 v6, 3, v6")
    a("v_lshl_add_u32 v13, v14, 3, v6")
    a("v_lshlrev_b32 v12, 10, v13")
    a("v_lshlrev_b32 v13, 7, v13")
    a("v_lshrrev_b32 v6, 1, v6")
    a("v_lshl_add_u32 v13, v6, 6, v13")
    a("v_and_b32 v6, 16, v1")
    a("v_lshlrev_b32 v6, 1, v6")
    a("v_and_b32 v7, 3, v1")
    a("v_lshl_add_u32 v6, v7, 3, v6")
    a("v_add_u32 v13, v13, v6")
    a(f"v_add_u32 v13, 0x{L_KV:x}, v13")
    a("v_xor_b32 v15, 64, v13")
    a("v_add_u32 v12, v12, v6")
    a(f"v_add_u32 v12, 0x{L_KV+16384:x}, v12")
    a("v_and_b32 v7, 4, v1")
    a("v_lshlrev_b32 v7, 8, v7")
    a("v_lshl_add_u32 v7, v14, 4, v7")
    a("v_and_b32 v4, 31, v1")
    a("s_waitcnt lgkmcnt(0)")
    srd(a, 28, 4, 5, 0, 512 * 3584)
    srd(a, 32, 6, 7, 0, 512 * 3584)
    srd(a, 36, 8, 9, 0, 1792 * 1024)
    srd(a, 44, 14, 15, WS_YPART, 112 * 4096)
    a("s_barrier")
    a("s_cmp_eq_u32 s2, 255")
    a("s_cbranch_scc1 SELECT")
    a("s_barrier")
    a("s_setprio 3")
    a.label("FFN_GO")
    a("s_cmp_ge_u32 s2, 224")
    a("s_cbranch_scc1 FFN_EXIT")
    a(f"s_mul_i32 s52, s54, {64*3584}")
    a("s_lshl_b32 s53, s55, 7")
    a("s_add_u32 s52, s52, s53")
    a(f"s_mov_b32 s53, {L_KV}")
    a("s_mov_b32 s41, 0")
    a.label("FFN_DMA")
    a("s_mov_b32 m0, s53")
    a("s_add_u32 s53, s53, 1024")
    a("buffer_load_dwordx4 v28, s[28:31], s52 offen lds")
    a("s_add_u32 m0, m0, 8192")
    a("s_add_u32 s41, s41, 1")
    a("buffer_load_dwordx4 v28, s[32:35], s52 offen lds")
    a(f"s_add_u32 s52, s52, {8*3584}")
    a(f"s_waitcnt vmcnt({FFN_THR})")
    a("s_cmp_lt_u32 s41, 8")
    a("s_cbranch_scc1 FFN_DMA")
    a(f"s_mov_b32 s40, {WS_SELG}")
    poll(a, "FSEL", 2, [40], wide=True, sleep=8)
    a("s_lshl_b32 s40, s54, 7")
    a(f"s_add_u32 s40, s40, {WS_XSEL}")
    for sx in range(4):
        a(f"buffer_load_dwordx4 {vr(16+4*sx,4)}, v7, s[24:27], s40 offen offset:{32*sx} sc1")
    a("v_mul_u32_u24 v6, 7168, v14")
    a("v_lshl_add_u32 v6, v4, 2, v6")
    a(f"s_mul_i32 s40, s54, {4*7168}")
    a("s_lshl_b32 s41, s55, 8")
    a("s_add_u32 s40, s40, s41")
    a(f"s_add_u32 s40, s40, {WS_GP}")
    a(f"s_add_u32 s41, s40, {2*7168}")
    a("s_waitcnt vmcnt(0)")
    for mat in range(2):
        for ct in range(2):
            for sx in range(4):
                a(f"ds_read_b64_tr_b16 {vr(96+16*ct+4*sx,2)}, v{13+2*ct} offset:{mat*8192+sx*2048}")
                a(f"ds_read_b64_tr_b16 {vr(98+16*ct+4*sx,2)}, v{13+2*ct} offset:{mat*8192+sx*2048+512}")
        a("s_waitcnt lgkmcnt(0)")
        for ct in range(2):
            acc = 32 + 32 * mat + 16 * ct
            for sx in range(4):
                cc = "0" if sx == 0 else vr(acc, 16)
                a(f"v_mfma_f32_32x32x16_bf16 {vr(acc,16)}, {vr(16+4*sx,4)}, {vr(96+16*ct+4*sx,4)}, {cc}")
    a("s_nop 15")
    for mat in range(2):
        for ct in range(2):
            a(f"buffer_store_dword v{32+32*mat+16*ct}, v6, s[24:27], s{40+mat} offen offset:{128*ct} sc1")
    a("s_lshl_b32 s40, s55, 3")
    a("s_add_u32 s40, s40, s54")
    a("s_lshl_b32 s40, s40, 7")
    a(f"s_add_u32 s40, s40, {WS_FLAGA}")
    a("v_mov_b32 v3, s60")
    a("s_waitcnt vmcnt(0)")
    a("s_mov_b64 exec, 1")
    a("buffer_store_dword v3, v2, s[24:27], s40 offen sc1")
    a.label("FFN_EXIT")
    stamp_flush(a)
    a("s_endpgm")

    a.label("SELECT")
    a(f"s_mov_b32 s40, {WS_TOPC}")
    a("buffer_load_dwordx4 v[64:67], v5, s[24:27], s40 offen sc1")
    a("buffer_load_dwordx4 v[68:71], v5, s[24:27], s40 offen offset:1024 sc1")
    a("s_barrier")
    a("s_setprio 3")
    a("s_waitcnt vmcnt(0)")
    for rnd in range(2):
        a("v_max3_u32 v16, v64, v65, v66")
        a("v_max3_u32 v17, v67, v68, v69")
        a("v_max3_u32 v16, v70, v71, v16")
        a("v_max_u32 v16, v16, v17")
        wave_reduce_rows(a, [16], op="v_max_u32")
        a("s_nop 0")
        a(f"v_readlane_b32 s{48+rnd}, v16, 63")
        a("s_nop 1")
        if rnd == 0:
            for i in range(8):
                a(f"v_cmp_eq_u32 vcc, s48, v{64+i}")
                a("s_nop 1")
                a(f"v_cndmask_b32 v{64+i}, v{64+i}, 0, vcc")
    for t in range(2):
        a(f"s_and_b32 s{50+t}, s{48+t}, 0xffff")
        a(f"s_sub_u32 s{50+t}, 2047, s{50+t}")
        a(f"s_lshl_b32 s52, s{50+t}, 10")
        a(f"buffer_load_dwordx4 {vr(64+4*t,4)}, v5, s[20:23], s52 offen")
        a(f"s_lshl_b32 s52, s{50+t}, 4")
        a(f"s_add_u32 s52, s52, {WS_STATS}")
        a(f"buffer_load_dwordx2 {vr(16+2*t,2)}, v2, s[24:27], s52 offen sc1")
    a("s_waitcnt vmcnt(0)")
    for t in range(2):
        for j in range(4):
            a(f"v_lshlrev_b32 v{32+8*t+2*j}, 16, v{64+4*t+j}")
            a(f"v_and_b32 v{33+8*t+2*j}, s42, v{64+4*t+j}")
        a(f"v_sub_f32 v{20+4*t}, 0, v{16+2*t}")
        a(f"v_sub_f32 v{21+4*t}, 0, v{16+2*t}")
        a(f"v_mov_b32 v{22+4*t}, v{17+2*t}")
        a(f"v_mov_b32 v{23+4*t}, v{17+2*t}")
    ln_normalize(a, [64, 68], 32, 48, [20, 24], [22, 26], 42)
    a(f"s_mov_b32 s40, {WS_XSEL}")
    a("buffer_store_dwordx4 v[64:67], v5, s[24:27], s40 offen sc1")
    a("buffer_store_dwordx4 v[68:71], v5, s[24:27], s40 offen offset:1024 sc1")
    a("v_mov_b32 v16, s60")
    a("v_mov_b32 v17, s48")
    a("v_mov_b32 v18, s49")
    a("v_mov_b32 v19, s60")
    a(f"s_mov_b32 s40, {WS_SELG}")
    a("s_waitcnt vmcnt(0)")
    a("s_mov_b64 exec, 1")
    a("buffer_store_dwordx4 v[16:19], v2, s[24:27], s40 offen sc1")
    a("s_mov_b64 exec, -1")
    a("s_branch FFN_GO")
    a.label("R_LN")

    a("s_lshl_b32 s43, s19, 3")
    a("s_add_u32 s43, s43, s17")
    a("s_lshl_b32 s44, s16, 1")
    a("s_add_u32 s44, s44, s43")
    a("s_lshl_b32 s45, s44, 10")
    NR = 2
    R = range(NR)
    XU, D = 32, 48
    STV = 96
    a(f"s_mul_i32 s40, s16, {NR*1040}")
    a(f"s_add_u32 s40, s40, {L_XN}")
    a("v_add_u32 v3, s40, v5")
    a(f"v_add_u32 v4, 0x{P1_WR:x}, v5")
    a("s_barrier")
    lds_wait(a, "LN0", need_imm=1, vt=84)
    stamp(a, 1)
    a("v_mov_b32 v104, 0")
    for i in R:
        a(f"ds_read_b128 {vr(8+4*i,4)}, v3 offset:{1040*i}")
    a(f"ds_read_b128 {vr(24,4)}, v4")
    for i in R:
        a(f"s_waitcnt lgkmcnt({NR - i})")
        for j in range(4):
            a(f"v_lshlrev_b32 v{XU+8*i+2*j}, 16, v{8+4*i+j}")
            a(f"v_and_b32 v{XU+8*i+2*j+1}, s42, v{8+4*i+j}")
    for i in R:
        a(f"v_pk_add_f32 {vr(72+2*i,2)}, {vr(XU+8*i,2)}, {vr(XU+8*i+2,2)}")
        a(f"v_pk_add_f32 {vr(80+2*i,2)}, {vr(XU+8*i+4,2)}, {vr(XU+8*i+6,2)}")
    for i in R:
        a(f"v_pk_add_f32 {vr(72+2*i,2)}, {vr(72+2*i,2)}, {vr(80+2*i,2)}")
    for i in R:
        a(f"v_add_f32 v{64+i}, v{72+2*i}, v{73+2*i}")
    wave_reduce_rows(a, [64 + i for i in R])
    a("s_nop 0")
    for i in R:
        a(f"v_readlane_b32 s{48+i}, v{64+i}, 63")
    a("v_mov_b32 v68, 0xbb000000")
    a("s_nop 1")
    for i in R:
        a(f"v_mul_f32 v{72+2*i}, s{48+i}, v68")
        a(f"v_mul_f32 v{73+2*i}, s{48+i}, v68")
    for i in R:
        for j in range(4):
            a(f"v_pk_add_f32 {vr(D+8*i+2*j,2)}, {vr(XU+8*i+2*j,2)}, {vr(72+2*i,2)}")
    for i in R:
        a(f"v_pk_mul_f32 {vr(80+2*i,2)}, {vr(D+8*i,2)}, {vr(D+8*i,2)}")
    for j in range(1, 4):
        for i in R:
            a(f"v_pk_fma_f32 {vr(80+2*i,2)}, {vr(D+8*i+2*j,2)}, {vr(D+8*i+2*j,2)}, {vr(80+2*i,2)}")
    for i in R:
        a(f"v_add_f32 v{64+i}, v{80+2*i}, v{81+2*i}")
    wave_reduce_rows(a, [64 + i for i in R])
    a("s_nop 0")
    for i in R:
        a(f"v_readlane_b32 s{52+i}, v{64+i}, 63")
    a("s_nop 1")
    for i in R:
        a(f"v_cvt_pk_bf16_f32 v{72+2*i}, v{72+2*i}, v{72+2*i}")
    for i in R:
        a(f"v_and_b32 v{73+2*i}, s42, v{72+2*i}")
        a(f"v_lshlrev_b32 v{72+2*i}, 16, v{72+2*i}")
    for i in R:
        a(f"v_mul_f32 v{64+i}, s{52+i}, -v68")
    for op in ("add", "sqrt", "rcp"):
        a("v_cvt_pk_bf16_f32 v66, v64, v65")
        a("v_lshlrev_b32 v64, 16, v66")
        a("v_and_b32 v65, s42, v66")
        for i in R:
            if op == "add":
                a(f"v_add_f32 v{64+i}, 0x{f2u(1e-5):08x}, v{64+i}")
            elif op == "sqrt":
                a(f"v_sqrt_f32 v{64+i}, v{64+i}")
            else:
                a(f"v_rcp_f32 v{80+2*i}, v{64+i}")
        if op == "sqrt":
            a("s_nop 0")
    a("s_nop 1")
    for i in R:
        a(f"v_mov_b32 v{81+2*i}, v{80+2*i}")
    ln_normalize(a, [8, 12], XU, D, [72, 74], [80, 82], 42)
    a("s_waitcnt lgkmcnt(0)")
    for i in R:
        a(f"v_mov_b32 v{64+i}, 0")
    for j in range(4):
        for i in R:
            a(f"v_dot2c_f32_bf16 v{64+i}, v{8+4*i+j}, v{24+j}")
    for i in R:
        a(f"v_sub_f32 v{STV+4*i}, 0, v{72+2*i}")
        a(f"v_mov_b32 v{STV+4*i+1}, v{80+2*i}")
    wave_reduce_rows(a, [64 + i for i in R])
    a("v_cvt_pk_bf16_f32 v66, v64, v65")
    a("v_lshlrev_b32 v64, 16, v66")
    a("v_and_b32 v65, s42, v66")
    for i in R:
        a(f"v_ashrrev_i32 v{68+i}, 31, v{64+i}")
    for i in R:
        a(f"v_or_b32 v{68+i}, 0x80000000, v{68+i}")
    for i in R:
        a(f"v_xor_b32 v{64+i}, v{64+i}, v{68+i}")
        a(f"s_sub_u32 s{48+i}, {2047-i}, s44")
    for i in R:
        a(f"v_and_b32 v{64+i}, s42, v{64+i}")
    for i in R:
        a(f"v_or_b32 v{64+i}, s{48+i}, v{64+i}")
    a("s_lshl_b32 s40, s16, 3")
    a(f"s_add_u32 s40, s40, {L_KEY}")
    a("v_mov_b32 v4, s40")
    a("v_cmp_eq_u32 vcc, 63, v1")
    for i in R:
        a(f"ds_write_b128 v3, {vr(8+4*i,4)} offset:{1040*i}")
    a("s_and_saveexec_b64 s[56:57], vcc")
    a("ds_write_b64 v4, v[64:65]")
    a("s_mov_b64 exec, s[56:57]")
    a("v_and_b32 v3, 15, v1")
    a("v_lshrrev_b32 v4, 4, v1")
    a("s_waitcnt lgkmcnt(0)")
    a("v_mov_b32 v6, 1")
    lds_add(a, 86, 6, 12)
    stamp(a, 2)
    lds_tag(a, "LN", 84)
    for i in R:
        a(f"v_mov_b32 v{STV+4*i+2}, s60")
        a(f"v_mov_b32 v{STV+4*i+3}, s60")
    a("s_lshl_b32 s40, s44, 4")
    a(f"s_add_u32 s40, s40, {WS_STATS}")
    a("s_mov_b64 exec, 1")
    for i in R:
        a(f"buffer_store_dwordx4 {vr(STV+4*i,4)}, v104, s[24:27], s40 offen offset:{16*i} sc1")
    a("s_mov_b64 exec, -1")
    lds_wait(a, "LN1", need_imm=4, off=12, two=False, vt=84)
    lds_wait(a, "LN2", need_imm=2, vt=84)
    if "lnstamp" in EXP: stamp(a, 9)
    a("s_cmp_ge_u32 s16, 2")
    a("s_cbranch_scc1 LN_MISC")
    a("v_and_b32 v6, 7, v1")
    a("v_mul_u32_u24 v6, 1040, v6")
    a("v_lshl_add_u32 v6, v4, 4, v6")
    a(f"v_add_u32 v6, {L_XN}, v6")
    a("v_lshlrev_b32 v7, 8, v4")
    a("v_lshl_add_u32 v7, v3, 3, v7")
    a("s_lshl_b32 s40, s16, 14")
    a(f"s_add_u32 s40, s40, {P1_KV}")
    a("v_add_u32 v7, s40, v7")
    a("s_cmp_eq_u32 s16, 1")
    a("s_cbranch_scc1 LN_V")
    for part in ("K", "V"):
        if part == "V":
            a.label("LN_V")
        for half in range(2):
            for s in range(8 * half, 8 * half + 8):
                a(f"ds_read_b128 {vr(32+4*(s&7),4)}, v6 offset:{64*s}")
                a(f"ds_read_b64_tr_b16 {vr(64+4*(s&7),2)}, v7 offset:{1024*s}")
                a(f"ds_read_b64_tr_b16 {vr(64+4*(s&7)+2,2)}, v7 offset:{1024*s+128}")
            for s in range(8 * half, 8 * half + 8):
                k = s & 7
                if k in (0, 4):
                    a(f"s_waitcnt lgkmcnt({12 if k == 0 else 0})")
                cc = "0" if s == 0 else vr(8, 4)
                if part == "K":
                    a(f"v_mfma_f32_16x16x32_bf16 {vr(8,4)}, {vr(64+4*k,4)}, {vr(32+4*k,4)}, {cc}")
                else:
                    a(f"v_mfma_f32_16x16x32_bf16 {vr(8,4)}, {vr(32+4*k,4)}, {vr(64+4*k,4)}, {cc}")
            a("s_nop 7")
        if part == "K":
            a("v_lshrrev_b32 v7, 1, v4")
            a("v_lshl_add_u32 v7, v7, 5, v3")
            a("v_lshlrev_b32 v7, 4, v7")
            a("v_and_b32 v14, 1, v4")
            a("v_lshl_add_u32 v7, v14, 3, v7")
            a("s_lshr_b32 s40, s43, 5")
            a("s_lshl_b32 s40, s40, 10")
            a("s_and_b32 s41, s43, 31")
            a("s_lshl_b32 s41, s41, 4")
            a("s_add_u32 s40, s40, s41")
            a("v_cmp_gt_u32 vcc, 8, v3")
        else:
            a("v_and_b32 v7, 3, v3")
            a("v_and_b32 v14, 4, v3")
            a("v_lshl_add_u32 v7, v14, 1, v7")
            a("v_lshrrev_b32 v14, 3, v3")
            a("v_lshl_add_u32 v7, v14, 2, v7")
            a("v_lshlrev_b32 v7, 4, v7")
            a("v_lshl_add_u32 v7, v4, 3, v7")
            a("s_lshr_b32 s40, s43, 4")
            a("s_lshl_b32 s40, s40, 10")
            a("s_and_b32 s41, s43, 8")
            a("s_lshl_b32 s41, s41, 6")
            a("s_add_u32 s40, s40, s41")
            a(f"s_add_u32 s40, s40, {WS_VFRAG}")
            a("v_cmp_gt_u32 vcc, 32, v1")
        a("v_cvt_pk_bf16_f32 v12, v8, v9")
        a("v_cvt_pk_bf16_f32 v13, v10, v11")
        a("s_and_saveexec_b64 s[56:57], vcc")
        a("buffer_store_dwordx2 v[12:13], v7, s[24:27], s40 offen sc1")
        a("s_mov_b64 exec, s[56:57]")
        if "lnstamp" in EXP: stamp(a, 10)
        a("s_branch LN_DONE")
    a.label("LN_MISC")
    a("s_cmp_eq_u32 s16, 2")
    a("s_cbranch_scc1 LN_TOP")
    a("v_add_u32 v6, 16, v1")
    a("v_lshlrev_b32 v6, 4, v6")
    a("v_and_b32 v7, 11, v1")
    a("v_mov_b32 v8, 0x3f803f80")
    a("v_cmp_eq_u32 vcc, 0, v7")
    a("s_lshr_b32 s40, s43, 4")
    a("s_lshl_b32 s40, s40, 10")
    a("v_cndmask_b32 v8, 0, v8, vcc")
    a("v_mov_b32 v9, v8")
    a("v_mov_b32 v10, v8")
    a("v_mov_b32 v11, v8")
    a("s_and_b32 s41, s43, 8")
    a("s_lshl_b32 s41, s41, 6")
    a("s_add_u32 s40, s40, s41")
    a(f"s_add_u32 s40, s40, {WS_VFRAG}")
    a("v_cmp_gt_u32 vcc, 16, v1")
    a("s_and_saveexec_b64 s[56:57], vcc")
    a("buffer_store_dwordx4 v[8:11], v6, s[24:27], s40 offen sc1")
    a("s_mov_b64 exec, s[56:57]")
    a("s_branch LN_MISC2")
    a.label("LN_TOP")
    a("v_and_b32 v3, 7, v1")
    a("v_lshlrev_b32 v3, 2, v3")
    a(f"v_add_u32 v3, 0x{L_KEY:x}, v3")
    a("ds_read_b32 v8, v3")
    a("s_waitcnt lgkmcnt(0)")
    a("v_mov_b32 v10, v8")
    wave_reduce_rows(a, [10], op="v_max_u32", nsteps=3)
    a("v_cmp_eq_u32 vcc, v8, v10")
    a("s_nop 1")
    a("v_cndmask_b32 v11, v8, 0, vcc")
    wave_reduce_rows(a, [11], op="v_max_u32", nsteps=3)
    a("s_lshl_b32 s40, s2, 3")
    a(f"s_add_u32 s40, s40, {WS_TOPC}")
    a("v_mov_b32 v3, 0")
    a("v_cmp_eq_u32 vcc, 0, v1")
    a("s_and_saveexec_b64 s[56:57], vcc")
    a("buffer_store_dwordx2 v[10:11], v3, s[24:27], s40 offen sc1")
    a("s_mov_b64 exec, s[56:57]")
    a.label("LN_MISC2")
    a.label("LN_DONE")
    a("s_getreg_b32 s59, hwreg(HW_REG_XCC_ID)")
    a("v_mov_b32 v8, s60")
    a("v_mov_b32 v9, s59")
    a(f"v_mov_b32 v6, 0x{P1_FL:x}")
    a("v_mov_b32 v7, 1")
    a("s_lshl_b32 s40, s2, 7")
    a(f"s_add_u32 s40, s40, {WS_FLAG1}")
    a("s_waitcnt vmcnt(0) lgkmcnt(0)")
    a("s_mov_b64 exec, 1")
    a("ds_add_rtn_u32 v7, v6, v7 offset:16")
    a("s_waitcnt lgkmcnt(0)")
    a("v_readfirstlane_b32 s41, v7")
    a("s_cmp_lg_u32 s41, 3")
    a("s_cbranch_scc1 LN_NOFLAG")
    a("buffer_store_dwordx2 v[8:9], v104, s[24:27], s40 offen sc1")
    a.label("LN_NOFLAG")
    a("s_mov_b64 exec, -1")
    stamp(a, 3)
    a("s_load_dwordx2 s[68:69], s[0:1], 80")
    a("s_lshr_b32 s64, s16, 1")
    a("s_lshl_b32 s64, s64, 5")
    a("s_add_u32 s64, s64, s17")
    a("s_and_b32 s40, s16, 1")
    a("s_lshl_b32 s40, s40, 5")
    a("s_add_u32 s40, s40, s18")
    a("s_lshl_b32 s65, s64, 10")
    a("s_lshl_b32 s40, s40, 1")
    a("s_add_u32 s65, s65, s40")
    a("s_add_u32 s66, s65, 16384")
    p3_pre(a, "F", *PRE_A, front=True)
    if "lnstamp" in EXP: stamp(a, 11)
    a("s_mov_b32 s46, 0")
    a("s_branch ATT")

    a.label("R_GEMM")
    gemm_addr(a, P1_W)
    stamp(a, 1)
    gemm_loop_p1(a)
    stamp(a, 3)
    lds_tag(a, "G", 84)
    a("s_lshr_b32 s40, s16, 1")
    a("s_lshl_b32 s40, s40, 5")
    a("s_add_u32 s40, s40, s17")
    a("s_lshl_b32 s40, s40, 4")
    a(f"s_add_u32 s40, s40, {WS_STATS}")
    a("v_and_b32 v2, 31, v1")
    a("v_lshlrev_b32 v2, 4, v2")
    a("s_lshl_b32 s41, s16, 11")
    a(f"s_add_u32 s41, s41, {L_Q}")
    a("v_lshlrev_b32 v5, 4, v1")
    a("v_add_u32 v3, s41, v5")
    poll(a, "ST", 2, [40], wide=True, cmpw=(22, 23))
    lds_wait(a, "GQ", need_imm=4, off=16, two=False, vt=84)
    a(f"v_mul_f32 v6, 0x{f2u(SCALE):08x}, v21")
    a("v_mul_f32 v7, v20, v6")
    for i in range(16):
        a(f"v_mul_f32 v{ACC+i}, v{ACC+i}, v6")
    for i in range(16):
        a(f"v_fma_f32 v{ACC+i}, -v{ACC2+i}, v7, v{ACC+i}")
    for i in range(8):
        a(f"v_cvt_pk_bf16_f32 v{FR+i}, v{ACC+2*i}, v{ACC+2*i+1}")
    a(f"ds_write_b128 v3, {vr(FR,4)}")
    a(f"ds_write_b128 v3, {vr(FR+4,4)} offset:1024")
    if "lnstamp" in EXP: stamp(a, 11)
    a("s_mov_b32 s46, 1")

    a.label("ATT")
    a("s_lshl_b32 s44, s16, 14")
    a("s_lshl_b32 s45, s16, 15")
    a(f"s_add_u32 s45, s45, {WS_VFRAG}")
    a(f"v_mov_b32 v{IDX}, 0xdddddddd")
    for i in range(0, 64, 2):
        a(f"v_mov_b64 {vr(O0+i,2)}, 0")
    for i in range(0, 4, 2):
        a(f"v_mov_b64 {vr(VB+12+i,2)}, 0")
    for i in range(0, 8, 2):
        a(f"v_mov_b64 {vr(S0+24+i,2)}, 0")
    a("s_lshl_b32 s40, s46, 12")
    a(f"s_add_u32 s40, s40, {L_Q}")
    for i in range(4):
        a(f"s_add_u32 s41, s16, {i}")
        a("s_and_b32 s41, s41, 3")
        a("s_lshl_b32 s41, s41, 10")
        a("s_add_u32 s41, s41, s40")
        a(f"v_add_u32 v{10+i}, s41, v5")
    a("s_waitcnt lgkmcnt(0)")
    a("s_barrier")
    stamp(a, 4)
    a(f"buffer_load_dwordx4 {vr(KB,4)}, v5, s[24:27], s44 offen")
    a(f"buffer_load_dwordx4 {vr(VB,4)}, v5, s[24:27], s45 offen")
    a(f"buffer_load_dwordx4 {vr(VB+4,4)}, v5, s[24:27], s45 offen offset:1024")
    a(f"buffer_load_dwordx4 {vr(KB+4,4)}, v5, s[24:27], s44 offen offset:1024")
    a(f"buffer_load_dwordx4 {vr(VB+8,4)}, v5, s[24:27], s45 offen offset:2048")
    a("s_add_u32 s44, s44, 2048")
    a("s_add_u32 s45, s45, 3072")
    for i in range(4):
        a(f"ds_read_b128 {vr(Q0+4*i,4)}, v{10+i}")
    a("s_waitcnt lgkmcnt(0)")
    a("s_barrier")
    a("s_waitcnt vmcnt(4)")
    a(f"v_mfma_f32_32x32x16_bf16 {vr(S0,16)}, {vr(KB,4)}, {vr(Q0,4)}, 0")
    a("s_mov_b32 s47, 0")
    stamp(a, 5)
    a("s_nop 15")
    a.raw(".p2align 6")
    a.label("ATT_LOOP")
    for X in range(8):
        t = X >> 2
        c = X & 3
        Sx = S0 + 16 * (X & 1)
        Sp = S0 + 16 * ((X + 1) & 1)
        cp = (c - 1) & 3
        tp = ((X - 1) >> 2) & 1
        cn = (c + 1) & 3
        tn = ((X + 1) >> 2) & 1
        for e in range(16):
            a(f"v_exp_f32 v{Sx+e}, v{Sx+e}")
            if e == 1:
                if c == 1:
                    a("s_waitcnt vmcnt(3)")
                a(f"v_smfmac_f32_32x32x32_bf16 {vr(O0+16*cp,16)}, {vr(VB+8*tp+4,4)}, {vr(Sp+8,8)}, v{IDX}")
                if c == 0:
                    a(f"buffer_load_dwordx4 {vr(VB+8*tp+4,4)}, v5, s[24:27], s45 offen")
                    a("s_add_u32 s45, s45, 1024")
            if e == 4:
                if c == 3:
                    a("s_waitcnt vmcnt(3)")
                a(f"v_mfma_f32_32x32x16_bf16 {vr(Sp,16)}, {vr(KB+4*tn,4)}, {vr(Q0+4*cn,4)}, 0")
                if c == 2:
                    a(f"buffer_load_dwordx4 {vr(KB+4*t,4)}, v5, s[24:27], s44 offen")
                    a("s_add_u32 s44, s44, 1024")
            if e == 14:
                if c == 0:
                    a("s_waitcnt vmcnt(4)")
                a(f"v_smfmac_f32_32x32x32_bf16 {vr(O0+16*c,16)}, {vr(VB+8*t,4)}, {vr(Sx,8)}, v{IDX}")
                if c == 3:
                    a(f"buffer_load_dwordx4 {vr(VB+8*t,4)}, v5, s[24:27], s45 offen")
                    a("s_add_u32 s45, s45, 1024")
    a("s_add_u32 s47, s47, 1")
    a("s_cmp_lt_u32 s47, 8")
    a("s_cbranch_scc1 ATT_LOOP")
    stamp(a, 6)
    a("s_nop 1")
    a(f"v_smfmac_f32_32x32x32_bf16 {vr(O0+48,16)}, {vr(VB+8+4,4)}, {vr(S0+16+8,8)}, v{IDX}")
    a("s_mul_i32 s40, s46, 27648")
    a("v_lshlrev_b32 v9, 2, v1")
    for i in range(1, 4):
        a(f"s_add_u32 s41, s16, {i}")
        a("s_and_b32 s41, s41, 3")
        a("s_mul_i32 s41, s41, 6912")
        a("s_add_u32 s41, s41, s40")
        a(f"v_add_u32 v{9+i}, s41, v5")
        a(f"v_add_u32 v{12+i}, s41, v9")
    a("s_mul_i32 s41, s16, 6912")
    a("s_add_u32 s41, s41, s40")
    a("v_add_u32 v6, s41, v5")
    a("v_add_u32 v7, s41, v9")
    for i in range(1, 4):
        a(f"ds_write_b128 v{9+i}, {vr(O0+16*i,4)} offset:{2304*(i-1)}")
        a(f"ds_write_b128 v{9+i}, {vr(O0+16*i+4,4)} offset:{2304*(i-1)+1024}")
        a(f"ds_write_b32 v{12+i}, v{O0+16*i+8} offset:{2304*(i-1)+2048}")
    srd(a, 32, 14, 15, WS_O, 2048 * 1024)
    a("s_mov_b32 s67, 0")
    a("s_waitcnt lgkmcnt(0)")
    a("s_cmp_eq_u32 s46, 1")
    a("s_cbranch_scc1 ATT_BR")
    a(f"v_mov_b32 v2, 0x{L_SEL:x}")
    a.label("SELW")
    a("ds_read_b128 v[48:51], v2")
    a("s_waitcnt vmcnt(0) lgkmcnt(0)")
    a("v_readfirstlane_b32 s40, v48")
    a("v_readfirstlane_b32 s76, v49")
    a("v_readfirstlane_b32 s77, v50")
    a("s_cmp_eq_u32 s40, 0")
    a("s_cbranch_scc1 SELW")
    for t in range(2):
        a(f"s_and_b32 s59, s{76+t}, 0xffff")
        a("s_sub_u32 s59, 2047, s59")
        a("s_sub_u32 s59, s59, s64")
        a("s_cmp_lt_u32 s59, 32")
        a("s_cbranch_scc1 ATT_ROUTED")
    a("s_waitcnt lgkmcnt(0)")
    a.label("ATT_BR")
    a("s_barrier")
    stamp(a, 7)
    Rr = O0
    for i in range(1, 4):
        a(f"ds_read_b128 {vr(Rr+16*i,4)}, v6 offset:{2304*(i-1)}")
        a(f"ds_read_b128 {vr(Rr+16*i+4,4)}, v6 offset:{2304*(i-1)+1024}")
        a(f"ds_read_b32 v{Rr+16*i+8}, v7 offset:{2304*(i-1)+2048}")
    a(f"v_mov_b32 v2, 0x{L_SEL:x}")
    a("ds_read_b32 v9, v2 offset:12")
    a("s_mov_b32 s48, 0x7f000000")
    a("s_mov_b32 s49, 0x1f800000")
    a("s_mov_b32 s50, 0x5f800000")
    a("v_and_b32 v2, 31, v1")
    a("v_lshrrev_b32 v3, 5, v1")
    a("v_mul_u32_u24 v4, 144, v2")
    a("v_lshl_add_u32 v4, v3, 4, v4")
    a("s_mul_i32 s40, s46, 4608")
    a("s_lshl_b32 s41, s16, 5")
    a("s_add_u32 s40, s40, s41")
    a(f"s_add_u32 s40, s40, {L_KV}")
    a("v_add_u32 v4, s40, v4")
    a("v_lshrrev_b32 v2, 3, v1")
    a("v_and_b32 v3, 7, v1")
    a("v_mul_u32_u24 v15, 144, v2")
    a("v_lshl_add_u32 v15, v3, 4, v15")
    a("s_mul_i32 s40, s78, 1152")
    a(f"s_add_u32 s40, s40, {L_KV - 4*1152}")
    a("v_add_u32 v15, s40, v15")
    a("v_mov_b32 v2, v5")
    a("s_lshl_b32 s40, s78, 10")
    a("s_lshl_b32 s41, s17, 10")
    a("s_add_u32 s40, s40, s41")
    a("s_lshl_b32 s41, s19, 13")
    a("s_add_u32 s40, s40, s41")
    a("s_sub_u32 s51, s40, 4096")
    for i in range(1, 4):
        a(f"s_waitcnt lgkmcnt({3*(3-i)+1})")
        for j in range(0, 8, 2):
            a(f"v_pk_add_f32 {vr(Rr+j,2)}, {vr(Rr+j,2)}, {vr(Rr+16*i+j,2)}")
        a(f"v_add_f32 v{Rr+8}, v{Rr+8}, v{Rr+16*i+8}")
    a("s_waitcnt lgkmcnt(0)")
    a("v_readfirstlane_b32 s57, v9")
    a(f"v_add_f32 v11, abs(v{Rr}), abs(v{Rr+1})")
    a(f"v_add_f32 v12, abs(v{Rr+2}), abs(v{Rr+3})")
    a(f"v_add_f32 v13, abs(v{Rr+4}), abs(v{Rr+5})")
    a(f"v_add_f32 v14, abs(v{Rr+6}), abs(v{Rr+7})")
    a("v_add_f32 v11, v11, v12")
    a("v_add_f32 v13, v13, v14")
    a("v_add_f32 v11, v11, v13")
    a("v_cmp_gt_f32 s[52:53], s48, v11")
    a(f"v_cmp_le_f32 s[54:55], s49, v{Rr+8}")
    a(f"v_cmp_ge_f32 vcc, s50, v{Rr+8}")
    a("s_and_b64 s[52:53], s[52:53], s[54:55]")
    a("s_and_b64 s[52:53], s[52:53], vcc")
    a("s_cmp_eq_u64 s[52:53], -1")
    if "forceslow" in EXP: a("s_branch ATT_SLOW")
    a("s_cbranch_scc0 ATT_SLOW")
    a.label("ATT_FIN")
    a(f"v_rcp_f32 v11, v{Rr+8}")
    a("s_nop 0")
    for i in range(8):
        a(f"v_mul_f32 v{Rr+i}, v{Rr+i}, v11")
    for i in range(4):
        a(f"v_cvt_pk_bf16_f32 v{Rr+12+i}, v{Rr+2*i}, v{Rr+2*i+1}")
    a(f"ds_write_b128 v4, {vr(Rr+12,4)}")
    a("s_waitcnt lgkmcnt(0)")
    a("s_barrier")
    a(f"ds_read_b128 {vr(Rr+12,4)}, v15")
    a("s_waitcnt lgkmcnt(0)")
    a("s_cmp_eq_u32 s57, 1")
    a("s_cbranch_scc1 ATT_ST1")
    a(f"buffer_store_dwordx4 {vr(Rr+12,4)}, v2, s[32:35], s51 offen sc1")
    a("s_branch ATT_ST2")
    a.label("ATT_ST1")
    a(f"buffer_store_dwordx4 {vr(Rr+12,4)}, v2, s[32:35], s51 offen")
    a.label("ATT_ST2")
    a(f"v_mov_b32 v4, 0x{L_MISC:x}")
    a("v_mov_b32 v3, 1")
    a("s_lshl_b32 s40, s17, 4")
    a("s_lshl_b32 s41, s19, 7")
    a("s_add_u32 s40, s40, s41")
    a(f"s_add_u32 s40, s40, {WS_FLAG2}")
    a("v_mov_b32 v9, s60")
    a("v_mov_b32 v10, 0")
    a("s_waitcnt vmcnt(0)")
    a("s_mov_b64 exec, 1")
    a("ds_add_rtn_u32 v3, v4, v3 offset:32")
    a("s_waitcnt lgkmcnt(0)")
    a("v_readfirstlane_b32 s41, v3")
    a("s_cmp_lg_u32 s41, 7")
    a("s_cbranch_scc1 ATT_NOFLAG")
    a("s_cmp_eq_u32 s57, 1")
    a("s_cbranch_scc1 ATT_FL1")
    a("buffer_store_dword v9, v10, s[24:27], s40 offen sc1")
    a("s_branch ATT_NOFLAG")
    a.label("ATT_FL1")
    a("buffer_store_dword v9, v10, s[24:27], s40 offen")
    a.label("ATT_NOFLAG")
    a("s_mov_b64 exec, -1")
    stamp(a, 8)
    a("s_cmp_eq_u32 s46, 0")
    a("s_cbranch_scc1 P3")
    a("s_branch P3LOAD")
    a.label("L_END")
    a("s_endpgm")

    a.label("ATT_SLOW")
    a("s_mov_b32 s67, 1")
    a("v_mov_b32 v11, 0xff7fffff")
    a("s_mov_b32 s44, 0")
    a.label("ATT_SLOW1")
    a(f"buffer_load_dwordx4 {vr(KB,4)}, v5, s[24:27], s44 offen")
    a("s_waitcnt vmcnt(0)")
    a(f"v_mfma_f32_32x32x16_bf16 {vr(S0,16)}, {vr(KB,4)}, {vr(Q0,4)}, 0")
    a("s_nop 15")
    a("s_nop 3")
    for i in range(0, 16, 2):
        a(f"v_max3_f32 v11, v{S0+i}, v{S0+i+1}, v11")
    a("s_add_u32 s44, s44, 1024")
    a("s_cmp_lt_u32 s44, 0x10000")
    a("s_cbranch_scc1 ATT_SLOW1")
    a("v_mov_b32 v9, v11")
    a("s_nop 1")
    a("v_permlane32_swap_b32 v11, v9")
    a("s_nop 1")
    a("v_max_f32 v11, v11, v9")
    for i in range(16):
        a(f"v_sub_f32 v{S0+16+i}, 0, v11")
    for i in range(0, 16, 2):
        a(f"v_mov_b64 {vr(Rr+i,2)}, 0")
    a("s_mov_b32 s44, 0")
    a(f"s_mov_b32 s45, {WS_VFRAG}")
    a.label("ATT_SLOW2")
    a(f"buffer_load_dwordx4 {vr(KB,4)}, v5, s[24:27], s44 offen")
    a(f"buffer_load_dwordx4 {vr(VB,4)}, v5, s[24:27], s45 offen")
    a(f"buffer_load_dwordx4 {vr(VB+4,4)}, v5, s[24:27], s45 offen offset:1024")
    a("s_waitcnt vmcnt(0)")
    a(f"v_mfma_f32_32x32x16_bf16 {vr(S0,16)}, {vr(KB,4)}, {vr(Q0,4)}, {vr(S0+16,16)}")
    a("s_nop 15")
    a("s_nop 3")
    for e in range(16):
        a(f"v_exp_f32 v{S0+e}, v{S0+e}")
    a("s_nop 1")
    a(f"v_smfmac_f32_32x32x32_bf16 {vr(Rr,16)}, {vr(VB,4)}, {vr(S0,8)}, v{IDX}")
    a(f"v_smfmac_f32_32x32x32_bf16 {vr(Rr,16)}, {vr(VB+4,4)}, {vr(S0+8,8)}, v{IDX}")
    a("s_nop 15")
    a("s_nop 3")
    a("s_add_u32 s44, s44, 1024")
    a("s_add_u32 s45, s45, 2048")
    a("s_cmp_lt_u32 s44, 0x10000")
    a("s_cbranch_scc1 ATT_SLOW2")
    a("s_branch ATT_FIN")

    a.label("P3")
    a("s_mov_b32 s70, 0x200000")
    a("s_mov_b32 s71, 0x00020000")
    a(f"v_lshrrev_b32 v{PV}, 2, v1")
    a(f"v_and_b32 v{PV+1}, 3, v1")
    a(f"v_lshlrev_b32 v{PV+2}, 10, v{PV}")
    a(f"v_lshl_add_u32 v{PV+2}, v{PV+1}, 4, v{PV+2}")
    for i in range(8):
        a(f"v_lshlrev_b32 v{PG+2*i}, 16, v{GPK+i}")
        a(f"v_and_b32 v{PG+2*i+1}, s42, v{GPK+i}")
        a(f"v_lshlrev_b32 v{PXF+2*i}, 16, v{XPK+i}")
        a(f"v_and_b32 v{PXF+2*i+1}, s42, v{XPK+i}")
    gemm_addr(a, L_W)
    a("s_mul_i32 s40, s16, 4352")
    a(f"s_add_u32 s40, s40, {L_KV + 13312}")
    a("v_lshlrev_b32 v14, 4, v1")
    a("v_add_u32 v14, s40, v14")
    a(f"v_lshrrev_b32 v15, 1, v{PV+1}")
    a("v_mul_u32_u24 v15, 2176, v15")
    a(f"v_and_b32 v2, 1, v{PV+1}")
    a("v_lshl_add_u32 v15, v2, 9, v15")
    a(f"v_lshl_add_u32 v15, v{PV}, 4, v15")
    a("v_add_u32 v15, s40, v15")
    for i in range(0, 16, 2):
        a(f"v_mov_b64 {vr(ACC+i,2)}, 0")
    a("s_mov_b32 s41, 0")
    if "lnstamp" not in EXP: stamp(a, 9)
    a(f"v_mov_b32 v4, 0x{L_MISC:x}")
    a.label("P3_LOOP")
    a("ds_read_b32 v2, v4 offset:16")
    a("s_waitcnt lgkmcnt(0)")
    a("v_readfirstlane_b32 s40, v2")
    a("s_andn2_b32 s40, s40, s41")
    a("s_cbranch_scc0 P3_LOOP")
    FB = [16, 64]

    def pick(ab):
        a("s_ff1_i32_b32 s43, s40")
        a("s_bitset1_b32 s41, s43")
        a("s_bitset0_b32 s40, s43")
        a("s_lshl_b32 s43, s43, 13")
        a(f"v_add_u32 v{ab}, s43, v6")
        for i in range(4):
            a(f"v_add_u32 v{ab+1+i}, s43, v{10+i}")

    def rd(buf, ab):
        for sx in range(4):
            a(f"ds_read_b64_tr_b16 {vr(FB[buf]+8*sx,2)}, v{ab} offset:{sx*2048}")
            a(f"ds_read_b64_tr_b16 {vr(FB[buf]+8*sx+2,2)}, v{ab} offset:{sx*2048+512}")
            a(f"ds_read_b128 {vr(FB[buf]+8*sx+4,4)}, v{ab+1+sx}")

    def mm(buf, base):
        for sx in range(4):
            a(f"s_waitcnt lgkmcnt({base+3*(3-sx)})")
            a(f"v_mfma_f32_32x32x16_bf16 {vr(ACC,16)}, {vr(FB[buf]+8*sx,4)}, {vr(FB[buf]+8*sx+4,4)}, {vr(ACC,16)}")

    a.label("P3_CH")
    pick(128)
    rd(0, 128)
    a("s_cmp_eq_u32 s40, 0")
    a("s_cbranch_scc1 P3_ONE")
    pick(134)
    a("s_waitcnt lgkmcnt(3)")
    rd(1, 134)
    a("s_waitcnt lgkmcnt(12)")
    for sx in range(4):
        a(f"v_mfma_f32_32x32x16_bf16 {vr(ACC,16)}, {vr(FB[0]+8*sx,4)}, {vr(FB[0]+8*sx+4,4)}, {vr(ACC,16)}")
    mm(1, 0)
    a("s_branch P3_NXT")
    a.label("P3_ONE")
    mm(0, 0)
    a.label("P3_NXT")
    a("s_cmp_lg_u32 s40, 0")
    a("s_cbranch_scc1 P3_CH")
    a("s_cmp_lg_u32 s41, 0xff")
    a("s_cbranch_scc1 P3_LOOP")
    a("s_nop 15")
    stamp(a, 12)
    for ch in range(4):
        a(f"ds_write_b128 v14, {vr(ACC+4*ch,4)} offset:{1088*ch}")
    a("s_waitcnt lgkmcnt(0)")
    for j in range(2):
        for e in range(2):
            a(f"ds_read_b128 {vr(FR+8*j+4*e,4)}, v15 offset:{j*256+e*1088}")
    a("s_waitcnt lgkmcnt(0)")
    for i in range(8):
        a(f"v_pk_fma_f32 {vr(FR+2*i,2)}, {vr(FR+2*i,2)}, {vr(PG+2*i,2)}, {vr(PXF+2*i,2)}")
    for i in range(8):
        a(f"v_cvt_pk_bf16_f32 v{64+i}, v{FR+2*i}, v{FR+2*i+1}")
    a(f"buffer_store_dwordx4 {vr(64,4)}, v{PV+2}, s[68:71], s65 offen")
    a(f"buffer_store_dwordx4 {vr(68,4)}, v{PV+2}, s[68:71], s66 offen")
    stamp_flush(a)
    a("s_endpgm")
    a.label("ATT_ROUTED")
    p3_pre(a, "A", *PRE_A)
    a("s_branch ATT_BR")
    p3_upd(a, "A", *PRE_A)


def main(out):
    a = Asm()
    hdr = f"""; {NAME}: fused LN+QKV | MQA attention + routed FFN | out-proj + gate   (generated by gen/gen2.py)
; @launch grid=(256,1,1) block=(768,1,1) lds=163840
.amdgcn_target "amdgcn-amd-amdhsa--gfx950"
.text
"""
    kernel(a)
    vg = 168
    txt = hdr + a.text() + f""".section .rodata,"a"
.p2align 6
.amdhsa_kernel {NAME}_kernel
  .amdhsa_next_free_vgpr {vg}
  .amdhsa_next_free_sgpr {102 if PROF else 80}
  .amdhsa_accum_offset {vg}
  .amdhsa_group_segment_fixed_size 0
  .amdhsa_kernarg_size 104
  .amdhsa_user_sgpr_count 2
  .amdhsa_user_sgpr_kernarg_segment_ptr 1
  .amdhsa_system_sgpr_workgroup_id_x 1
.end_amdhsa_kernel
"""
    open(out, "w").write(txt)
    if POLL_IDS: print(POLL_IDS)


if __name__ == "__main__":
    PROF = os.environ.get("PROF", "0") == "1"
    main(sys.argv[1] if len(sys.argv) > 1 else f"fused.s")
```

```python
import sys, os, struct

NAME = "recurrent_scan__grouped_kv_mqa__moe_arch_mod__prompt"

WS_KMAT = 0x0
WS_VFRAG = 0x10000
WS_STATS = 0x30000
WS_TOPC = 0x38000
WS_SELG = 0x39000
WS_CLASS = 0x3A000
WS_XSEL = 0x39400
WS_FLAG1 = 0x40000
WS_FLAG2 = 0x48000
WS_FLAGF = 0x50000
WS_FLAGA = 0x58000
WS_GP = 0x60000
WS_SMALL = 0xA0000
WS_YPART = 0xA0000
WS_O = 0x200000
WS_PROF = 0xA00000

SCALE = 0.25 * 1.4426950408889634
NLOG2E = -1.4426950408889634
PROF = False
SPIN_MAX = int(os.environ.get('SPIN_MAX', 1 << 17))
POLL_IDS = {}
EXP = os.environ.get('EXP', '')
FFN_THR = int(os.environ.get('FFN_THR', '4'))

L_X = 0
L_W = 65536
L_KV = 131072
P1_X = 0
P1_W = 65536
P1_KV = 122880
L_XN = 155648
P1_WR = 57344
L_KEY = 58368
P1_FL = 63504
L_RED = 0
L_Q = 122880
L_MISC = L_KV + 12288
L_UPD = L_MISC + 64
L_SEL = 63488
L_FX = L_Q


def f2u(x):
    return struct.unpack("<I", struct.pack("<f", x))[0]


class Asm:
    def __init__(self):
        self.l = []
    def __call__(self, s):
        self.l.append("    " + s)
    def label(self, s):
        self.l.append(s + ":")
    def raw(self, s):
        self.l.append(s)
    def c(self, s):
        self.l.append("    ; " + s)
    def text(self):
        return "\n".join(self.l) + "\n"


def srd(a, d, base_lo, base_hi, off, size):
    if off:
        a(f"s_add_u32 s{d}, s{base_lo}, 0x{off:x}")
        a(f"s_addc_u32 s{d+1}, s{base_hi}, 0")
    else:
        a(f"s_mov_b32 s{d}, s{base_lo}")
        a(f"s_mov_b32 s{d+1}, s{base_hi}")
    a(f"s_mov_b32 s{d+2}, 0x{size:x}")
    a(f"s_mov_b32 s{d+3}, 0x00020000")


def stamp(a, i):
    if PROF:
        a("s_memtime s[96:97]")
        a("s_waitcnt lgkmcnt(0)")
        a(f"s_mov_b32 s{80+i}, s96")
        if "rt" in EXP and i in (5, 7):
            a("s_memrealtime s[96:97]")
            a("s_waitcnt lgkmcnt(0)")
            a(f"s_mov_b32 s{90 if i == 5 else 91}, s96")


def stamp_flush(a):
    if PROF:
        a("s_waitcnt vmcnt(0)")
        stamp(a, 13)
        a("s_memrealtime s[96:97]")
        a("s_waitcnt lgkmcnt(0)")
        a("s_mov_b32 s95, s96")
        a(f"s_add_u32 s96, s14, 0x{WS_PROF:x}")
        a("s_addc_u32 s97, s15, 0")
        a("s_mov_b32 s98, 0x100000")
        a("s_mov_b32 s99, 0x00020000")
        a("s_lshl_b32 s79, s2, 4")
        a("s_add_u32 s79, s79, s78")
        a("s_lshl_b32 s79, s79, 6")
        a("s_mov_b64 exec, 1")
        a("v_mov_b32 v0, 0")
        for q in range(4):
            for i in range(4):
                a(f"v_mov_b32 v{4+i}, s{80+4*q+i}")
            a(f"buffer_store_dwordx4 v[4:7], v0, s[96:99], s79 offen offset:{16*q}")
            a("s_waitcnt vmcnt(0)")


def vr(b, n):
    return f"v[{b}:{b+n-1}]"


DPP_STEPS = ["quad_perm:[1,0,3,2] row_mask:0xf bank_mask:0xf",
             "quad_perm:[2,3,0,1] row_mask:0xf bank_mask:0xf",
             "row_half_mirror row_mask:0xf bank_mask:0xf",
             "row_mirror row_mask:0xf bank_mask:0xf",
             "row_bcast:15 row_mask:0xa bank_mask:0xf",
             "row_bcast:31 row_mask:0xc bank_mask:0xf"]


def wave_reduce_rows(a, regs, op="v_add_f32", nsteps=6):
    for st in DPP_STEPS[:nsteps]:
        if len(regs) == 1:
            a("s_nop 1")
        elif len(regs) == 2:
            a("s_nop 0")
        for r in regs:
            a(f"{op}_dpp v{r}, v{r}, v{r} {st}")


FR = 16
ACC = 48
ACC2 = 64
ONES = 80
Q0, O0, S0, KB, VB, IDX = 16, 32, 96, 128, 136, 8


def lds_wait(a, name, need_s=None, need_imm=None, off=0, two=True, vt=14, slow=False):
    a(f"v_mov_b32 v{vt+2}, 0x{P1_FL:x}")
    a.label(f"LW_{name}")
    if slow:
        a("s_sleep 2")
    if two:
        a(f"ds_read_b64 {vr(vt,2)}, v{vt+2} offset:{off}")
        a("s_waitcnt lgkmcnt(0)")
        a(f"v_min_u32 v{vt}, v{vt}, v{vt+1}")
        a("s_nop 0")
    else:
        a(f"ds_read_b32 v{vt}, v{vt+2} offset:{off}")
        a("s_waitcnt lgkmcnt(0)")
    a(f"v_readfirstlane_b32 s62, v{vt}")
    a(f"s_cmp_lt_u32 s62, " + (f"s{need_s}" if need_s is not None else str(need_imm)))
    a(f"s_cbranch_scc1 LW_{name}")


def lds_add(a, vaddr, vone, off):
    a("s_mov_b64 exec, 1")
    a(f"ds_add_u32 v{vaddr}, v{vone} offset:{off}")
    a("s_mov_b64 exec, -1")


def gemm_addr(a, wbase):
    a("v_lshrrev_b32 v3, 5, v1")
    a("v_lshrrev_b32 v5, 2, v1")
    a("v_and_b32 v5, 3, v5")
    a("v_lshl_add_u32 v6, v3, 3, v5")
    a("v_lshlrev_b32 v6, 7, v6")
    a("v_lshrrev_b32 v7, 1, v5")
    a("s_and_b32 s40, s16, 1")
    a("v_xor_b32 v7, s40, v7")
    a("v_lshl_add_u32 v6, v7, 6, v6")
    a("v_and_b32 v7, 16, v1")
    a("v_lshl_add_u32 v6, v7, 1, v6")
    a("v_and_b32 v7, 1, v1")
    a("v_lshl_add_u32 v6, v7, 4, v6")
    a("v_and_b32 v7, 2, v1")
    a("v_lshl_add_u32 v6, v7, 2, v6")
    a(f"v_add_u32 v6, 0x{wbase:x}, v6")
    a("v_and_b32 v2, 31, v1")
    a("v_lshrrev_b32 v5, 1, v2")
    a("v_and_b32 v5, 7, v5")
    a("v_xor_b32 v5, v5, v3")
    a("v_lshlrev_b32 v2, 7, v2")
    a("v_lshl_add_u32 v2, v5, 4, v2")
    a("s_lshr_b32 s40, s16, 1")
    a("s_lshl_b32 s40, s40, 12")
    a("v_add_u32 v10, s40, v2")
    a("v_xor_b32 v11, 32, v10")
    a("v_xor_b32 v12, 64, v10")
    a("v_xor_b32 v13, 96, v10")


def gemm_loop_p1(a):
    for i in range(0, 32, 2):
        a(f"v_mov_b64 {vr(ACC+i,2)}, 0")
    for i in range(4):
        a(f"v_mov_b32 v{ONES+i}, 0x3f803f80")
    a("v_mov_b32 v7, 1")
    a("s_mov_b32 s41, 3")
    a("s_barrier")
    FB = [FR, 88]

    def rd(buf):
        for sx in range(4):
            a(f"ds_read_b64_tr_b16 {vr(FB[buf]+8*sx,2)}, v6 offset:{sx*2048}")
            a(f"ds_read_b64_tr_b16 {vr(FB[buf]+8*sx+2,2)}, v6 offset:{sx*2048+512}")
            a(f"ds_read_b128 {vr(FB[buf]+8*sx+4,4)}, v{10+sx}")
        a("s_movk_i32 s40, 0x2000")
        a("s_cmp_eq_u32 s41, 9")
        a(f"s_cselect_b32 s40, {(-6*8192) & 0xffffffff}, s40")
        a("v_add_u32 v6, s40, v6")
        for i in range(4):
            a(f"v_add_u32 v{10+i}, s40, v{10+i}")
        a("s_add_u32 s41, s41, 1")

    def mm(buf):
        for sx in range(4):
            a(f"v_mfma_f32_32x32x16_bf16 {vr(ACC,16)}, {vr(FB[buf]+8*sx,4)}, {vr(FB[buf]+8*sx+4,4)}, {vr(ACC,16)}")
            a(f"v_mfma_f32_32x32x16_bf16 {vr(ACC2,16)}, {vr(FB[buf]+8*sx,4)}, {vr(ONES,4)}, {vr(ACC2,16)}")

    lds_wait(a, "G0", need_s=41, vt=84)
    rd(0)
    a.label("GL_P1")
    a("s_cmp_ge_u32 s62, s41")
    a("s_cbranch_scc1 GL_S1")
    lds_wait(a, "G1", need_s=41, vt=84)
    a.label("GL_S1")
    rd(1)
    a("s_waitcnt lgkmcnt(12)")
    a("s_cmp_lg_u32 s41, 5")
    a("s_cbranch_scc1 GL_NOSIG")
    lds_add(a, 86, 7, 8)
    a.label("GL_NOSIG")
    mm(0)
    a("s_cmp_eq_u32 s41, 11")
    a("s_cbranch_scc1 GL_END")
    a("s_cmp_ge_u32 s62, s41")
    a("s_cbranch_scc1 GL_S2")
    lds_wait(a, "G2", need_s=41, vt=84)
    a.label("GL_S2")
    rd(0)
    a("s_cmp_lg_u32 s41, 10")
    a("s_cbranch_scc1 GL_NOST")
    a("buffer_load_dwordx4 v[120:123], v124, s[24:27], s58 offen sc1")
    a.label("GL_NOST")
    a("s_waitcnt lgkmcnt(12)")
    mm(1)
    a("s_branch GL_P1")
    a.label("GL_END")
    a("s_waitcnt lgkmcnt(0)")
    mm(1)


def dbg_timeout(a, tag):
    if "dbgspin" in EXP:
        pid = POLL_IDS.setdefault(tag, len(POLL_IDS) + 1)
        a(f"s_cmp_lt_u32 s61, {SPIN_MAX}")
        a(f"s_cbranch_scc1 DBGT_{tag}")
        a(f"v_mov_b32 v150, {4*pid}")
        a("v_mov_b32 v151, 1")
        a("s_mov_b64 exec, 1")
        a("buffer_atomic_add v151, v150, s[72:75], 0 offen")
        a("s_mov_b64 exec, -1")
        a.label(f"DBGT_{tag}")


def poll(a, tag, voff, soffs, wide=False, sleep=2, cmpw=(20, 23), dst=20):
    a("s_mov_b32 s61, 0")
    a.label(f"POLL_{tag}")
    if wide:
        a(f"buffer_load_dwordx4 v[20:23], v{voff}, s[24:27], s{soffs[0]} offen sc1")
        regs = list(cmpw)
    else:
        for i, so in enumerate(soffs):
            a(f"buffer_load_dword v{dst+i}, v{voff}, s[24:27], s{so} offen sc1")
        regs = [dst + i for i in range(len(soffs))]
    a("s_add_u32 s61, s61, 1")
    a("s_waitcnt vmcnt(0)")
    for i, r in enumerate(regs):
        if i == 0:
            a(f"v_cmp_ne_u32 vcc, s60, v{r}")
        else:
            a(f"v_cmp_ne_u32 s[62:63], s60, v{r}")
            a("s_or_b64 vcc, vcc, s[62:63]")
    a(f"s_cmp_ge_u32 s61, {SPIN_MAX}")
    a(f"s_cbranch_scc1 POLLX_{tag}")
    a("s_cmp_eq_u64 vcc, 0")
    a(f"s_cbranch_scc1 POLLX_{tag}")
    a(f"s_sleep {sleep}")
    a(f"s_branch POLL_{tag}")
    a.label(f"POLLX_{tag}")
    dbg_timeout(a, tag)


def get_tag(a, name, vt):
    a("s_mov_b32 s61, 0")
    a(f"v_mov_b32 v{vt}, 0")
    a.label(f"TAG_{name}")
    a(f"buffer_load_dword v{vt+1}, v{vt}, s[72:75], 0 offen sc1")
    a("s_add_u32 s61, s61, 1")
    a("s_waitcnt vmcnt(0)")
    a(f"v_readfirstlane_b32 s60, v{vt+1}")
    a(f"s_cmp_ge_u32 s61, {SPIN_MAX}")
    a(f"s_cbranch_scc1 TAGX_{name}")
    a("s_cmp_eq_u32 s60, 0")
    a(f"s_cbranch_scc1 TAG_{name}")
    a.label(f"TAGX_{name}")


def lds_tag(a, name, vt):
    lds_wait(a, f"T{name}", need_imm=1, off=20, two=False, vt=vt)
    a("s_mov_b32 s60, s62")


def ln_normalize(a, rows_packed, XU, D, negm_pairs, rinv_pairs, mask_s):
    R = range(len(rows_packed))
    for i in R:
        for j in range(4):
            a(f"v_pk_add_f32 {vr(D+8*i+2*j,2)}, {vr(XU+8*i+2*j,2)}, {vr(negm_pairs[i],2)}")
    for i in R:
        for j in range(4):
            a(f"v_cvt_pk_bf16_f32 v{rows_packed[i]+j}, v{D+8*i+2*j}, v{D+8*i+2*j+1}")
    for i in R:
        for j in range(4):
            a(f"v_lshlrev_b32 v{D+8*i+2*j}, 16, v{rows_packed[i]+j}")
            a(f"v_and_b32 v{D+8*i+2*j+1}, s{mask_s}, v{rows_packed[i]+j}")
    for i in R:
        for j in range(4):
            a(f"v_pk_mul_f32 {vr(D+8*i+2*j,2)}, {vr(D+8*i+2*j,2)}, {vr(rinv_pairs[i],2)}")
    for i in R:
        for j in range(4):
            a(f"v_cvt_pk_bf16_f32 v{rows_packed[i]+j}, v{D+8*i+2*j}, v{D+8*i+2*j+1}")


PG, PXF = 96, 112
PRE_A = (128, 48, 136, 64)
PRE_B = (128, 16, 136, 64)
PV = 144


GPK, XPK = 152, 160


def p3_pre(a, sfx, EX, T, PR, YL, front=False):
    G, XF = PG, PXF
    SV = 148
    a(f"v_lshrrev_b32 v{PV}, 2, v1")
    a(f"v_and_b32 v{PV+1}, 3, v1")
    a(f"v_lshlrev_b32 v{PV+2}, 10, v{PV}")
    a(f"v_lshl_add_u32 v{PV+2}, v{PV+1}, 4, v{PV+2}")
    a(f"buffer_load_dwordx4 {vr(EX,4)}, v{PV+2}, s[20:23], s65 offen")
    a(f"buffer_load_dwordx4 {vr(EX+4,4)}, v{PV+2}, s[20:23], s66 offen")
    a(f"v_lshlrev_b32 v{T}, 4, v{PV}")
    a("s_lshl_b32 s40, s64, 4")
    a(f"s_add_u32 s40, s40, {WS_STATS}")
    if front:
        for j in range(2):
            poll(a, f"PS{j}", T, [40], wide=True, cmpw=(22, 23))
            a(f"v_mov_b64 {vr(SV+2*j,2)}, v[20:21]")
            a("s_add_u32 s40, s40, 256")
        for i in range(0, 8, 2):
            a(f"v_mov_b64 {vr(XPK+i,2)}, {vr(EX+i,2)}")
    else:
        a(f"buffer_load_dwordx2 {vr(SV,2)}, v{T}, s[24:27], s40 offen sc1")
        a(f"buffer_load_dwordx2 {vr(SV+2,2)}, v{T}, s[24:27], s40 offen offset:256 sc1")
        a("s_waitcnt vmcnt(0)")
    for i in range(8):
        a(f"v_lshlrev_b32 v{XF+2*i}, 16, v{EX+i}")
        a(f"v_and_b32 v{XF+2*i+1}, s42, v{EX+i}")
    for j in range(2):
        a(f"v_sub_f32 v{PR+4*j}, 0, v{SV+2*j}")
        a(f"v_sub_f32 v{PR+1+4*j}, 0, v{SV+2*j}")
        a(f"v_mov_b32 v{PR+2+4*j}, v{SV+1+2*j}")
        a(f"v_mov_b32 v{PR+3+4*j}, v{SV+1+2*j}")
    ln_normalize(a, [EX, EX + 4], XF, G, [PR, PR + 4], [PR + 2, PR + 6], 42)
    for i in range(8):
        a(f"v_lshlrev_b32 v{G+2*i}, 16, v{EX+i}")
        a(f"v_and_b32 v{G+2*i+1}, s42, v{EX+i}")
    if not front:
        a("s_mov_b32 s58, s76")
        a("s_mov_b32 s47, 0")
        a.label(f"PU_{sfx}")
        a("s_and_b32 s59, s58, 0xffff")
        a("s_sub_u32 s59, 2047, s59")
        a("s_sub_u32 s59, s59, s64")
        a("s_cmp_lt_u32 s59, 32")
        a(f"s_cbranch_scc1 PUY_{sfx}")
        a.label(f"PUN_{sfx}")
        a("s_mov_b32 s58, s77")
        a("s_add_u32 s47, s47, 2048")
        a("s_cmp_lt_u32 s47, 4096")
        a(f"s_cbranch_scc1 PU_{sfx}")
    for i in range(16):
        a(f"v_mul_f32 v{T+i}, 0x{f2u(NLOG2E):08x}, v{G+i}")
    for i in range(16):
        a(f"v_exp_f32 v{T+i}, v{T+i}")
    for i in range(16):
        a(f"v_add_f32 v{T+i}, 1.0, v{T+i}")
    for i in range(16):
        a(f"v_rcp_f32 v{T+i}, v{T+i}")
    for i in range(0, 16, 2):
        a(f"v_pk_mul_f32 {vr(G+i,2)}, {vr(G+i,2)}, {vr(T+i,2)}")
    for i in range(8):
        a(f"v_cvt_pk_bf16_f32 v{GPK+i}, v{G+2*i}, v{G+2*i+1}")


def p3_upd(a, sfx, EX, T, PR, YL):
    G = PG
    a.label(f"PUY_{sfx}")
    a(f"v_min_u32 v{PR}, 55, v1")
    a(f"v_lshlrev_b32 v{PR}, 7, v{PR}")
    a(f"s_mov_b32 s44, {WS_FLAGF}")
    a(f"s_mov_b32 s45, {WS_FLAGF + 56*128}")
    poll(a, f"FF{sfx}", PR, [44, 45], sleep=4, dst=EX)
    srd(a, 48, 14, 15, WS_YPART, 112 * 4096)
    a(f"v_mul_u32_u24 v{PR}, 0x7000, v{PV}")
    a(f"v_lshl_add_u32 v{PR}, v{PV+1}, 5, v{PR}")
    a("s_and_b32 s40, s16, 1")
    a("s_lshl_b32 s40, s40, 5")
    a("s_add_u32 s40, s40, s18")
    a("s_lshl_b32 s40, s40, 2")
    a("s_add_u32 s40, s40, s47")
    for i in range(0, 8, 2):
        a(f"v_mov_b64 {vr(T+i,2)}, 0")
    for cnt in (4, 3):
        for p in range(cnt):
            a(f"buffer_load_dwordx4 {vr(YL+8*p,4)}, v{PR}, s[48:51], s40 offen sc1")
            a(f"buffer_load_dwordx4 {vr(YL+8*p+4,4)}, v{PR}, s[48:51], s40 offen offset:16 sc1")
            a("s_add_u32 s40, s40, 4096")
        a("s_waitcnt vmcnt(0)")
        for p in range(cnt):
            for i in range(0, 8, 2):
                a(f"v_pk_add_f32 {vr(T+i,2)}, {vr(T+i,2)}, {vr(YL+8*p+i,2)}")
    for ror in (4, 8):
        a("s_nop 1")
        for i in range(8):
            a(f"v_add_f32_dpp v{T+i}, v{T+i}, v{T+i} row_ror:{ror} row_mask:0xf bank_mask:0xf")
    for swap in ("v_permlane16_swap_b32", "v_permlane32_swap_b32"):
        for i in range(8):
            a(f"v_mov_b32 v{T+8+i}, v{T+i}")
        a("s_nop 1")
        for i in range(8):
            a(f"{swap} v{T+i}, v{T+8+i}")
        a("s_nop 1")
        for i in range(8):
            a(f"v_add_f32 v{T+i}, v{T+i}, v{T+8+i}")
    a("s_and_b32 s40, s58, 0xffff0000")
    a("s_ashr_i32 s41, s40, 31")
    a("s_not_b32 s41, s41")
    a("s_or_b32 s41, s41, 0x80000000")
    a("s_xor_b32 s40, s40, s41")
    a("s_and_b32 s40, s40, 0xffff0000")
    a(f"v_mov_b32 v{PR}, s40")
    a(f"v_mul_f32 v{PR}, 0x{f2u(NLOG2E):08x}, v{PR}")
    a(f"v_exp_f32 v{PR}, v{PR}")
    a("s_nop 0")
    a(f"v_add_f32 v{PR}, 1.0, v{PR}")
    a(f"v_rcp_f32 v{PR}, v{PR}")
    a("s_nop 0")
    a(f"v_cvt_pk_bf16_f32 v{PR}, v{PR}, v{PR}")
    a(f"v_lshlrev_b32 v{PR}, 16, v{PR}")
    for rp in range(2):
        for i in range(4):
            a(f"v_cvt_pk_bf16_f32 v{T+8+i}, v{T+2*i}, v{T+2*i+1}")
        for i in range(4):
            a(f"v_lshlrev_b32 v{T+2*i}, 16, v{T+8+i}")
            a(f"v_and_b32 v{T+2*i+1}, s42, v{T+8+i}")
        if rp == 0:
            for i in range(8):
                a(f"v_mul_f32 v{T+i}, v{T+i}, v{PR}")
    for j in range(2):
        a(f"v_add_u32 v{PR}, {16*j}, v{PV}")
        a(f"v_cmp_eq_u32 vcc, s59, v{PR}")
        for i in range(8):
            a(f"v_add_f32 v{T+8+i}, v{T+i}, v{G+8*j+i}")
        for i in range(4):
            a(f"v_cvt_pk_bf16_f32 v{T+8+i}, v{T+8+2*i}, v{T+9+2*i}")
        for i in range(3, -1, -1):
            a(f"v_and_b32 v{T+9+2*i}, s42, v{T+8+i}")
            a(f"v_lshlrev_b32 v{T+8+2*i}, 16, v{T+8+i}")
        for i in range(8):
            a(f"v_cndmask_b32 v{G+8*j+i}, v{G+8*j+i}, v{T+8+i}, vcc")
    a(f"s_branch PUN_{sfx}")


def next_class(a, name):
    a.label(f"NC_{name}")
    a("ds_read_b32 v15, v9 offset:32")
    a("s_waitcnt lgkmcnt(0)")
    a("v_readfirstlane_b32 s40, v15")
    a("s_andn2_b32 s40, s40, s54")
    a(f"s_cbranch_scc0 NC_{name}")
    a("s_ff1_i32_b32 s40, s40")
    a("s_bitset1_b32 s54, s40")
    a("s_lshl_b32 s44, s40, 13")
    a("s_add_u32 s44, s44, s52")
    a("s_lshl_b32 s45, s40, 14")
    a("s_add_u32 s45, s45, s53")


def kernel(a):
    K = NAME + "_kernel"
    a.raw(f".globl {K}")
    a.raw(".p2align 8")
    a.raw(f".type {K},@function")
    a.label(K)
    a("s_cmp_ge_u32 s2, 256")
    a("s_cbranch_scc1 L_END")
    if PROF:
        a("s_memrealtime s[96:97]")
        a("s_waitcnt lgkmcnt(0)")
        a("s_mov_b32 s94, s96")
    stamp(a, 0)
    a("s_load_dwordx8 s[4:11], s[0:1], 0")
    a("s_load_dwordx2 s[12:13], s[0:1], 32")
    a("s_load_dwordx2 s[14:15], s[0:1], 96")
    a("s_load_dwordx2 s[28:29], s[0:1], 48")
    a("s_load_dwordx2 s[72:73], s[0:1], 88")
    a("v_and_b32 v1, 63, v0")
    a("v_lshrrev_b32 v2, 6, v0")
    a("s_nop 0")
    a("v_readfirstlane_b32 s78, v2")
    a("s_and_b32 s17, s2, 7")
    a("s_lshr_b32 s18, s2, 3")
    a("s_and_b32 s19, s18, 3")
    a("s_lshl_b32 s17, s17, 2")
    a("s_add_u32 s17, s17, s19")
    a("s_lshl_b32 s17, s17, 6")
    a("s_lshr_b32 s19, s18, 2")
    a("s_lshl_b32 s18, s19, 6")
    a("s_and_b32 s16, s78, 3")
    a("s_mov_b32 s42, 0xffff0000")
    a("v_lshlrev_b32 v5, 4, v1")
    a("s_waitcnt lgkmcnt(0)")
    srd(a, 20, 4, 5, 0, 2048 * 1024)
    srd(a, 24, 14, 15, 0, WS_SMALL)
    a("s_mov_b32 s74, 256")
    a("s_mov_b32 s75, 0x00020000")
    a("s_cmp_ge_u32 s78, 8")
    a("s_cbranch_scc1 R_GEMM")
    a("s_cmp_ge_u32 s78, 4")
    a("s_cbranch_scc1 R_LN")
    a.label("R_AUX")
    a("s_cmp_ge_u32 s16, 2")
    a("s_cbranch_scc1 R_AUX2")
    srd(a, 52, 28, 29, 0, 1024)
    srd(a, 28, 6, 7, 0, 512 * 1024)
    a("v_lshrrev_b32 v2, 3, v1")
    a("v_lshlrev_b32 v2, 10, v2")
    a("v_lshrrev_b32 v3, 4, v1")
    a("v_xor_b32 v6, v3, v1")
    a("v_and_b32 v6, 7, v6")
    a("v_lshl_add_u32 v8, v6, 4, v2")
    a("v_xor_b32 v9, 64, v8")
    a("v_and_b32 v6, 1, v3")
    a("v_lshlrev_b32 v6, 2, v6")
    a("v_xor_b32 v6, v6, v1")
    a("v_and_b32 v6, 7, v6")
    a("v_lshl_add_u32 v4, v6, 4, v2")
    a("s_lshl_b32 s43, s16, 15")
    a("s_lshl_b32 s44, s17, 10")
    a("s_add_u32 s44, s44, s43")
    a("s_lshl_b32 s45, s18, 1")
    a("s_add_u32 s45, s45, s43")
    a("s_lshl_b32 s46, s16, 12")

    a("s_lshl_b32 s47, s19, 3")
    a("s_add_u32 s47, s47, s17")
    a("s_lshl_b32 s48, s16, 2")
    a("s_add_u32 s47, s47, s48")
    a("s_lshl_b32 s47, s47, 10")
    a("s_lshl_b32 s48, s16, 12")
    for j in range(4):
        a(f"s_add_u32 m0, s48, {L_XN + j*1024}")
        a(f"s_add_u32 s40, s47, {j*1024}")
        a("buffer_load_dwordx4 v5, s[20:23], s40 offen lds")
    a(f"s_mov_b32 m0, {P1_WR}")
    a("s_lshl_b32 s47, s16, 13")
    a("buffer_load_dwordx4 v5, s[52:55], 0 offen lds")
    srd(a, 32, 8, 9, 0, 16384)
    srd(a, 36, 10, 11, 0, 16384)
    a("s_lshl_b32 s40, s16, 2")
    a(f"s_add_u32 s40, s40, {P1_FL}")
    a("v_mov_b32 v10, s40")
    a("v_mov_b32 v11, 1")
    for which in range(2):
        for j in range(8):
            a(f"s_add_u32 m0, s47, {P1_KV + which*16384 + j*1024}")
            a(f"s_add_u32 s40, s47, {j*1024}")
            a(f"buffer_load_dwordx4 v5, s[{32+4*which}:{35+4*which}], s40 offen lds")
        if which == 0:
            a("s_barrier")
            a("s_waitcnt vmcnt(8)")
            lds_add(a, 10, 11, 0)
            stamp(a, 1)
    a("s_mov_b32 s47, s46")
    a("s_mov_b32 s51, s19")
    a("s_mov_b32 s50, 0")
    a.label("LD_P1")
    a("s_cmp_lg_u32 s50, 7")
    a("s_cbranch_scc1 LD_NOWRAP")
    a("s_mov_b32 s47, s46")
    lds_wait(a, "L", need_imm=4, off=8, two=False)
    a.label("LD_NOWRAP")
    a("s_lshl_b32 s48, s51, 16")
    a("s_add_u32 s48, s48, s45")
    a("s_lshl_b32 s49, s51, 7")
    a("s_add_u32 s49, s49, s44")
    a("s_add_u32 s51, s51, 1")
    a("s_and_b32 s51, s51, 7")
    for j in range(4):
        a(f"s_add_u32 m0, s47, {P1_W + j*1024}")
        a(f"s_add_u32 s40, s48, {j*8192}")
        a("buffer_load_dwordx4 v4, s[28:31], s40 offen lds")
    for j in range(4):
        a(f"s_add_u32 m0, s47, {P1_X + j*1024}")
        a(f"s_add_u32 s40, s49, {j*8192}")
        a(f"buffer_load_dwordx4 v{8+(j&1)}, s[20:23], s40 offen lds")
    a("s_add_u32 s47, s47, 8192")
    a("s_add_u32 s50, s50, 1")
    a("s_cmp_lt_u32 s50, 2")
    a("s_cbranch_scc1 LD_P1")
    a("s_waitcnt vmcnt(16)")
    lds_add(a, 10, 11, 0)
    a("s_cmp_lt_u32 s50, 8")
    a("s_cbranch_scc1 LD_P1")
    a("s_waitcnt vmcnt(8)")
    lds_add(a, 10, 11, 0)
    a("s_waitcnt vmcnt(0)")
    lds_add(a, 10, 11, 0)
    stamp(a, 2)
    lds_wait(a, "LR", need_imm=8, off=28, two=False, slow=True)
    srd(a, 28, 12, 13, 0, 512 * 1024)
    a(f"s_add_u32 s47, s46, {L_W}")
    a("s_mov_b32 s48, s45")
    a("s_mov_b32 s49, 0")
    a.label("LD_WO")
    for j in range(4):
        a(f"s_add_u32 m0, s47, {j*1024}")
        a(f"s_add_u32 s40, s48, {j*8192}")
        a("buffer_load_dwordx4 v4, s[28:31], s40 offen lds")
        if j & 1:
            a("s_waitcnt vmcnt(0)")
    a("s_add_u32 s47, s47, 8192")
    a("s_add_u32 s48, s48, 65536")
    a("s_add_u32 s49, s49, 1")
    a("s_cmp_lt_u32 s49, 8")
    a("s_cbranch_scc1 LD_WO")
    srd(a, 32, 14, 15, WS_O, 2048 * 1024)
    a("s_barrier")
    a("s_barrier")
    stamp(a, 10)
    a.label("P3LOAD")
    a("v_lshrrev_b32 v2, 3, v1")
    a("v_lshrrev_b32 v3, 4, v1")
    a("v_xor_b32 v3, v3, v1")
    a("v_and_b32 v3, 7, v3")
    a("v_lshlrev_b32 v8, 7, v2")
    a("v_lshl_add_u32 v8, v3, 4, v8")
    a("v_xor_b32 v9, 64, v8")
    a(f"v_mov_b32 v6, 0x{L_MISC:x}")
    a("s_lshl_b32 s44, s17, 10")
    a.label("PL_LOOP")
    a("ds_read2_b32 v[12:13], v6 offset0:5 offset1:7")
    a("s_waitcnt lgkmcnt(0)")
    a("v_readfirstlane_b32 s50, v12")
    a("v_readfirstlane_b32 s51, v13")
    a("s_cmp_eq_u32 s50, 0xff")
    a("s_cbranch_scc1 PL_END")
    a("s_andn2_b32 s51, s51, s50")
    a("s_cbranch_scc0 PL_LOOP")
    a("s_ff1_i32_b32 s52, s51")
    a("s_lshl_b32 s53, 1, s52")
    a("v_mov_b32 v11, s53")
    a("s_mov_b64 exec, 1")
    a("ds_or_rtn_b32 v12, v6, v11 offset:20")
    a("s_waitcnt lgkmcnt(0)")
    a("s_mov_b64 exec, -1")
    a("v_readfirstlane_b32 s50, v12")
    a("s_and_b32 s50, s50, s53")
    a("s_cbranch_scc1 PL_LOOP")
    a("s_lshl_b32 s47, s52, 13")
    a("s_add_u32 s49, s47, s44")
    for j in range(8):
        a(f"s_add_u32 m0, s47, {L_X + j*1024}")
        a(f"s_add_u32 s40, s49, {j*1024}")
        a(f"buffer_load_dwordx4 v{8+(j&1)}, s[32:35], s40 offen lds")
    a("s_waitcnt vmcnt(0)")
    a("s_mov_b64 exec, 1")
    a("ds_or_b32 v6, v11 offset:16")
    a("s_mov_b64 exec, -1")
    a("s_branch PL_LOOP")
    a.label("PL_END")
    a("s_waitcnt lgkmcnt(0)")
    stamp(a, 12)
    stamp_flush(a)
    a("s_endpgm")

    a.label("R_AUX2")
    a("s_and_b32 s16, s16, 1")
    a("v_mov_b32 v2, 0")
    a("s_cmp_eq_u32 s16, 0")
    a("s_cbranch_scc1 AUX_NOTAG")
    a("s_cmp_lg_u32 s2, 0")
    a("s_cbranch_scc1 AUX_NOTAG")
    a("s_memrealtime s[48:49]")
    a("s_waitcnt lgkmcnt(0)")
    a("s_or_b32 s48, s48, 1")
    a("v_mov_b32 v3, s48")
    a("s_mov_b64 exec, 1")
    a("buffer_store_dword v3, v2, s[72:75], 0 offen sc1")
    a("s_mov_b64 exec, -1")
    a.label("AUX_NOTAG")
    a(f"v_mov_b32 v6, 0x{P1_FL:x}")
    a("v_mov_b64 v[8:9], 0")
    a("v_mov_b64 v[10:11], 0")
    a(f"v_mov_b32 v7, 0x{L_SEL:x}")
    for q in range(4):
        a(f"ds_write_b128 v7, v[8:11] offset:{16*q}")
    a("s_waitcnt lgkmcnt(0)")
    a("s_barrier")
    a("s_cmp_eq_u32 s16, 0")
    a("s_cbranch_scc1 AUX_FFN0")
    get_tag(a, "AUX", 2)
    a("s_or_b32 s60, s60, 1")
    a("v_mov_b32 v3, s60")
    a("ds_write_b32 v6, v3 offset:20")
    a("v_mov_b32 v3, s60")
    a("s_lshl_b32 s40, s2, 7")
    a(f"s_add_u32 s40, s40, {WS_FLAG1}")
    a("v_and_b32 v7, 31, v1")
    a("v_lshlrev_b32 v7, 10, v7")
    a("v_and_b32 v8, 7, v1")
    a("v_lshlrev_b32 v8, 7, v8")
    a(f"s_mov_b32 s44, {WS_CLASS}")
    a("s_lshl_b32 s45, s2, 7")
    a("s_add_u32 s45, s45, s44")
    a("s_getreg_b32 s59, hwreg(HW_REG_XCC_ID)")
    stamp(a, 3)
    a(f"v_mov_b32 v11, 0x{L_SEL:x}")
    a("s_setprio 3")
    a("s_mov_b32 s61, 0")
    a("s_mov_b32 s52, 1")
    a("s_mov_b32 s53, 0")
    a("s_and_b32 s54, s2, 7")
    a("s_lshl_b32 s40, s54, 7")
    a(f"s_add_u32 s40, s40, {WS_FLAG1}")
    lds_wait(a, "SY", need_imm=4, off=16, two=False, vt=84, slow=True)
    a.label("S1_LOOP")
    a("buffer_load_dword v20, v8, s[24:27], s44 offen sc1")
    a("s_cmp_eq_u32 s52, 0")
    a("s_cbranch_scc1 S1_NC")
    a("buffer_load_dword v21, v7, s[24:27], s40 offen sc1")
    a("s_waitcnt vmcnt(0)")
    a("v_cmp_ne_u32 vcc, s60, v21")
    a("s_cmp_lg_u64 vcc, 0")
    a("s_cbranch_scc1 S1_NC")
    a("s_mov_b32 s52, 0")
    a("s_lshl_b32 s53, 1, s54")
    a("s_cmp_ge_u32 s2, 8")
    a("s_cbranch_scc1 S1_NC")
    a("s_mov_b64 exec, 1")
    a("buffer_store_dword v3, v2, s[24:27], s45 offen sc1")
    a("s_mov_b64 exec, -1")
    a.label("S1_NC")
    a("s_add_u32 s61, s61, 1")
    a("s_waitcnt vmcnt(0)")
    a("v_cmp_eq_u32 vcc, s60, v20")
    a(f"s_cmp_ge_u32 s61, {SPIN_MAX}")
    a("s_cselect_b32 s51, 0xff, vcc_lo")
    a("s_and_b32 s51, s51, 0xff")
    a("s_or_b32 s51, s51, s53")
    a("v_mov_b32 v20, s51")
    a("ds_write_b32 v6, v20 offset:32")
    a("s_sleep 2")
    a("s_cmp_lg_u32 s51, 0xff")
    a("s_cbranch_scc1 S1_LOOP")
    a("s_cmp_lg_u32 s2, 0")
    a("s_cbranch_scc1 SYNC_NORST")
    a("s_mov_b64 exec, 1")
    a("buffer_store_dword v2, v2, s[72:75], 0 offen sc1")
    a("s_mov_b64 exec, -1")
    a.label("SYNC_NORST")
    stamp(a, 4)
    lds_wait(a, "SR", need_imm=8, off=28, two=False, vt=84, slow=True)
    a("s_setprio 3")
    a("s_cmp_lt_u32 s2, 144")
    a("s_cbranch_scc1 SYNC_NB0")
    a("s_load_dwordx2 s[8:9], s[0:1], 72")
    a("s_sub_u32 s56, s2, 144")
    a("s_lshl_b32 s52, s56, 14")
    a(f"s_mov_b32 s53, {L_KV + 16384}")
    a("s_mov_b32 s41, 0")
    a("s_waitcnt lgkmcnt(0)")
    srd(a, 36, 8, 9, 0, 1792 * 1024)
    a.label("FFN_DMA2")
    a("s_mov_b32 m0, s53")
    a("s_add_u32 s53, s53, 1024")
    a("buffer_load_dwordx4 v5, s[36:39], s52 offen lds")
    a("s_add_u32 s52, s52, 1024")
    a("s_add_u32 s41, s41, 1")
    a(f"s_waitcnt vmcnt({FFN_THR})")
    a("s_cmp_lt_u32 s41, 16")
    a("s_cbranch_scc1 FFN_DMA2")
    a.label("SYNC_NB0")
    a("s_lshl_b32 s40, s17, 4")
    a(f"s_add_u32 s41, s40, {WS_FLAG2}")
    a("s_lshl_b32 s40, s19, 7")
    a("s_add_u32 s40, s40, s41")
    a("v_and_b32 v6, 7, v1")
    a("v_lshlrev_b32 v6, 7, v6")
    a("s_and_b32 s44, s2, 31")
    a("s_lshl_b32 s44, s44, 7")
    a(f"s_add_u32 s44, s44, {WS_FLAG1 + 4}")
    a("v_lshlrev_b32 v14, 5, v6")
    a("buffer_load_dword v15, v14, s[24:27], s44 offen sc1")
    a("s_waitcnt vmcnt(0)")
    a("v_cmp_ne_u32 vcc, s59, v15")
    a("s_cmp_eq_u64 vcc, 0")
    a("s_cselect_b32 s59, 1, 0")
    if "noxcd" in EXP: a("s_mov_b32 s59, 0")
    a(f"s_mov_b32 s44, {WS_SELG}")
    poll(a, "SEL", 2, [44], wide=True, sleep=32)
    a("v_readfirstlane_b32 s56, v21")
    a("v_readfirstlane_b32 s57, v22")
    a("v_mov_b32 v23, s59")
    a("ds_write_b128 v11, v[20:23]")
    a("s_waitcnt lgkmcnt(0)")
    a("s_cmp_lt_u32 s2, 144")
    a("s_cbranch_scc1 SYNC_NB1")
    a("s_sub_u32 s56, s2, 144")
    a("s_lshr_b32 s44, s56, 2")
    a("s_lshl_b32 s44, s44, 10")
    a(f"s_add_u32 s44, s44, {WS_FLAGA}")
    poll(a, "FA", 6, [44], sleep=8)
    a("v_lshrrev_b32 v7, 4, v1")
    a("v_mul_u32_u24 v7, 7168, v7")
    a("v_and_b32 v8, 15, v1")
    a("v_lshl_add_u32 v7, v8, 2, v7")
    a("s_lshl_b32 s44, s56, 6")
    a(f"s_add_u32 s44, s44, {WS_GP}")
    for ke in range(8):
        a(f"buffer_load_dword v{16+ke}, v7, s[24:27], s44 offen sc1")
        a(f"s_add_u32 s44, s44, {4*7168}")
    srd(a, 44, 14, 15, WS_YPART, 112 * 4096)
    a("v_lshrrev_b32 v14, 5, v1")
    a("v_lshrrev_b32 v8, 2, v1")
    a("v_and_b32 v9, 3, v8")
    a("v_lshl_add_u32 v12, v14, 3, v9")
    a("v_lshlrev_b32 v12, 10, v12")
    a("v_and_b32 v9, 16, v1")
    a("v_lshl_add_u32 v12, v9, 1, v12")
    a("v_and_b32 v9, 3, v1")
    a("v_lshl_add_u32 v12, v9, 3, v12")
    a(f"v_add_u32 v12, 0x{L_KV+16384:x}, v12")
    a("v_and_b32 v8, 1, v8")
    a("v_lshlrev_b32 v8, 5, v8")
    a("v_lshl_add_u32 v8, v14, 4, v8")
    a("v_add_u32 v8, v8, v11")
    a("v_and_b32 v9, 31, v1")
    a("v_lshl_add_u32 v13, v9, 1, v11")
    a("v_lshlrev_b32 v14, 11, v14")
    a("v_lshl_add_u32 v14, v9, 2, v14")
    a("s_lshl_b32 s52, s56, 12")
    a("s_waitcnt vmcnt(0)")
    a("v_add_f32 v16, v16, v17")
    a("v_add_f32 v18, v18, v19")
    a("v_add_f32 v20, v20, v21")
    a("v_add_f32 v22, v22, v23")
    a("v_add_f32 v16, v16, v18")
    a("v_add_f32 v20, v20, v22")
    a("v_add_f32 v16, v16, v20")
    a("v_cvt_pk_bf16_f32 v16, v16, v16")
    a("v_lshlrev_b32 v16, 16, v16")
    a("v_mov_b32 v17, v16")
    a("s_nop 1")
    a("v_permlane32_swap_b32 v16, v17")
    a("s_nop 1")
    a(f"v_mul_f32 v18, 0x{f2u(NLOG2E):08x}, v16")
    a("v_exp_f32 v18, v18")
    a("s_nop 0")
    a("v_add_f32 v18, 1.0, v18")
    a("v_rcp_f32 v18, v18")
    a("s_nop 0")
    a("v_mul_f32 v16, v16, v18")
    a("v_cvt_pk_bf16_f32 v16, v16, v16")
    a("v_lshlrev_b32 v16, 16, v16")
    a("v_mul_f32 v16, v16, v17")
    a("v_cvt_pk_bf16_f32 v16, v16, v16")
    a("ds_write_b16 v13, v16 offset:64")
    a("s_waitcnt lgkmcnt(0)")
    a("ds_read_b128 v[24:27], v8 offset:64")
    a("s_mov_b32 s53, 0")
    a.label("FFN_DOWN")
    for tl in range(4):
        a(f"ds_read_b64_tr_b16 {vr(96+4*tl,2)}, v12 offset:{64*tl}")
        a(f"ds_read_b64_tr_b16 {vr(98+4*tl,2)}, v12 offset:{64*tl+4096}")
    a("s_waitcnt lgkmcnt(0)")
    for tl in range(4):
        a(f"v_mfma_f32_32x32x16_bf16 {vr(32+16*tl,16)}, v[24:27], {vr(96+4*tl,4)}, 0")
    a("v_add_u32 v12, 256, v12")
    a("s_add_u32 s53, s53, 1")
    a("s_nop 11")
    for tl in range(4):
        a(f"buffer_store_dword v{32+16*tl}, v14, s[44:47], s52 offen offset:{128*tl} sc1")
    a("s_add_u32 s52, s52, 512")
    a("s_cmp_lt_u32 s53, 4")
    a("s_cbranch_scc1 FFN_DOWN")
    a("s_lshl_b32 s52, s56, 7")
    a(f"s_add_u32 s52, s52, {WS_FLAGF}")
    a("s_waitcnt vmcnt(0)")
    a("s_mov_b64 exec, 1")
    a("buffer_store_dword v3, v2, s[24:27], s52 offen sc1")
    a("s_mov_b64 exec, -1")
    a.label("SYNC_NB1")
    a("s_barrier")
    a(f"v_mov_b32 v11, 0x{L_MISC:x}")
    a("v_mov_b64 v[102:103], 0")
    a("ds_write_b64 v11, v[102:103] offset:16")
    a("ds_write_b64 v11, v[102:103] offset:24")
    a("ds_write_b32 v11, v102 offset:32")
    a("s_waitcnt lgkmcnt(0)")
    a("buffer_load_dword v12, v6, s[24:27], s41 offen sc1")
    a("s_barrier")
    a("s_mov_b32 s61, 0")
    a("s_mov_b32 s52, 0")
    a.label("SYNC_P")
    a("ds_read_b32 v13, v11 offset:32")
    a("s_add_u32 s61, s61, 1")
    a("s_waitcnt vmcnt(0) lgkmcnt(0)")
    a("v_cmp_eq_u32 vcc, s60, v12")
    a("v_readfirstlane_b32 s53, v13")
    a(f"s_cmp_ge_u32 s61, {SPIN_MAX}")
    a("s_cselect_b32 s51, 0xff, vcc_lo")
    a("s_and_b32 s51, s51, 0xff")
    a("s_cmp_lg_u32 s52, 0")
    a("s_cbranch_scc1 SYNC_Q")
    a("s_cmp_lt_u32 s53, 8")
    a("s_cbranch_scc1 SYNC_Q")
    stamp(a, 8)
    a("s_lshl_b32 s52, 1, s19")
    a.label("SYNC_Q")
    a("s_or_b32 s51, s51, s52")
    if PROF and "p3stamp" in EXP:
        a("s_bcnt1_i32_b32 s56, s51")
        a("s_memtime s[96:97]")
        a("s_waitcnt lgkmcnt(0)")
        for k in range(1, 8):
            a(f"s_cmp_lt_u32 s56, {k+1}")
            a(f"s_cselect_b32 s{80+k}, s96, s{80+k}")
        a("s_mov_b32 s89, s61")
    a("v_mov_b32 v12, s51")
    a("ds_write_b32 v11, v12 offset:28")
    a("s_cmp_eq_u32 s51, 0xff")
    a("s_cbranch_scc1 SYNC_X")
    a("buffer_load_dword v12, v6, s[24:27], s41 offen sc1")
    a("s_branch SYNC_P")
    a.label("SYNC_X")
    dbg_timeout(a, "SYNCP")
    a("s_waitcnt lgkmcnt(0)")
    stamp_flush(a)
    a("s_endpgm")

    a.label("AUX_FFN0")
    lds_tag(a, "F", 84)
    a("s_load_dwordx4 s[4:7], s[0:1], 56")
    a("s_load_dwordx2 s[8:9], s[0:1], 72")
    a("s_mul_i32 s54, s2, 2341")
    a("s_lshr_b32 s54, s54, 16")
    a("s_mul_i32 s55, s54, 28")
    a("s_sub_u32 s55, s2, s55")
    a("v_lshrrev_b32 v28, 3, v1")
    a("v_mul_u32_u24 v28, 3584, v28")
    a("v_lshrrev_b32 v6, 2, v1")
    a("v_and_b32 v6, 4, v6")
    a("v_xor_b32 v6, v6, v1")
    a("v_and_b32 v6, 7, v6")
    a("v_lshl_add_u32 v28, v6, 4, v28")
    a("v_lshrrev_b32 v14, 5, v1")
    a("v_lshrrev_b32 v6, 2, v1")
    a("v_and_b32 v6, 3, v6")
    a("v_lshl_add_u32 v13, v14, 3, v6")
    a("v_lshlrev_b32 v12, 10, v13")
    a("v_lshlrev_b32 v13, 7, v13")
    a("v_lshrrev_b32 v6, 1, v6")
    a("v_lshl_add_u32 v13, v6, 6, v13")
    a("v_and_b32 v6, 16, v1")
    a("v_lshlrev_b32 v6, 1, v6")
    a("v_and_b32 v7, 3, v1")
    a("v_lshl_add_u32 v6, v7, 3, v6")
    a("v_add_u32 v13, v13, v6")
    a(f"v_add_u32 v13, 0x{L_KV:x}, v13")
    a("v_xor_b32 v15, 64, v13")
    a("v_add_u32 v12, v12, v6")
    a(f"v_add_u32 v12, 0x{L_KV+16384:x}, v12")
    a("v_and_b32 v7, 4, v1")
    a("v_lshlrev_b32 v7, 8, v7")
    a("v_lshl_add_u32 v7, v14, 4, v7")
    a("v_and_b32 v4, 31, v1")
    a("s_waitcnt lgkmcnt(0)")
    srd(a, 28, 4, 5, 0, 512 * 3584)
    srd(a, 32, 6, 7, 0, 512 * 3584)
    srd(a, 36, 8, 9, 0, 1792 * 1024)
    srd(a, 44, 14, 15, WS_YPART, 112 * 4096)
    a("s_cmp_eq_u32 s2, 255")
    a("s_cbranch_scc1 SELECT")
    lds_wait(a, "FR", need_imm=8, off=28, two=False, vt=84, slow=True)
    a("s_setprio 3")
    a.label("FFN_GO")
    a("s_cmp_ge_u32 s2, 224")
    a("s_cbranch_scc1 FFN_EXIT")
    a(f"s_mul_i32 s52, s54, {64*3584}")
    a("s_lshl_b32 s53, s55, 7")
    a("s_add_u32 s52, s52, s53")
    a(f"s_mov_b32 s53, {L_KV}")
    a("s_mov_b32 s41, 0")
    a.label("FFN_DMA")
    a("s_mov_b32 m0, s53")
    a("s_add_u32 s53, s53, 1024")
    a("buffer_load_dwordx4 v28, s[28:31], s52 offen lds")
    a("s_add_u32 m0, m0, 8192")
    a("s_add_u32 s41, s41, 1")
    a("buffer_load_dwordx4 v28, s[32:35], s52 offen lds")
    a(f"s_add_u32 s52, s52, {8*3584}")
    a(f"s_waitcnt vmcnt({FFN_THR})")
    a("s_cmp_lt_u32 s41, 8")
    a("s_cbranch_scc1 FFN_DMA")
    a(f"s_mov_b32 s40, {WS_SELG}")
    poll(a, "FSEL", 2, [40], wide=True, sleep=8)
    a("s_lshl_b32 s40, s54, 7")
    a(f"s_add_u32 s40, s40, {WS_XSEL}")
    for sx in range(4):
        a(f"buffer_load_dwordx4 {vr(16+4*sx,4)}, v7, s[24:27], s40 offen offset:{32*sx} sc1")
    a("v_mul_u32_u24 v6, 7168, v14")
    a("v_lshl_add_u32 v6, v4, 2, v6")
    a(f"s_mul_i32 s40, s54, {4*7168}")
    a("s_lshl_b32 s41, s55, 8")
    a("s_add_u32 s40, s40, s41")
    a(f"s_add_u32 s40, s40, {WS_GP}")
    a(f"s_add_u32 s41, s40, {2*7168}")
    a("s_waitcnt vmcnt(0)")
    for mat in range(2):
        for ct in range(2):
            for sx in range(4):
                a(f"ds_read_b64_tr_b16 {vr(96+16*ct+4*sx,2)}, v{13+2*ct} offset:{mat*8192+sx*2048}")
                a(f"ds_read_b64_tr_b16 {vr(98+16*ct+4*sx,2)}, v{13+2*ct} offset:{mat*8192+sx*2048+512}")
        a("s_waitcnt lgkmcnt(0)")
        for ct in range(2):
            acc = 32 + 32 * mat + 16 * ct
            for sx in range(4):
                cc = "0" if sx == 0 else vr(acc, 16)
                a(f"v_mfma_f32_32x32x16_bf16 {vr(acc,16)}, {vr(16+4*sx,4)}, {vr(96+16*ct+4*sx,4)}, {cc}")
    a("s_nop 15")
    for mat in range(2):
        for ct in range(2):
            a(f"buffer_store_dword v{32+32*mat+16*ct}, v6, s[24:27], s{40+mat} offen offset:{128*ct} sc1")
    a("s_lshl_b32 s40, s55, 3")
    a("s_add_u32 s40, s40, s54")
    a("s_lshl_b32 s40, s40, 7")
    a(f"s_add_u32 s40, s40, {WS_FLAGA}")
    a("v_mov_b32 v3, s60")
    a("s_waitcnt vmcnt(0)")
    a("s_mov_b64 exec, 1")
    a("buffer_store_dword v3, v2, s[24:27], s40 offen sc1")
    a.label("FFN_EXIT")
    stamp_flush(a)
    a("s_endpgm")

    a.label("SELECT")
    lds_wait(a, "SM", need_imm=0xff, off=32, two=False, vt=84, slow=True)
    a(f"s_mov_b32 s40, {WS_TOPC}")
    a("buffer_load_dwordx4 v[64:67], v5, s[24:27], s40 offen sc1")
    a("buffer_load_dwordx4 v[68:71], v5, s[24:27], s40 offen offset:1024 sc1")
    a("s_setprio 3")
    a("s_waitcnt vmcnt(0)")
    for rnd in range(2):
        a("v_max3_u32 v16, v64, v65, v66")
        a("v_max3_u32 v17, v67, v68, v69")
        a("v_max3_u32 v16, v70, v71, v16")
        a("v_max_u32 v16, v16, v17")
        wave_reduce_rows(a, [16], op="v_max_u32")
        a("s_nop 0")
        a(f"v_readlane_b32 s{48+rnd}, v16, 63")
        a("s_nop 1")
        if rnd == 0:
            for i in range(8):
                a(f"v_cmp_eq_u32 vcc, s48, v{64+i}")
                a("s_nop 1")
                a(f"v_cndmask_b32 v{64+i}, v{64+i}, 0, vcc")
    for t in range(2):
        a(f"s_and_b32 s{50+t}, s{48+t}, 0xffff")
        a(f"s_sub_u32 s{50+t}, 2047, s{50+t}")
        a(f"s_lshl_b32 s52, s{50+t}, 10")
        a(f"buffer_load_dwordx4 {vr(64+4*t,4)}, v5, s[20:23], s52 offen")
        a(f"s_lshl_b32 s52, s{50+t}, 4")
        a(f"s_add_u32 s52, s52, {WS_STATS}")
        a(f"buffer_load_dwordx2 {vr(16+2*t,2)}, v2, s[24:27], s52 offen sc1")
    a("s_waitcnt vmcnt(0)")
    for t in range(2):
        for j in range(4):
            a(f"v_lshlrev_b32 v{32+8*t+2*j}, 16, v{64+4*t+j}")
            a(f"v_and_b32 v{33+8*t+2*j}, s42, v{64+4*t+j}")
        a(f"v_sub_f32 v{20+4*t}, 0, v{16+2*t}")
        a(f"v_sub_f32 v{21+4*t}, 0, v{16+2*t}")
        a(f"v_mov_b32 v{22+4*t}, v{17+2*t}")
        a(f"v_mov_b32 v{23+4*t}, v{17+2*t}")
    ln_normalize(a, [64, 68], 32, 48, [20, 24], [22, 26], 42)
    a(f"s_mov_b32 s40, {WS_XSEL}")
    a("buffer_store_dwordx4 v[64:67], v5, s[24:27], s40 offen sc1")
    a("buffer_store_dwordx4 v[68:71], v5, s[24:27], s40 offen offset:1024 sc1")
    a("v_mov_b32 v16, s60")
    a("v_mov_b32 v17, s48")
    a("v_mov_b32 v18, s49")
    a("v_mov_b32 v19, s60")
    a(f"s_mov_b32 s40, {WS_SELG}")
    a("s_waitcnt vmcnt(0)")
    a("s_mov_b64 exec, 1")
    a("buffer_store_dwordx4 v[16:19], v2, s[24:27], s40 offen sc1")
    a("s_mov_b64 exec, -1")
    a("s_branch FFN_GO")
    a.label("R_LN")

    a("s_lshl_b32 s43, s19, 3")
    a("s_add_u32 s43, s43, s17")
    a("s_lshl_b32 s44, s16, 1")
    a("s_add_u32 s44, s44, s43")
    a("s_lshl_b32 s45, s44, 10")
    NR = 2
    R = range(NR)
    XU, D = 32, 48
    STV = 96
    a("s_lshl_b32 s40, s16, 11")
    a(f"s_add_u32 s40, s40, {L_XN}")
    a("v_add_u32 v3, s40, v5")
    a(f"v_add_u32 v4, 0x{P1_WR:x}, v5")
    a("s_barrier")
    lds_wait(a, "LN0", need_imm=1, vt=84)
    stamp(a, 1)
    a("v_mov_b32 v104, 0")
    for i in R:
        a(f"ds_read_b128 {vr(8+4*i,4)}, v3 offset:{1024*i}")
    a(f"ds_read_b128 {vr(24,4)}, v4")
    for i in R:
        a(f"s_waitcnt lgkmcnt({NR - i})")
        for j in range(4):
            a(f"v_lshlrev_b32 v{XU+8*i+2*j}, 16, v{8+4*i+j}")
            a(f"v_and_b32 v{XU+8*i+2*j+1}, s42, v{8+4*i+j}")
    for i in R:
        a(f"v_pk_add_f32 {vr(72+2*i,2)}, {vr(XU+8*i,2)}, {vr(XU+8*i+2,2)}")
        a(f"v_pk_add_f32 {vr(80+2*i,2)}, {vr(XU+8*i+4,2)}, {vr(XU+8*i+6,2)}")
    for i in R:
        a(f"v_pk_add_f32 {vr(72+2*i,2)}, {vr(72+2*i,2)}, {vr(80+2*i,2)}")
    for i in R:
        a(f"v_add_f32 v{64+i}, v{72+2*i}, v{73+2*i}")
    wave_reduce_rows(a, [64 + i for i in R])
    a("s_nop 0")
    for i in R:
        a(f"v_readlane_b32 s{48+i}, v{64+i}, 63")
    a("v_mov_b32 v68, 0xbb000000")
    a("s_nop 1")
    for i in R:
        a(f"v_mul_f32 v{72+2*i}, s{48+i}, v68")
        a(f"v_mul_f32 v{73+2*i}, s{48+i}, v68")
    for i in R:
        for j in range(4):
            a(f"v_pk_add_f32 {vr(D+8*i+2*j,2)}, {vr(XU+8*i+2*j,2)}, {vr(72+2*i,2)}")
    for i in R:
        a(f"v_pk_mul_f32 {vr(80+2*i,2)}, {vr(D+8*i,2)}, {vr(D+8*i,2)}")
    for j in range(1, 4):
        for i in R:
            a(f"v_pk_fma_f32 {vr(80+2*i,2)}, {vr(D+8*i+2*j,2)}, {vr(D+8*i+2*j,2)}, {vr(80+2*i,2)}")
    for i in R:
        a(f"v_add_f32 v{64+i}, v{80+2*i}, v{81+2*i}")
    wave_reduce_rows(a, [64 + i for i in R])
    a("s_nop 0")
    for i in R:
        a(f"v_readlane_b32 s{52+i}, v{64+i}, 63")
    a("s_nop 1")
    for i in R:
        a(f"v_cvt_pk_bf16_f32 v{72+2*i}, v{72+2*i}, v{72+2*i}")
    for i in R:
        a(f"v_and_b32 v{73+2*i}, s42, v{72+2*i}")
        a(f"v_lshlrev_b32 v{72+2*i}, 16, v{72+2*i}")
    for i in R:
        a(f"v_mul_f32 v{64+i}, s{52+i}, -v68")
    for op in ("add", "sqrt", "rcp"):
        a("v_cvt_pk_bf16_f32 v66, v64, v65")
        a("v_lshlrev_b32 v64, 16, v66")
        a("v_and_b32 v65, s42, v66")
        for i in R:
            if op == "add":
                a(f"v_add_f32 v{64+i}, 0x{f2u(1e-5):08x}, v{64+i}")
            elif op == "sqrt":
                a(f"v_sqrt_f32 v{64+i}, v{64+i}")
            else:
                a(f"v_rcp_f32 v{80+2*i}, v{64+i}")
        if op == "sqrt":
            a("s_nop 0")
    a("s_nop 1")
    for i in R:
        a(f"v_mov_b32 v{81+2*i}, v{80+2*i}")
    ln_normalize(a, [8, 12], XU, D, [72, 74], [80, 82], 42)
    a("s_waitcnt lgkmcnt(0)")
    for i in R:
        a(f"v_mov_b32 v{64+i}, 0")
    for j in range(4):
        for i in R:
            a(f"v_dot2c_f32_bf16 v{64+i}, v{8+4*i+j}, v{24+j}")
    for i in R:
        a(f"v_sub_f32 v{STV+4*i}, 0, v{72+2*i}")
        a(f"v_mov_b32 v{STV+4*i+1}, v{80+2*i}")
    wave_reduce_rows(a, [64 + i for i in R])
    a("v_cvt_pk_bf16_f32 v66, v64, v65")
    a("v_lshlrev_b32 v64, 16, v66")
    a("v_and_b32 v65, s42, v66")
    for i in R:
        a(f"v_ashrrev_i32 v{68+i}, 31, v{64+i}")
    for i in R:
        a(f"v_or_b32 v{68+i}, 0x80000000, v{68+i}")
    for i in R:
        a(f"v_xor_b32 v{64+i}, v{64+i}, v{68+i}")
        a(f"s_sub_u32 s{48+i}, {2047-i}, s44")
    for i in R:
        a(f"v_and_b32 v{64+i}, s42, v{64+i}")
    for i in R:
        a(f"v_or_b32 v{64+i}, s{48+i}, v{64+i}")
    a("s_lshl_b32 s40, s16, 3")
    a(f"s_add_u32 s40, s40, {L_KEY}")
    a("v_mov_b32 v4, s40")
    a("v_cmp_eq_u32 vcc, 63, v1")
    a("s_lshl_b32 s40, s16, 5")
    a("v_xor_b32 v3, s40, v3")
    a("v_xor_b32 v6, 16, v3")
    a("ds_write_b128 v3, v[8:11]")
    a("ds_write_b128 v6, v[12:15] offset:1024")
    a("s_and_saveexec_b64 s[56:57], vcc")
    a("ds_write_b64 v4, v[64:65]")
    a("s_mov_b64 exec, s[56:57]")
    a("v_and_b32 v3, 15, v1")
    a("v_lshrrev_b32 v4, 4, v1")
    a("s_waitcnt lgkmcnt(0)")
    a("v_mov_b32 v6, 1")
    lds_add(a, 86, 6, 12)
    stamp(a, 2)
    lds_tag(a, "LN", 84)
    for i in R:
        a(f"v_mov_b32 v{STV+4*i+2}, s60")
        a(f"v_mov_b32 v{STV+4*i+3}, s60")
    a("s_lshl_b32 s40, s44, 4")
    a(f"s_add_u32 s40, s40, {WS_STATS}")
    a("s_mov_b64 exec, 1")
    for i in R:
        a(f"buffer_store_dwordx4 {vr(STV+4*i,4)}, v104, s[24:27], s40 offen offset:{16*i} sc1")
    a("s_mov_b64 exec, -1")
    lds_wait(a, "LN1", need_imm=4, off=12, two=False, vt=84)
    lds_wait(a, "LN2", need_imm=2, vt=84)
    if "lnstamp" in EXP: stamp(a, 9)
    a("s_cmp_ge_u32 s16, 2")
    a("s_cbranch_scc1 LN_MISC")
    a("v_and_b32 v6, 7, v1")
    a("v_lshlrev_b32 v6, 10, v6")
    a("v_xor_b32 v7, v4, v1")
    a("v_and_b32 v7, 3, v7")
    a("v_lshl_add_u32 v6, v7, 4, v6")
    a(f"v_add_u32 v6, {L_XN}, v6")
    a("v_and_b32 v7, 4, v1")
    a("v_lshlrev_b32 v7, 4, v7")
    a("v_sub_u32 v15, v6, v7")
    a("v_add_u32 v6, v6, v7")
    a("v_lshlrev_b32 v7, 8, v4")
    a("v_lshl_add_u32 v7, v3, 3, v7")
    a("s_lshl_b32 s40, s16, 14")
    a(f"s_add_u32 s40, s40, {P1_KV}")
    a("v_add_u32 v7, s40, v7")
    a("s_cmp_eq_u32 s16, 1")
    a("s_cbranch_scc1 LN_V")
    for part in ("K", "V"):
        if part == "V":
            a.label("LN_V")
        for half in range(2):
            for s in range(8 * half, 8 * half + 8):
                a(f"ds_read_b128 {vr(32+4*(s&7),4)}, v{15 if s & 1 else 6} offset:{64*s}")
                a(f"ds_read_b64_tr_b16 {vr(64+4*(s&7),2)}, v7 offset:{1024*s}")
                a(f"ds_read_b64_tr_b16 {vr(64+4*(s&7)+2,2)}, v7 offset:{1024*s+128}")
            for s in range(8 * half, 8 * half + 8):
                k = s & 7
                if k in (0, 4):
                    a(f"s_waitcnt lgkmcnt({12 if k == 0 else 0})")
                cc = "0" if s == 0 else vr(8, 4)
                if part == "K":
                    a(f"v_mfma_f32_16x16x32_bf16 {vr(8,4)}, {vr(64+4*k,4)}, {vr(32+4*k,4)}, {cc}")
                else:
                    a(f"v_mfma_f32_16x16x32_bf16 {vr(8,4)}, {vr(32+4*k,4)}, {vr(64+4*k,4)}, {cc}")
            a("s_nop 7")
        if part == "K":
            a("v_lshrrev_b32 v7, 1, v4")
            a("v_lshl_add_u32 v7, v7, 5, v3")
            a("v_lshlrev_b32 v7, 4, v7")
            a("v_and_b32 v14, 1, v4")
            a("v_lshl_add_u32 v7, v14, 3, v7")
            a("s_lshr_b32 s40, s43, 5")
            a("s_lshl_b32 s40, s40, 10")
            a("s_and_b32 s41, s43, 31")
            a("s_lshl_b32 s41, s41, 4")
            a("s_add_u32 s40, s40, s41")
            a("v_cmp_gt_u32 vcc, 8, v3")
        else:
            a("v_and_b32 v7, 3, v3")
            a("v_and_b32 v14, 4, v3")
            a("v_lshl_add_u32 v7, v14, 1, v7")
            a("v_lshrrev_b32 v14, 3, v3")
            a("v_lshl_add_u32 v7, v14, 2, v7")
            a("v_lshlrev_b32 v7, 4, v7")
            a("v_lshl_add_u32 v7, v4, 3, v7")
            a("s_lshr_b32 s40, s43, 4")
            a("s_lshl_b32 s40, s40, 10")
            a("s_and_b32 s41, s43, 8")
            a("s_lshl_b32 s41, s41, 6")
            a("s_add_u32 s40, s40, s41")
            a(f"s_add_u32 s40, s40, {WS_VFRAG}")
            a("v_cmp_gt_u32 vcc, 32, v1")
        a("v_cvt_pk_bf16_f32 v12, v8, v9")
        a("v_cvt_pk_bf16_f32 v13, v10, v11")
        a("s_and_saveexec_b64 s[56:57], vcc")
        a("buffer_store_dwordx2 v[12:13], v7, s[24:27], s40 offen sc1")
        a("s_mov_b64 exec, s[56:57]")
        if "lnstamp" in EXP: stamp(a, 10)
        a("s_branch LN_DONE")
    a.label("LN_MISC")
    a("s_cmp_eq_u32 s16, 2")
    a("s_cbranch_scc1 LN_TOP")
    a("v_add_u32 v6, 16, v1")
    a("v_lshlrev_b32 v6, 4, v6")
    a("v_and_b32 v7, 11, v1")
    a("v_mov_b32 v8, 0x3f803f80")
    a("v_cmp_eq_u32 vcc, 0, v7")
    a("s_lshr_b32 s40, s43, 4")
    a("s_lshl_b32 s40, s40, 10")
    a("v_cndmask_b32 v8, 0, v8, vcc")
    a("v_mov_b32 v9, v8")
    a("v_mov_b32 v10, v8")
    a("v_mov_b32 v11, v8")
    a("s_and_b32 s41, s43, 8")
    a("s_lshl_b32 s41, s41, 6")
    a("s_add_u32 s40, s40, s41")
    a(f"s_add_u32 s40, s40, {WS_VFRAG}")
    a("v_cmp_gt_u32 vcc, 16, v1")
    a("s_and_saveexec_b64 s[56:57], vcc")
    a("buffer_store_dwordx4 v[8:11], v6, s[24:27], s40 offen sc1")
    a("s_mov_b64 exec, s[56:57]")
    a("s_branch LN_MISC2")
    a.label("LN_TOP")
    a("v_and_b32 v3, 7, v1")
    a("v_lshlrev_b32 v3, 2, v3")
    a(f"v_add_u32 v3, 0x{L_KEY:x}, v3")
    a("ds_read_b32 v8, v3")
    a("s_waitcnt lgkmcnt(0)")
    a("v_mov_b32 v10, v8")
    wave_reduce_rows(a, [10], op="v_max_u32", nsteps=3)
    a("v_cmp_eq_u32 vcc, v8, v10")
    a("s_nop 1")
    a("v_cndmask_b32 v11, v8, 0, vcc")
    wave_reduce_rows(a, [11], op="v_max_u32", nsteps=3)
    a("s_lshl_b32 s40, s2, 3")
    a(f"s_add_u32 s40, s40, {WS_TOPC}")
    a("v_mov_b32 v3, 0")
    a("v_cmp_eq_u32 vcc, 0, v1")
    a("s_and_saveexec_b64 s[56:57], vcc")
    a("buffer_store_dwordx2 v[10:11], v3, s[24:27], s40 offen sc1")
    a("s_mov_b64 exec, s[56:57]")
    a.label("LN_MISC2")
    a.label("LN_DONE")
    a("s_getreg_b32 s59, hwreg(HW_REG_XCC_ID)")
    a("v_mov_b32 v8, s60")
    a("v_mov_b32 v9, s59")
    a(f"v_mov_b32 v6, 0x{P1_FL:x}")
    a("v_mov_b32 v7, 1")
    a("s_lshl_b32 s40, s2, 7")
    a(f"s_add_u32 s40, s40, {WS_FLAG1}")
    a("s_waitcnt vmcnt(0) lgkmcnt(0)")
    a("s_mov_b64 exec, 1")
    a("ds_add_rtn_u32 v7, v6, v7 offset:16")
    a("s_waitcnt lgkmcnt(0)")
    a("v_readfirstlane_b32 s41, v7")
    a("s_cmp_lg_u32 s41, 3")
    a("s_cbranch_scc1 LN_NOFLAG")
    a("buffer_store_dwordx2 v[8:9], v104, s[24:27], s40 offen sc1")
    a.label("LN_NOFLAG")
    a("s_mov_b64 exec, -1")
    stamp(a, 3)
    a("s_load_dwordx2 s[68:69], s[0:1], 80")
    a("s_lshr_b32 s64, s16, 1")
    a("s_lshl_b32 s64, s64, 5")
    a("s_add_u32 s64, s64, s17")
    a("s_and_b32 s40, s16, 1")
    a("s_lshl_b32 s40, s40, 5")
    a("s_add_u32 s40, s40, s18")
    a("s_lshl_b32 s65, s64, 10")
    a("s_lshl_b32 s40, s40, 1")
    a("s_add_u32 s65, s65, s40")
    a("s_add_u32 s66, s65, 16384")
    p3_pre(a, "F", *PRE_A, front=True)
    if "lnstamp" in EXP: stamp(a, 11)
    a("s_mov_b32 s46, 0")
    a("s_branch ATT")

    a.label("R_GEMM")
    gemm_addr(a, P1_W)
    a("s_lshr_b32 s58, s16, 1")
    a("s_lshl_b32 s58, s58, 5")
    a("s_add_u32 s58, s58, s17")
    a("s_lshl_b32 s58, s58, 4")
    a(f"s_add_u32 s58, s58, {WS_STATS}")
    a("v_and_b32 v124, 31, v1")
    a("v_lshlrev_b32 v124, 4, v124")
    stamp(a, 1)
    gemm_loop_p1(a)
    stamp(a, 3)
    lds_tag(a, "G", 84)
    a("s_lshl_b32 s41, s16, 11")
    a(f"s_add_u32 s41, s41, {L_Q}")
    a("v_lshlrev_b32 v5, 4, v1")
    a("v_add_u32 v3, s41, v5")
    a("s_waitcnt vmcnt(0)")
    a("v_mov_b64 v[20:21], v[120:121]")
    a("v_cmp_ne_u32 vcc, s60, v122")
    a("v_cmp_ne_u32 s[62:63], s60, v123")
    a("s_or_b64 vcc, vcc, s[62:63]")
    a("s_cmp_eq_u64 vcc, 0")
    a("s_cbranch_scc1 ST_OK")
    poll(a, "ST", 124, [58], wide=True, cmpw=(22, 23))
    a.label("ST_OK")
    lds_wait(a, "GQ", need_imm=4, off=16, two=False, vt=84)
    a(f"v_mul_f32 v6, 0x{f2u(SCALE):08x}, v21")
    a("v_mul_f32 v7, v20, v6")
    for i in range(16):
        a(f"v_mul_f32 v{ACC+i}, v{ACC+i}, v6")
    for i in range(16):
        a(f"v_fma_f32 v{ACC+i}, -v{ACC2+i}, v7, v{ACC+i}")
    for i in range(8):
        a(f"v_cvt_pk_bf16_f32 v{FR+i}, v{ACC+2*i}, v{ACC+2*i+1}")
    a(f"ds_write_b128 v3, {vr(FR,4)}")
    a(f"ds_write_b128 v3, {vr(FR+4,4)} offset:1024")
    a("v_mov_b32 v7, 1")
    a("s_waitcnt lgkmcnt(0)")
    lds_add(a, 86, 7, 24)
    if "lnstamp" in EXP: stamp(a, 11)
    a("s_mov_b32 s46, 1")

    a.label("ATT")
    a("s_lshl_b32 s52, s16, 11")
    a("s_lshl_b32 s53, s16, 12")
    a(f"s_add_u32 s53, s53, {WS_VFRAG}")
    a(f"v_mov_b32 v{IDX}, 0xdddddddd")
    a(f"v_mov_b32 v9, 0x{P1_FL:x}")
    for i in range(0, 64, 2):
        a(f"v_mov_b64 {vr(O0+i,2)}, 0")
    for i in range(0, 4, 2):
        a(f"v_mov_b64 {vr(VB+12+i,2)}, 0")
    for i in range(0, 8, 2):
        a(f"v_mov_b64 {vr(S0+24+i,2)}, 0")
    a("s_lshl_b32 s40, s46, 12")
    a(f"s_add_u32 s40, s40, {L_Q}")
    for i in range(4):
        a(f"s_add_u32 s41, s16, {i}")
        a("s_and_b32 s41, s41, 3")
        a("s_lshl_b32 s41, s41, 10")
        a("s_add_u32 s41, s41, s40")
        a(f"v_add_u32 v{10+i}, s41, v5")
    a("s_mov_b32 s54, 0")
    next_class(a, "P")
    stamp(a, 4)
    a(f"buffer_load_dwordx4 {vr(KB,4)}, v5, s[24:27], s44 offen")
    a(f"buffer_load_dwordx4 {vr(VB,4)}, v5, s[24:27], s45 offen")
    a(f"buffer_load_dwordx4 {vr(VB+4,4)}, v5, s[24:27], s45 offen offset:1024")
    a(f"buffer_load_dwordx4 {vr(KB+4,4)}, v5, s[24:27], s44 offen offset:1024")
    a(f"buffer_load_dwordx4 {vr(VB+8,4)}, v5, s[24:27], s45 offen offset:2048")
    a("s_add_u32 s45, s45, 3072")
    lds_wait(a, "AQ", need_imm=4, off=24, two=False, vt=S0)
    for i in range(4):
        a(f"ds_read_b128 {vr(Q0+4*i,4)}, v{10+i}")
    a("v_mov_b32 v14, 1")
    a("s_waitcnt lgkmcnt(0)")
    lds_add(a, 9, 14, 28)
    a("s_waitcnt vmcnt(4)")
    a(f"v_mfma_f32_32x32x16_bf16 {vr(S0,16)}, {vr(KB,4)}, {vr(Q0,4)}, 0")
    a("s_mov_b32 s47, 0")
    stamp(a, 5)
    a("s_nop 15")
    a.raw(".p2align 6")
    a.label("ATT_LOOP")
    for X in range(8):
        t = X >> 2
        c = X & 3
        Sx = S0 + 16 * (X & 1)
        Sp = S0 + 16 * ((X + 1) & 1)
        cp = (c - 1) & 3
        tp = ((X - 1) >> 2) & 1
        cn = (c + 1) & 3
        tn = ((X + 1) >> 2) & 1
        for e in range(16):
            a(f"v_exp_f32 v{Sx+e}, v{Sx+e}")
            if e == 1:
                if c == 1:
                    a("s_waitcnt vmcnt(3)")
                a(f"v_smfmac_f32_32x32x32_bf16 {vr(O0+16*cp,16)}, {vr(VB+8*tp+4,4)}, {vr(Sp+8,8)}, v{IDX}")
                if c == 0:
                    a(f"buffer_load_dwordx4 {vr(VB+8*tp+4,4)}, v5, s[24:27], s45 offen")
                    a("s_add_u32 s45, s45, 1024")
                if X == 1:
                    a("s_cmp_eq_u32 s54, 0xff")
                    a("s_cbranch_scc1 NC_SKIP")
                    next_class(a, "L")
                    a.label("NC_SKIP")
            if e == 4:
                if c == 3:
                    a("s_waitcnt vmcnt(3)")
                a(f"v_mfma_f32_32x32x16_bf16 {vr(Sp,16)}, {vr(KB+4*tn,4)}, {vr(Q0+4*cn,4)}, 0")
                if c == 2:
                    a(f"buffer_load_dwordx4 {vr(KB+4*t,4)}, v5, s[24:27], s44 offen")
                    a("s_add_u32 s44, s44, 1024")
            if e == 14:
                if c == 0:
                    a("s_waitcnt vmcnt(4)")
                a(f"v_smfmac_f32_32x32x32_bf16 {vr(O0+16*c,16)}, {vr(VB+8*t,4)}, {vr(Sx,8)}, v{IDX}")
                if c == 3:
                    a(f"buffer_load_dwordx4 {vr(VB+8*t,4)}, v5, s[24:27], s45 offen")
                    a("s_add_u32 s45, s45, 1024")
    a("s_add_u32 s47, s47, 1")
    a("s_cmp_lt_u32 s47, 8")
    a("s_cbranch_scc1 ATT_LOOP")
    stamp(a, 6)
    a("s_nop 1")
    a(f"v_smfmac_f32_32x32x32_bf16 {vr(O0+48,16)}, {vr(VB+8+4,4)}, {vr(S0+16+8,8)}, v{IDX}")
    a("s_mul_i32 s40, s46, 27648")
    a("v_lshlrev_b32 v9, 2, v1")
    for i in range(1, 4):
        a(f"s_add_u32 s41, s16, {i}")
        a("s_and_b32 s41, s41, 3")
        a("s_mul_i32 s41, s41, 6912")
        a("s_add_u32 s41, s41, s40")
        a(f"v_add_u32 v{9+i}, s41, v5")
        a(f"v_add_u32 v{12+i}, s41, v9")
    a("s_mul_i32 s41, s16, 6912")
    a("s_add_u32 s41, s41, s40")
    a("v_add_u32 v6, s41, v5")
    a("v_add_u32 v7, s41, v9")
    for i in range(1, 4):
        a(f"ds_write_b128 v{9+i}, {vr(O0+16*i,4)} offset:{2304*(i-1)}")
        a(f"ds_write_b128 v{9+i}, {vr(O0+16*i+4,4)} offset:{2304*(i-1)+1024}")
        a(f"ds_write_b32 v{12+i}, v{O0+16*i+8} offset:{2304*(i-1)+2048}")
    srd(a, 32, 14, 15, WS_O, 2048 * 1024)
    a("s_mov_b32 s67, 0")
    a("s_waitcnt lgkmcnt(0)")
    a("s_cmp_eq_u32 s46, 1")
    a("s_cbranch_scc1 ATT_BR")
    a(f"v_mov_b32 v2, 0x{L_SEL:x}")
    a.label("SELW")
    a("ds_read_b128 v[48:51], v2")
    a("s_waitcnt vmcnt(0) lgkmcnt(0)")
    a("v_readfirstlane_b32 s40, v48")
    a("v_readfirstlane_b32 s76, v49")
    a("v_readfirstlane_b32 s77, v50")
    a("s_cmp_eq_u32 s40, 0")
    a("s_cbranch_scc1 SELW")
    for t in range(2):
        a(f"s_and_b32 s59, s{76+t}, 0xffff")
        a("s_sub_u32 s59, 2047, s59")
        a("s_sub_u32 s59, s59, s64")
        a("s_cmp_lt_u32 s59, 32")
        a("s_cbranch_scc1 ATT_ROUTED")
    a("s_waitcnt lgkmcnt(0)")
    a.label("ATT_BR")
    a("s_barrier")
    stamp(a, 7)
    Rr = O0
    for i in range(1, 4):
        a(f"ds_read_b128 {vr(Rr+16*i,4)}, v6 offset:{2304*(i-1)}")
        a(f"ds_read_b128 {vr(Rr+16*i+4,4)}, v6 offset:{2304*(i-1)+1024}")
        a(f"ds_read_b32 v{Rr+16*i+8}, v7 offset:{2304*(i-1)+2048}")
    a(f"v_mov_b32 v2, 0x{L_SEL:x}")
    a("ds_read_b32 v9, v2 offset:12")
    a("s_mov_b32 s48, 0x7f000000")
    a("s_mov_b32 s49, 0x1f800000")
    a("s_mov_b32 s50, 0x5f800000")
    a("v_and_b32 v2, 31, v1")
    a("v_lshrrev_b32 v3, 5, v1")
    a("v_mul_u32_u24 v4, 144, v2")
    a("v_lshl_add_u32 v4, v3, 4, v4")
    a("s_mul_i32 s40, s46, 4608")
    a("s_lshl_b32 s41, s16, 5")
    a("s_add_u32 s40, s40, s41")
    a(f"s_add_u32 s40, s40, {L_KV}")
    a("v_add_u32 v4, s40, v4")
    a("v_lshrrev_b32 v2, 3, v1")
    a("v_and_b32 v3, 7, v1")
    a("v_mul_u32_u24 v15, 144, v2")
    a("v_lshl_add_u32 v15, v3, 4, v15")
    a("s_mul_i32 s40, s78, 1152")
    a(f"s_add_u32 s40, s40, {L_KV - 4*1152}")
    a("v_add_u32 v15, s40, v15")
    a("v_mov_b32 v2, v5")
    a("s_lshl_b32 s40, s78, 10")
    a("s_lshl_b32 s41, s17, 10")
    a("s_add_u32 s40, s40, s41")
    a("s_lshl_b32 s41, s19, 13")
    a("s_add_u32 s40, s40, s41")
    a("s_sub_u32 s51, s40, 4096")
    for i in range(1, 4):
        a(f"s_waitcnt lgkmcnt({3*(3-i)+1})")
        for j in range(0, 8, 2):
            a(f"v_pk_add_f32 {vr(Rr+j,2)}, {vr(Rr+j,2)}, {vr(Rr+16*i+j,2)}")
        a(f"v_add_f32 v{Rr+8}, v{Rr+8}, v{Rr+16*i+8}")
    a("s_waitcnt lgkmcnt(0)")
    a("v_readfirstlane_b32 s57, v9")
    a(f"v_add_f32 v11, abs(v{Rr}), abs(v{Rr+1})")
    a(f"v_add_f32 v12, abs(v{Rr+2}), abs(v{Rr+3})")
    a(f"v_add_f32 v13, abs(v{Rr+4}), abs(v{Rr+5})")
    a(f"v_add_f32 v14, abs(v{Rr+6}), abs(v{Rr+7})")
    a("v_add_f32 v11, v11, v12")
    a("v_add_f32 v13, v13, v14")
    a("v_add_f32 v11, v11, v13")
    a("v_cmp_gt_f32 s[52:53], s48, v11")
    a(f"v_cmp_le_f32 s[54:55], s49, v{Rr+8}")
    a(f"v_cmp_ge_f32 vcc, s50, v{Rr+8}")
    a("s_and_b64 s[52:53], s[52:53], s[54:55]")
    a("s_and_b64 s[52:53], s[52:53], vcc")
    a("s_cmp_eq_u64 s[52:53], -1")
    if "forceslow" in EXP: a("s_branch ATT_SLOW")
    a("s_cbranch_scc0 ATT_SLOW")
    a.label("ATT_FIN")
    a(f"v_rcp_f32 v11, v{Rr+8}")
    a("s_nop 0")
    for i in range(8):
        a(f"v_mul_f32 v{Rr+i}, v{Rr+i}, v11")
    for i in range(4):
        a(f"v_cvt_pk_bf16_f32 v{Rr+12+i}, v{Rr+2*i}, v{Rr+2*i+1}")
    a(f"ds_write_b128 v4, {vr(Rr+12,4)}")
    a("s_waitcnt lgkmcnt(0)")
    a("s_barrier")
    a(f"ds_read_b128 {vr(Rr+12,4)}, v15")
    a("s_waitcnt lgkmcnt(0)")
    a("s_cmp_eq_u32 s57, 1")
    a("s_cbranch_scc1 ATT_ST1")
    a(f"buffer_store_dwordx4 {vr(Rr+12,4)}, v2, s[32:35], s51 offen sc1")
    a("s_branch ATT_ST2")
    a.label("ATT_ST1")
    a(f"buffer_store_dwordx4 {vr(Rr+12,4)}, v2, s[32:35], s51 offen")
    a.label("ATT_ST2")
    a(f"v_mov_b32 v4, 0x{L_MISC:x}")
    a("v_mov_b32 v3, 1")
    a("s_lshl_b32 s40, s17, 4")
    a("s_lshl_b32 s41, s19, 7")
    a("s_add_u32 s40, s40, s41")
    a(f"s_add_u32 s40, s40, {WS_FLAG2}")
    a("v_mov_b32 v9, s60")
    a("v_mov_b32 v10, 0")
    a("s_waitcnt vmcnt(0)")
    a("s_mov_b64 exec, 1")
    a("ds_add_rtn_u32 v3, v4, v3 offset:32")
    a("s_waitcnt lgkmcnt(0)")
    a("v_readfirstlane_b32 s41, v3")
    a("s_cmp_lg_u32 s41, 7")
    a("s_cbranch_scc1 ATT_NOFLAG")
    a("s_cmp_eq_u32 s57, 1")
    a("s_cbranch_scc1 ATT_FL1")
    a("buffer_store_dword v9, v10, s[24:27], s40 offen sc1")
    a("s_branch ATT_NOFLAG")
    a.label("ATT_FL1")
    a("buffer_store_dword v9, v10, s[24:27], s40 offen")
    a.label("ATT_NOFLAG")
    a("s_mov_b64 exec, -1")
    stamp(a, 8)
    a("s_cmp_eq_u32 s46, 0")
    a("s_cbranch_scc1 P3")
    a("s_branch P3LOAD")
    a.label("L_END")
    a("s_endpgm")

    a.label("ATT_SLOW")
    a("s_mov_b32 s67, 1")
    a("v_mov_b32 v11, 0xff7fffff")
    a("s_mov_b32 s44, 0")
    a.label("ATT_SLOW1")
    a(f"buffer_load_dwordx4 {vr(KB,4)}, v5, s[24:27], s44 offen")
    a("s_waitcnt vmcnt(0)")
    a(f"v_mfma_f32_32x32x16_bf16 {vr(S0,16)}, {vr(KB,4)}, {vr(Q0,4)}, 0")
    a("s_nop 15")
    a("s_nop 3")
    for i in range(0, 16, 2):
        a(f"v_max3_f32 v11, v{S0+i}, v{S0+i+1}, v11")
    a("s_add_u32 s44, s44, 1024")
    a("s_cmp_lt_u32 s44, 0x10000")
    a("s_cbranch_scc1 ATT_SLOW1")
    a("v_mov_b32 v9, v11")
    a("s_nop 1")
    a("v_permlane32_swap_b32 v11, v9")
    a("s_nop 1")
    a("v_max_f32 v11, v11, v9")
    for i in range(16):
        a(f"v_sub_f32 v{S0+16+i}, 0, v11")
    for i in range(0, 16, 2):
        a(f"v_mov_b64 {vr(Rr+i,2)}, 0")
    a("s_mov_b32 s44, 0")
    a(f"s_mov_b32 s45, {WS_VFRAG}")
    a.label("ATT_SLOW2")
    a(f"buffer_load_dwordx4 {vr(KB,4)}, v5, s[24:27], s44 offen")
    a(f"buffer_load_dwordx4 {vr(VB,4)}, v5, s[24:27], s45 offen")
    a(f"buffer_load_dwordx4 {vr(VB+4,4)}, v5, s[24:27], s45 offen offset:1024")
    a("s_waitcnt vmcnt(0)")
    a(f"v_mfma_f32_32x32x16_bf16 {vr(S0,16)}, {vr(KB,4)}, {vr(Q0,4)}, {vr(S0+16,16)}")
    a("s_nop 15")
    a("s_nop 3")
    for e in range(16):
        a(f"v_exp_f32 v{S0+e}, v{S0+e}")
    a("s_nop 1")
    a(f"v_smfmac_f32_32x32x32_bf16 {vr(Rr,16)}, {vr(VB,4)}, {vr(S0,8)}, v{IDX}")
    a(f"v_smfmac_f32_32x32x32_bf16 {vr(Rr,16)}, {vr(VB+4,4)}, {vr(S0+8,8)}, v{IDX}")
    a("s_nop 15")
    a("s_nop 3")
    a("s_add_u32 s44, s44, 1024")
    a("s_add_u32 s45, s45, 2048")
    a("s_cmp_lt_u32 s44, 0x10000")
    a("s_cbranch_scc1 ATT_SLOW2")
    a("s_branch ATT_FIN")

    a.label("P3")
    a("s_mov_b32 s70, 0x200000")
    a("s_mov_b32 s71, 0x00020000")
    a(f"v_lshrrev_b32 v{PV}, 2, v1")
    a(f"v_and_b32 v{PV+1}, 3, v1")
    a(f"v_lshlrev_b32 v{PV+2}, 10, v{PV}")
    a(f"v_lshl_add_u32 v{PV+2}, v{PV+1}, 4, v{PV+2}")
    for i in range(8):
        a(f"v_lshlrev_b32 v{PG+2*i}, 16, v{GPK+i}")
        a(f"v_and_b32 v{PG+2*i+1}, s42, v{GPK+i}")
        a(f"v_lshlrev_b32 v{PXF+2*i}, 16, v{XPK+i}")
        a(f"v_and_b32 v{PXF+2*i+1}, s42, v{XPK+i}")
    gemm_addr(a, L_W)
    a("s_mul_i32 s40, s16, 4352")
    a(f"s_add_u32 s40, s40, {L_KV + 13312}")
    a("v_lshlrev_b32 v14, 4, v1")
    a("v_add_u32 v14, s40, v14")
    a(f"v_lshrrev_b32 v15, 1, v{PV+1}")
    a("v_mul_u32_u24 v15, 2176, v15")
    a(f"v_and_b32 v2, 1, v{PV+1}")
    a("v_lshl_add_u32 v15, v2, 9, v15")
    a(f"v_lshl_add_u32 v15, v{PV}, 4, v15")
    a("v_add_u32 v15, s40, v15")
    for i in range(0, 16, 2):
        a(f"v_mov_b64 {vr(ACC+i,2)}, 0")
    a("s_mov_b32 s41, 0")
    if "lnstamp" not in EXP: stamp(a, 9)
    a(f"v_mov_b32 v4, 0x{L_MISC:x}")
    a.label("P3_LOOP")
    a("ds_read_b32 v2, v4 offset:16")
    a("s_waitcnt lgkmcnt(0)")
    a("v_readfirstlane_b32 s40, v2")
    a("s_andn2_b32 s40, s40, s41")
    a("s_cbranch_scc0 P3_LOOP")
    FB = [16, 64]

    def pick(ab):
        a("s_ff1_i32_b32 s43, s40")
        a("s_bitset1_b32 s41, s43")
        a("s_bitset0_b32 s40, s43")
        a("s_lshl_b32 s43, s43, 13")
        a(f"v_add_u32 v{ab}, s43, v6")
        for i in range(4):
            a(f"v_add_u32 v{ab+1+i}, s43, v{10+i}")

    def rd(buf, ab):
        for sx in range(4):
            a(f"ds_read_b64_tr_b16 {vr(FB[buf]+8*sx,2)}, v{ab} offset:{sx*2048}")
            a(f"ds_read_b64_tr_b16 {vr(FB[buf]+8*sx+2,2)}, v{ab} offset:{sx*2048+512}")
            a(f"ds_read_b128 {vr(FB[buf]+8*sx+4,4)}, v{ab+1+sx}")

    def mm(buf, base):
        for sx in range(4):
            a(f"s_waitcnt lgkmcnt({base+3*(3-sx)})")
            a(f"v_mfma_f32_32x32x16_bf16 {vr(ACC,16)}, {vr(FB[buf]+8*sx,4)}, {vr(FB[buf]+8*sx+4,4)}, {vr(ACC,16)}")

    a.label("P3_CH")
    pick(128)
    rd(0, 128)
    a("s_cmp_eq_u32 s40, 0")
    a("s_cbranch_scc1 P3_ONE")
    pick(134)
    a("s_waitcnt lgkmcnt(3)")
    rd(1, 134)
    a("s_waitcnt lgkmcnt(12)")
    for sx in range(4):
        a(f"v_mfma_f32_32x32x16_bf16 {vr(ACC,16)}, {vr(FB[0]+8*sx,4)}, {vr(FB[0]+8*sx+4,4)}, {vr(ACC,16)}")
    mm(1, 0)
    a("s_branch P3_NXT")
    a.label("P3_ONE")
    mm(0, 0)
    a.label("P3_NXT")
    a("s_cmp_lg_u32 s40, 0")
    a("s_cbranch_scc1 P3_CH")
    a("s_cmp_lg_u32 s41, 0xff")
    a("s_cbranch_scc1 P3_LOOP")
    a("s_nop 15")
    stamp(a, 12)
    for ch in range(4):
        a(f"ds_write_b128 v14, {vr(ACC+4*ch,4)} offset:{1088*ch}")
    a("s_waitcnt lgkmcnt(0)")
    for j in range(2):
        for e in range(2):
            a(f"ds_read_b128 {vr(FR+8*j+4*e,4)}, v15 offset:{j*256+e*1088}")
    a("s_waitcnt lgkmcnt(0)")
    for i in range(8):
        a(f"v_pk_fma_f32 {vr(FR+2*i,2)}, {vr(FR+2*i,2)}, {vr(PG+2*i,2)}, {vr(PXF+2*i,2)}")
    for i in range(8):
        a(f"v_cvt_pk_bf16_f32 v{64+i}, v{FR+2*i}, v{FR+2*i+1}")
    a(f"buffer_store_dwordx4 {vr(64,4)}, v{PV+2}, s[68:71], s65 offen")
    a(f"buffer_store_dwordx4 {vr(68,4)}, v{PV+2}, s[68:71], s66 offen")
    stamp_flush(a)
    a("s_endpgm")
    a.label("ATT_ROUTED")
    p3_pre(a, "A", *PRE_A)
    a("s_branch ATT_BR")
    p3_upd(a, "A", *PRE_A)


def main(out):
    a = Asm()
    hdr = f"""; {NAME}: fused LN+QKV | MQA attention + routed FFN | out-proj + gate   (generated by gen/gen2.py)
; @launch grid=(256,1,1) block=(768,1,1) lds=163840
.amdgcn_target "amdgcn-amd-amdhsa--gfx950"
.text
"""
    kernel(a)
    vg = 168
    txt = hdr + a.text() + f""".section .rodata,"a"
.p2align 6
.amdhsa_kernel {NAME}_kernel
  .amdhsa_next_free_vgpr {vg}
  .amdhsa_next_free_sgpr {102 if PROF else 80}
  .amdhsa_accum_offset {vg}
  .amdhsa_group_segment_fixed_size 0
  .amdhsa_kernarg_size 104
  .amdhsa_user_sgpr_count 2
  .amdhsa_user_sgpr_kernarg_segment_ptr 1
  .amdhsa_system_sgpr_workgroup_id_x 1
.end_amdhsa_kernel
"""
    open(out, "w").write(txt)
    if POLL_IDS: print(POLL_IDS)


if __name__ == "__main__":
    PROF = os.environ.get("PROF", "0") == "1"
    main(sys.argv[1] if len(sys.argv) > 1 else f"fused.s")
```
